```python
import torch

def _softmax(x, axis=-1):
    return torch.softmax(x, dim=axis)
def _gelu(x):
    return torch.nn.functional.gelu(x, approximate="tanh")
def _silu(x):
    return torch.nn.functional.silu(x)
def _sigmoid(x):
    return torch.sigmoid(x)
def _layernorm(x, axis=-1, eps=1e-5):
    m = x.mean(dim=axis, keepdim=True)
    v = x.var(dim=axis, keepdim=True, unbiased=False)
    return (x - m) / torch.sqrt(v + eps)
def _scatter_add(tgt, idx, src, axis=0):
    return tgt.clone().index_add_(axis, idx, src)
def _segment_sum(src, seg, n):
    out = torch.zeros((n,) + src.shape[1:], dtype=src.dtype)
    return out.index_add_(0, seg, src)
def _pad(x, pw):
    flat = tuple(v for pair in reversed(pw) for v in pair)
    return torch.nn.functional.pad(x, flat)

kernel_name = 'gated_mix__linear_kernel_hedgehog__sliding_local_dilated__prompt'

def setup_inputs():

    _w = (lambda a: (lambda t: t.to(torch.bfloat16) if t.is_floating_point() else t)(torch.as_tensor(a)))
    def _A_setup():
        B, S, D, H = 1, 2048, 640, 32
        Dh = D // H
        return {
            "x": _w((lambda *s: torch.randn(*s, dtype=torch.bfloat16) * 0.05)(B, S, D)),
            "wqkv": _w((lambda *s: torch.randn(*s, dtype=torch.bfloat16) * 1.6)(D, 3 * D)),
            "w_phi": _w((lambda *s: torch.randn(*s, dtype=torch.bfloat16) * 1.6)(H, Dh, Dh) * (Dh ** -0.5)),
            "wo": _w((lambda *s: torch.randn(*s, dtype=torch.bfloat16) * 0.1)(D, D)),
        }
    _A_in = _A_setup()

    def _B_setup():
        B, S, D = 1, 2048, 640
        return {
            "x": _w((lambda *s: torch.randn(*s, dtype=torch.bfloat16) * 0.05)(B, S, D)),
            "wqkv": _w((lambda *s: torch.randn(*s, dtype=torch.bfloat16) * 0.8)(D, 3 * D)),
            "wo": _w((lambda *s: torch.randn(*s, dtype=torch.bfloat16) * 0.05)(D, D)),
        }
    _B_in = _B_setup()

    return {
        "A_x": _A_in["x"],
        "A_wqkv": _A_in["wqkv"],
        "A_w_phi": _A_in["w_phi"],
        "A_wo": _A_in["wo"],
        "B_x": _B_in["x"],
        "B_wqkv": _B_in["wqkv"],
        "B_wo": _B_in["wo"],
        "gate_w": _w((lambda *s: torch.randn(*s, dtype=torch.bfloat16) * 0.05)(640) * 16.0),
    }

def reference(A_x, A_wqkv, A_w_phi, A_wo, B_x, B_wqkv, B_wo, gate_w):
    def _A_ref(x, wqkv, w_phi, wo):
        B, S, D = x.shape
        H = 32; Dh = D // H
        qkv = (lambda x, *d: x.permute(*d))((x @ wqkv).reshape(B, S, 3, H, Dh), 2, 0, 3, 1, 4)
        q, k, v = qkv[0], qkv[1], qkv[2]
        pq = torch.einsum("bhsd,hdf->bhsf", q, w_phi)
        pk = torch.einsum("bhsd,hdf->bhsf", k, w_phi)
        phi_q = torch.concatenate([_softmax(pq, axis=-1), _softmax(-pq, axis=-1)], axis=-1)
        phi_k = torch.concatenate([_softmax(pk, axis=-1), _softmax(-pk, axis=-1)], axis=-1)
        kv = torch.einsum("bhsf,bhsd->bhfd", phi_k, v)
        z  = torch.einsum("bhsf->bhf", phi_k)
        num = torch.einsum("bhqf,bhfd->bhqd", phi_q, kv)
        den = torch.einsum("bhqf,bhf->bhq", phi_q, z)[..., None] + 1e-6
        o = num / den
        return (lambda x, *d: x.permute(*d))(o, 0, 2, 1, 3).reshape(B, S, D) @ wo

    def _B_ref(x, wqkv, wo):
        B, S, D = x.shape
        H = 32; Dh = D // H
        W, dil = 8, 2
        qkv = (lambda x, *d: x.permute(*d))((x @ wqkv).reshape(B, S, 3, H, Dh), 2, 0, 3, 1, 4)
        q, k, v = qkv[0], qkv[1], qkv[2]
        scale = Dh ** -0.5
        pos = torch.arange(S)
        off = torch.arange(W) * dil
        idx = pos[:, None] - off[None, :]
        mask = idx >= 0
        idx_c = torch.where(mask, idx, 0).reshape(-1)
        kg = k[:, :, idx_c, :].reshape(B, H, S, W, Dh)
        vg = v[:, :, idx_c, :].reshape(B, H, S, W, Dh)
        logits = torch.einsum("bhsd,bhswd->bhsw", q, kg) * scale
        logits = torch.where(mask[None, None, :, :], logits, -1e9)
        attn = _softmax(logits, axis=-1)
        o = torch.einsum("bhsw,bhswd->bhsd", attn, vg)
        return (lambda x, *d: x.permute(*d))(o, 0, 2, 1, 3).reshape(B, S, D) @ wo

    x = A_x
    g = _sigmoid((x * gate_w).sum(-1, keepdims=True))
    a = _A_ref(x, A_wqkv, A_w_phi, A_wo)
    b = _B_ref(x, B_wqkv, B_wo)
    return g * a + (1 - g) * b
```

```python
KNAME = "gated_mix__linear_kernel_hedgehog__sliding_local_dilated__prompt"

class Asm:
    def __init__(self):
        self.lines = []
        self.lbl = 0
    def __call__(self, s):
        self.lines.append("    " + s)
    def label(self, s):
        self.lines.append(s + ":")
    def comment(self, s):
        self.lines.append("    ; " + s)
    def raw(self, s):
        self.lines.append(s)
    def newlabel(self, p="L"):
        self.lbl += 1
        return f"{p}_{self.lbl}"
    def text(self):
        return "\n".join(self.lines) + "\n"

def v(n, w=1):
    return f"v{n}" if w == 1 else f"v[{n}:{n+w-1}]"
def s(n, w=1):
    return f"s{n}" if w == 1 else f"s[{n}:{n+w-1}]"

WS_PHIQ = 0
WS_OB   = 0x500000
WS_PART = 0x800000
WS_KVB  = 0xC00000
WS_G    = 0xD00000
WS_DBG  = 0x1000000
WS_SIZE = 0x2000000

def srd(a, dst, base_s, nbytes):
    a(f"s_mov_b32 s{dst}, s{base_s}")
    a(f"s_and_b32 s{dst+1}, s{base_s+1}, 0xffff")
    a(f"s_mov_b32 s{dst+2}, {nbytes}")
    a(f"s_mov_b32 s{dst+3}, 0x00020000")

def kernel_header(a, name):
    a.raw(f".globl {name}")
    a.raw(".p2align 8")
    a.raw(f".type {name},@function")
    a.label(name)

def kernel_desc(a, name, vgpr, sgpr, accum=None):
    if accum is None:
        accum = (vgpr + 3) // 4 * 4
    a.raw(f".amdhsa_kernel {name}")
    a.raw(f"  .amdhsa_next_free_vgpr {vgpr}")
    a.raw(f"  .amdhsa_next_free_sgpr {sgpr}")
    a.raw(f"  .amdhsa_accum_offset {accum}")
    a.raw("  .amdhsa_group_segment_fixed_size 0")
    a.raw("  .amdhsa_kernarg_size 88")
    a.raw("  .amdhsa_user_sgpr_count 2")
    a.raw("  .amdhsa_user_sgpr_kernarg_segment_ptr 1")
    a.raw("  .amdhsa_system_sgpr_workgroup_id_x 1")
    a.raw(".end_amdhsa_kernel")
```

```python
from common import *

V_LANE = 1
V_T0 = 2
V_B0 = 10
V_B2 = 11
V_XOFF = 12
V_GRP = 15
V_DMA = 16
V_WR = 24
V_X = 48
V_ACC = 96
V_HACC = 216
V_HB = 228
V_E = 234

S_X = 4; S_W = 8; S_WS = 12; S_AUX = 16
S_I = 20; S_J = 21; S_BR = 22; S_WAVE = 23
S_T = 24
S_SOFF = 32
S_L = 33; S_NL = 34
S_PTR = 36
S_MASK = 48
S_M2 = 64

LDS_WPHI = 98304
LDS_ZERO = 101504
K1_LDS = 114688

D = 5
RING = 6

def xreg(buf, rt, frag):
    return V_X + ((buf * 3 + rt) * 2 + frag) * 4
def acc(rt, T):
    return V_ACC + (rt * 15 + T) * 4

def nop(a, n):
    while n > 0:
        k = min(n, 16)
        a(f"s_nop {k-1}")
        n -= k

def gen_prologue(a):
    a("s_cmp_ge_u32 s2, 256")
    a("s_cbranch_scc1 K1_done")
    a(f"s_load_dwordx4 s[{S_PTR}:{S_PTR+3}], s[0:1], 0")
    a(f"s_load_dwordx2 s[{S_PTR+4}:{S_PTR+5}], s[0:1], 16")
    a(f"s_load_dwordx2 s[{S_PTR+6}:{S_PTR+7}], s[0:1], 40")
    a(f"s_load_dwordx2 s[{S_PTR+8}:{S_PTR+9}], s[0:1], 56")
    a(f"s_load_dwordx2 s[{S_PTR+10}:{S_PTR+11}], s[0:1], 80")
    a(f"s_and_b32 s{S_T}, s2, 7")
    a(f"s_lshr_b32 s{S_T+1}, s2, 3")
    a(f"s_and_b32 s{S_I}, s{S_T}, 1")
    a(f"s_lshl_b32 s{S_I}, s{S_I}, 3")
    a(f"s_and_b32 s{S_T+2}, s{S_T+1}, 7")
    a(f"s_add_u32 s{S_I}, s{S_I}, s{S_T+2}")
    a(f"s_lshr_b32 s{S_J}, s{S_T}, 1")
    a(f"s_lshl_b32 s{S_J}, s{S_J}, 1")
    a(f"s_lshr_b32 s{S_T+2}, s{S_T+1}, 3")
    a(f"s_and_b32 s{S_T+2}, s{S_T+2}, 1")
    a(f"s_add_u32 s{S_J}, s{S_J}, s{S_T+2}")
    a(f"s_lshr_b32 s{S_BR}, s{S_T+1}, 4")
    a(f"v_lshrrev_b32 v{V_T0}, 6, v0")
    a(f"v_and_b32 v{V_LANE}, 63, v0")
    a(f"v_readfirstlane_b32 s{S_WAVE}, v{V_T0}")
    a(f"v_lshrrev_b32 v{V_GRP}, 4, v{V_LANE}")
    a(f"s_mov_b32 s{S_L}, 0x3fb8aa3b")
    a(f"s_mov_b32 s{S_NL}, 0xbfb8aa3b")
    a("s_waitcnt lgkmcnt(0)")
    srd(a, S_X, S_PTR, 2048 * 1280)
    srd(a, S_WS, S_PTR + 10, WS_SIZE)
    a(f"s_cmp_eq_u32 s{S_BR}, 0")
    a(f"s_cselect_b32 s{S_T}, s{S_PTR+2}, s{S_PTR+6}")
    a(f"s_cselect_b32 s{S_T+1}, s{S_PTR+3}, s{S_PTR+7}")
    srd(a, S_W, S_T, 640 * 3840)
    a(f"s_cmp_eq_u32 s{S_BR}, 0")
    a(f"s_cselect_b32 s{S_T}, s{S_PTR+4}, s{S_PTR+8}")
    a(f"s_cselect_b32 s{S_T+1}, s{S_PTR+5}, s{S_PTR+9}")
    a(f"s_mov_b32 s{S_T+3}, 1280")
    a(f"s_cselect_b32 s{S_T+2}, 25600, s{S_T+3}")
    a(f"s_mov_b32 s{S_AUX}, s{S_T}")
    a(f"s_and_b32 s{S_AUX+1}, s{S_T+1}, 0xffff")
    a(f"s_mov_b32 s{S_AUX+2}, s{S_T+2}")
    a(f"s_mov_b32 s{S_AUX+3}, 0x00020000")
    t = V_T0
    a(f"s_lshl_b32 s{S_T}, s{S_WAVE}, 9")
    a(f"s_mul_i32 s{S_T+1}, s{S_J}, 160")
    a(f"s_mov_b32 s{S_T+2}, 2185")
    for n in range(8):
        d = V_DMA + n
        a(f"v_add_u32 v{t}, s{S_T}, v{V_LANE}")
        if n:
            a(f"v_add_u32 v{t}, {n*64}, v{t}")
        a(f"v_mul_u32_u24 v{t+1}, s{S_T+2}, v{t}")
        a(f"v_lshrrev_b32 v{t+1}, 16, v{t+1}")
        a(f"v_mul_u32_u24 v{t+2}, 30, v{t+1}")
        a(f"v_sub_u32 v{t+2}, v{t}, v{t+2}")
        a(f"v_lshrrev_b32 v{t+3}, 4, v{t+1}")
        a(f"v_bfe_u32 v{t+4}, v{t+1}, 2, 2")
        a(f"v_and_b32 v{t+5}, 3, v{t+1}")
        a(f"v_lshl_add_u32 v{t+5}, v{t+3}, 2, v{t+5}")
        a(f"v_lshl_add_u32 v{t+5}, v{t+4}, 4, v{t+5}")
        a(f"v_mul_u32_u24 v{t+5}, 3840, v{t+5}")
        a(f"v_mul_u32_u24 v{t+3}, 26, v{t+2}")
        a(f"v_lshrrev_b32 v{t+3}, 8, v{t+3}")
        a(f"v_mul_u32_u24 v{t+4}, 10, v{t+3}")
        a(f"v_sub_u32 v{t+4}, v{t+2}, v{t+4}")
        a(f"v_mul_u32_u24 v{t+3}, 1280, v{t+3}")
        a(f"v_add_u32 v{t+5}, v{t+5}, v{t+3}")
        a(f"v_lshl_add_u32 v{t+5}, v{t+4}, 4, v{t+5}")
        a(f"v_add_u32 v{d}, s{S_T+1}, v{t+5}")
        a(f"v_cmp_le_u32 vcc, 1920, v{t}")
        a(f"v_mov_b32 v{t+6}, 0x7ff00000")
        a("s_nop 0")
        a(f"v_cndmask_b32 v{d}, v{d}, v{t+6}, vcc")
    a(f"s_lshl_b32 s{S_T}, s{S_I}, 7")
    a(f"s_lshl_b32 s{S_T+1}, s{S_WAVE}, 5")
    a(f"s_add_u32 s{S_T+1}, s{S_T+1}, s{S_T}")
    a(f"s_sub_u32 s{S_T+2}, s{S_T}, 16")
    a(f"s_mov_b32 s{S_T+3}, 1280")
    a(f"v_and_b32 v{t}, 15, v{V_LANE}")
    a(f"v_lshlrev_b32 v{t+1}, 5, v{V_GRP}")
    for rt in range(3):
        if rt < 2:
            a(f"v_add_u32 v{t+2}, s{S_T+1}, v{t}")
            if rt:
                a(f"v_add_u32 v{t+2}, 16, v{t+2}")
        else:
            a(f"v_add_u32 v{t+2}, s{S_T+2}, v{t}")
        a(f"v_mul_lo_u32 v{t+2}, v{t+2}, s{S_T+3}")
        a(f"v_add_u32 v{V_XOFF+rt}, v{t+2}, v{t+1}")
    a(f"v_lshrrev_b32 v{t}, 2, v{V_LANE}")
    a(f"v_mul_u32_u24 v{t}, 480, v{t}")
    a(f"v_and_b32 v{t+1}, 3, v{V_LANE}")
    a(f"v_mul_u32_u24 v{t+1}, 40, v{t+1}")
    a(f"v_add_u32 v{V_B0}, v{t}, v{t+1}")
    a(f"v_add_u32 v{V_B2}, 0x10000, v{V_B0}")
    for h in range(3):
        a(f"s_add_u32 s{S_T}, s{S_WAVE}, {5+4*h}")
        a(f"s_add_u32 s{S_T+1}, s{S_WAVE}, 5")
        a(f"s_cmp_gt_u32 s{S_T}, 14")
        a(f"s_cselect_b32 s{S_T}, s{S_T+1}, s{S_T}")
        a(f"s_cmp_ge_u32 s{S_T}, 10")
        a(f"s_mov_b32 s{S_T+2}, 120")
        a(f"s_cselect_b32 s{S_T+1}, 240, s{S_T+2}")
        a(f"s_lshl_b32 s{S_T}, s{S_T}, 3")
        a(f"s_add_u32 s{S_T}, s{S_T}, s{S_T+1}")
        a(f"v_add_u32 v{V_HB+h}, s{S_T}, v{V_B0}")
        a(f"v_add_u32 v{V_HB+3+h}, s{S_T}, v{V_B2}")

def dma_stage(a, c, n):
    b = c % 3
    a(f"s_lshl_b32 s{S_T}, s{S_WAVE}, 13")
    a(f"s_add_u32 m0, s{S_T}, {b*32768 + n*1024}")
    a(f"s_mov_b32 s{S_SOFF}, {c*64*3840}")
    a(f"buffer_load_dwordx4 v{V_DMA+n}, s[{S_W}:{S_W+3}], s{S_SOFF} offen lds")

def x_load(a, c, rt, frag):
    a(f"buffer_load_dwordx4 {v(xreg(c%2, rt, frag),4)}, v{V_XOFF+rt}, s[{S_X}:{S_X+3}], 0 offen offset:{c*128+frag*16}")

def gen_mainloop(a, halo):
    nrt = 3 if halo else 2
    nx = nrt * 2
    def kstep_items():
        it = []
        for T in range(15):
            it.append(("m", T))
            if halo and T in (4, 9, 14):
                it.append(("h", T // 5))
        return it
    items = []
    for c in range(10):
        for m in range(2):
            for kind, idx in kstep_items():
                items.append((c, m, kind, idx))
    per_chunk = len(items) // 10
    half = per_chunk // 2
    def issue_reads(N):
        c, m, kind, idx = items[N]
        b = c % 3
        slot = V_WR + (N % RING) * 4
        for qq in range(2):
            rowoff = (2 * m + qq) * 16 * 480
            if kind == "m":
                T = idx
                imm = rowoff + (T // 5) * 160 + (T % 5) * 8
                base = V_B0 if b < 2 else V_B2
            else:
                imm = rowoff
                base = V_HB + idx if b < 2 else V_HB + 3 + idx
            if b < 2:
                imm += b * 32768
            a(f"ds_read_b64_tr_b16 {v(slot+2*qq,2)}, v{base} offset:{imm}")
    for n in range(8):
        dma_stage(a, 0, n)
    for rt in range(nrt):
        for f in range(2):
            x_load(a, 0, rt, f)
    for n in range(8):
        dma_stage(a, 1, n)
    for r in range(V_ACC, V_ACC + 132):
        a(f"v_mov_b32 v{r}, 0")
    a("s_waitcnt vmcnt(8)")
    a("s_barrier")
    for N in range(D):
        issue_reads(N)
    total = len(items)
    for N in range(total):
        c, m, kind, idx = items[N]
        n = N - c * per_chunk
        if n == 0:
            a.comment(f"---- chunk {c}")
        if n == half:
            if c + 1 <= 9:
                a(f"s_waitcnt vmcnt({nx})")
                a("s_barrier")
        if N + D < total:
            issue_reads(N + D)
            a(f"s_waitcnt lgkmcnt({2*D})")
        else:
            a(f"s_waitcnt lgkmcnt({2*(total-1-N)})")
        slot = V_WR + (N % RING) * 4
        if kind == "m":
            for rt in range(2):
                a(f"v_mfma_f32_16x16x32_bf16 {v(acc(rt,idx),4)}, {v(slot,4)}, {v(xreg(c%2,rt,m),4)}, {v(acc(rt,idx),4)}")
        else:
            a(f"v_mfma_f32_16x16x32_bf16 {v(V_HACC+idx*4,4)}, {v(slot,4)}, {v(xreg(c%2,2,m),4)}, {v(V_HACC+idx*4,4)}")
        if n < half and c + 1 <= 9:
            if 1 <= n <= nx:
                k = n - 1
                x_load(a, c + 1, k // 2, k % 2)
        if n >= half and c + 2 <= 9:
            k = n - half
            if k % 2 == 0 and k // 2 < 8:
                dma_stage(a, c + 2, k // 2)
        if n == per_chunk - 1 and c + 1 <= 9:
            a(f"s_waitcnt vmcnt({8 if c + 2 <= 9 else 0})")

def softmax_dual(a, P, T, OUT, X4):
    for i in range(10):
        a(f"v_cvt_pk_bf16_f32 v{T+i}, v{P+2*i}, v{P+2*i+1}")
    for i in range(10):
        a(f"v_lshlrev_b32 v{P+2*i}, 16, v{T+i}")
        a(f"v_and_b32 v{P+2*i+1}, 0xffff0000, v{T+i}")
    mx, mn, nmx, pmn = X4, X4 + 1, X4 + 2, X4 + 3
    a(f"v_max3_f32 v{mx}, v{P}, v{P+1}, v{P+2}")
    a(f"v_min3_f32 v{mn}, v{P}, v{P+1}, v{P+2}")
    for i in range(3, 19, 2):
        a(f"v_max3_f32 v{mx}, v{mx}, v{P+i}, v{P+i+1}")
        a(f"v_min3_f32 v{mn}, v{mn}, v{P+i}, v{P+i+1}")
    a(f"v_max_f32 v{mx}, v{mx}, v{P+19}")
    a(f"v_min_f32 v{mn}, v{mn}, v{P+19}")
    a(f"v_mul_f32 v{nmx}, s{S_NL}, v{mx}")
    a(f"v_mul_f32 v{pmn}, s{S_L}, v{mn}")
    for i in range(20):
        a(f"v_fma_f32 v{T+i}, v{P+i}, s{S_L}, v{nmx}")
        a(f"v_fma_f32 v{P+i}, v{P+i}, s{S_NL}, v{pmn}")
    for i in range(20):
        a(f"v_exp_f32 v{T+i}, v{T+i}")
        a(f"v_exp_f32 v{P+i}, v{P+i}")
    a("s_nop 0")
    s1, s2 = mx, mn
    a(f"v_add_f32 v{s1}, v{T}, v{T+1}")
    a(f"v_add_f32 v{s2}, v{P}, v{P+1}")
    a(f"v_add_f32 v{nmx}, v{T+2}, v{T+3}")
    a(f"v_add_f32 v{pmn}, v{P+2}, v{P+3}")
    for i in range(4, 20, 2):
        a(f"v_add_f32 v{s1}, v{s1}, v{T+i}")
        a(f"v_add_f32 v{s2}, v{s2}, v{P+i}")
        a(f"v_add_f32 v{nmx}, v{nmx}, v{T+i+1}")
        a(f"v_add_f32 v{pmn}, v{pmn}, v{P+i+1}")
    a(f"v_add_f32 v{s1}, v{s1}, v{nmx}")
    a(f"v_add_f32 v{s2}, v{s2}, v{pmn}")
    a(f"v_rcp_f32 v{s1}, v{s1}")
    a(f"v_rcp_f32 v{s2}, v{s2}")
    a("s_nop 0")
    for i in range(20):
        a(f"v_mul_f32 v{T+i}, v{T+i}, v{s1}")
        a(f"v_mul_f32 v{P+i}, v{P+i}, v{s2}")
    for i in range(10):
        a(f"v_cvt_pk_bf16_f32 v{OUT+i}, v{T+2*i}, v{T+2*i+1}")
    for i in range(10):
        a(f"v_cvt_pk_bf16_f32 v{OUT+10+i}, v{P+2*i}, v{P+2*i+1}")

def gen_wphi_stage(a):
    t = V_T0
    a(f"v_lshlrev_b32 v{t}, 4, v0")
    a(f"s_mul_i32 s{S_T}, s{S_J}, 3200")
    a(f"v_cmp_gt_u32 vcc, 200, v0")
    a(f"s_and_saveexec_b64 s[{S_T+2}:{S_T+3}], vcc")
    a(f"buffer_load_dwordx4 {v(t+4,4)}, v{t}, s[{S_AUX}:{S_AUX+3}], s{S_T} offen")
    a("s_waitcnt vmcnt(0)")
    a(f"v_add_u32 v{t+1}, {LDS_WPHI}, v{t}")
    a(f"ds_write_b128 v{t+1}, {v(t+4,4)}")
    a(f"s_mov_b64 exec, s[{S_T+2}:{S_T+3}]")
    a(f"v_cmp_gt_u32 vcc, 64, v0")
    a(f"s_and_saveexec_b64 s[{S_T+2}:{S_T+3}], vcc")
    for r in range(4):
        a(f"v_mov_b32 v{t+4+r}, 0")
    a(f"v_add_u32 v{t+1}, {LDS_ZERO}, v{t}")
    a(f"ds_write_b128 v{t+1}, {v(t+4,4)}")
    a(f"s_mov_b64 exec, s[{S_T+2}:{S_T+3}]")
    a("s_waitcnt lgkmcnt(0)")

def gen_epilogue_A(a):
    t = V_T0
    a("s_barrier")
    WF = 24
    a(f"v_and_b32 v{t}, 3, v{V_LANE}")
    a(f"v_bfe_u32 v{t+1}, v{V_LANE}, 2, 2")
    a(f"v_mul_u32_u24 v{t+1}, 40, v{t+1}")
    a(f"v_mul_u32_u24 v{t+2}, 800, v{V_GRP}")
    a(f"v_add_u32 v{t+1}, v{t+1}, v{t+2}")
    a(f"v_add_u32 v{t+1}, {LDS_WPHI}, v{t+1}")
    a(f"v_mov_b32 v{t+2}, {LDS_ZERO}")
    a(f"v_cmp_eq_u32 vcc, v{t}, v{V_GRP}")
    a("s_nop 1")
    a(f"v_cndmask_b32 v{t+1}, v{t+2}, v{t+1}, vcc")
    for tt in range(5):
        for c in range(3):
            r = WF + (tt * 3 + c) * 4
            for qq in range(2):
                if c == 2 and qq == 1:
                    a(f"v_mov_b32 v{r+2}, 0")
                    a(f"v_mov_b32 v{r+3}, 0")
                else:
                    a(f"ds_read_b64_tr_b16 {v(r+2*qq,2)}, v{t+1} offset:{(8*c+4*qq)*40 + 8*tt}")
    QB = 84
    P = 216
    OUT = 236
    a(f"v_mov_b32 v{QB+10}, 0")
    a(f"v_mov_b32 v{QB+11}, 0")
    a(f"s_lshl_b32 s{S_T}, s{S_I}, 7")
    a(f"s_lshl_b32 s{S_T+1}, s{S_WAVE}, 5")
    a(f"s_add_u32 s{S_T}, s{S_T}, s{S_T+1}")
    a(f"s_mul_i32 s{S_T}, s{S_T}, 2560")
    a(f"s_mul_i32 s{S_T+1}, s{S_J}, 320")
    a(f"s_add_u32 s{S_T}, s{S_T}, s{S_T+1}")
    a(f"s_add_u32 s{S_T}, s{S_T}, {WS_PHIQ}")
    a(f"v_and_b32 v{t}, 15, v{V_LANE}")
    a(f"v_mul_u32_u24 v{t+2}, 2560, v{t}")
    a(f"v_mul_u32_u24 v{t+3}, 80, v{V_GRP}")
    a(f"v_add_u32 v{t+2}, v{t+2}, v{t+3}")
    a(f"v_add_u32 v{t+2}, s{S_T}, v{t+2}")
    a(f"s_mul_i32 s{S_T}, s{S_WAVE}, {32*80}")
    a(f"v_mul_u32_u24 v{t+3}, 80, v{t}")
    a(f"v_mul_u32_u24 v{t+4}, 10240, v{V_GRP}")
    a(f"v_add_u32 v{t+3}, v{t+3}, v{t+4}")
    a(f"v_add_u32 v{t+3}, s{S_T}, v{t+3}")
    a(f"s_mul_i32 s{S_T}, s{S_WAVE}, {32*48}")
    a(f"v_mul_u32_u24 v{t+4}, 48, v{t}")
    a(f"v_mul_u32_u24 v{t+5}, 6144, v{V_GRP}")
    a(f"v_add_u32 v{t+4}, v{t+4}, v{t+5}")
    a(f"v_add_u32 v{t+4}, s{S_T}, v{t+4}")
    a("s_waitcnt lgkmcnt(0)")
    for rt in range(2):
        for sec in range(2):
            base = acc(rt, sec * 5)
            for i in range(10):
                a(f"v_cvt_pk_bf16_f32 v{QB+i}, v{base+2*i}, v{base+2*i+1}")
            nop(a, 2)
            for tt in range(5):
                for c in range(3):
                    src = "0" if c == 0 else v(P + tt * 4, 4)
                    a(f"v_mfma_f32_16x16x32_bf16 {v(P+tt*4,4)}, {v(WF+(tt*3+c)*4,4)}, {v(QB+c*4,4)}, {src}")
            nop(a, 8)
            softmax_dual(a, P, base, OUT, QB)
            if sec == 0:
                for k in range(5):
                    a(f"buffer_store_dwordx4 {v(OUT+4*k,4)}, v{t+2}, s[{S_WS}:{S_WS+3}], 0 offen offset:{16*k}" if rt == 0 else
                      f"buffer_store_dwordx4 {v(OUT+4*k,4)}, v{t+7}, s[{S_WS}:{S_WS+3}], 0 offen offset:{16*k}")
                if rt == 0:
                    a(f"v_add_u32 v{t+7}, 40960, v{t+2}")
                nop(a, 2)
            else:
                for k in range(5):
                    a(f"ds_write_b128 v{t+3}, {v(OUT+4*k,4)} offset:{rt*1280 + 16*k}")
        base = acc(rt, 10)
        for i in range(10):
            a(f"v_cvt_pk_bf16_f32 v{P+i}, v{base+2*i}, v{base+2*i+1}")
        a(f"v_mov_b32 v{P+10}, 0x3f80")
        a(f"v_mov_b32 v{P+11}, 0")
        for k in range(3):
            a(f"ds_write_b128 v{t+4}, {v(P+4*k,4)} offset:{40960 + rt*768 + 16*k}")
    a("s_waitcnt lgkmcnt(0)")
    a("s_barrier")
    a(f"v_and_b32 v{t}, 3, v{V_LANE}")
    a(f"v_bfe_u32 v{t+1}, v{V_LANE}, 2, 2")
    a(f"v_lshl_add_u32 v{t+1}, v{V_GRP}, 3, v{t+1}")
    a(f"v_mul_u32_u24 v{t+2}, 80, v{t+1}")
    a(f"v_lshl_add_u32 v{t+2}, v{t}, 3, v{t+2}")
    a(f"s_mul_i32 s{S_T}, s{S_WAVE}, 10240")
    a(f"v_add_u32 v{t+2}, s{S_T}, v{t+2}")
    a(f"v_mul_u32_u24 v{t+3}, 48, v{t+1}")
    a(f"v_lshl_add_u32 v{t+3}, v{t}, 3, v{t+3}")
    a(f"s_mul_i32 s{S_T}, s{S_WAVE}, 6144")
    a(f"v_add_u32 v{t+3}, s{S_T}, v{t+3}")
    AF = 24
    BF = 96
    KV = 128
    for ks in range(4):
        for tf in range(3):
            for qq in range(2):
                a(f"ds_read_b64_tr_b16 {v(AF+(ks*3+tf)*4+2*qq,2)}, v{t+2} offset:{(32*ks+4*qq)*80 + 32*tf}")
        for td in range(2):
            for qq in range(2):
                a(f"ds_read_b64_tr_b16 {v(BF+(ks*2+td)*4+2*qq,2)}, v{t+3} offset:{40960 + (32*ks+4*qq)*48 + 32*td}")
    a("s_waitcnt lgkmcnt(0)")
    for ks in range(4):
        for tf in range(3):
            for td in range(2):
                d = KV + (tf * 2 + td) * 4
                src = "0" if ks == 0 else v(d, 4)
                a(f"v_mfma_f32_16x16x32_bf16 {v(d,4)}, {v(AF+(ks*3+tf)*4,4)}, {v(BF+(ks*2+td)*4,4)}, {src}")
    a(f"s_lshl_b32 s{S_T}, s{S_I}, 5")
    a(f"s_lshl_b32 s{S_T+1}, s{S_J}, 2")
    a(f"s_add_u32 s{S_T}, s{S_T}, s{S_T+1}")
    a(f"s_add_u32 s{S_T}, s{S_T}, s{S_WAVE}")
    a(f"s_mul_i32 s{S_T}, s{S_T}, 6144")
    a(f"s_add_u32 s{S_T}, s{S_T}, {WS_PART}")
    a(f"v_and_b32 v{t}, 15, v{V_LANE}")
    a(f"v_mul_u32_u24 v{t}, 192, v{t}")
    a(f"v_lshl_add_u32 v{t}, v{V_GRP}, 4, v{t}")
    a(f"v_add_u32 v{t}, s{S_T}, v{t}")
    nop(a, 8)
    for tf in range(3):
        for td in range(2):
            d = KV + (tf * 2 + td) * 4
            a(f"buffer_store_dwordx4 {v(d,4)}, v{t}, s[{S_WS}:{S_WS+3}], 0 offen offset:{td*16*192 + tf*64}")

QROW = 272
LQ = 0
LK = 128 * QROW
LV = LK + 144 * QROW

def gen_epilogue_B(a):
    t = V_T0
    a("s_barrier")
    a(f"v_and_b32 v{t}, 15, v{V_LANE}")
    a(f"s_mul_i32 s{S_T}, s{S_WAVE}, {32*QROW}")
    a(f"v_mul_u32_u24 v{t+1}, {QROW}, v{t}")
    a(f"v_lshl_add_u32 v{t+1}, v{V_GRP}, 6, v{t+1}")
    a(f"v_add_u32 v{t+2}, s{S_T}, v{t+1}")
    PB = 24
    for i in range(10, 16):
        a(f"v_mov_b32 v{PB+i}, 0")
    for rt in range(2):
        for sec in range(3):
            base = acc(rt, sec * 5)
            for i in range(10):
                a(f"v_cvt_pk_bf16_f32 v{PB+i}, v{base+2*i}, v{base+2*i+1}")
            off = [LQ, LK + 16 * QROW, LV + 16 * QROW][sec] + rt * 16 * QROW
            ra = t + 2
            if off > 65535 - 64:
                a(f"v_add_u32 v{t+3}, {off}, v{t+2}")
                ra = t + 3; off = 0
            if sec < 2:
                for k in range(4):
                    a(f"ds_write_b128 v{ra}, {v(PB+4*k,4)} offset:{off+16*k}")
            else:
                for k in range(2):
                    a(f"ds_write_b128 v{ra}, {v(PB+4*k,4)} offset:{off+16*k}")
                a(f"ds_write_b64 v{ra}, {v(PB+8,2)} offset:{off+32}")
            nop(a, 2)
    for k in range(3):
        a(f"ds_write_b64 v{t+1}, {v(PB+10,2)} offset:{LK + 40 + 8*k}")
    for h in range(3):
        a(f"s_add_u32 s{S_T}, s{S_WAVE}, {5+4*h}")
        a(f"s_add_u32 s{S_T+1}, s{S_WAVE}, 5")
        a(f"s_cmp_gt_u32 s{S_T}, 14")
        a(f"s_cselect_b32 s{S_T}, s{S_T+1}, s{S_T}")
        a(f"s_cmp_ge_u32 s{S_T}, 10")
        a(f"s_mov_b32 s{S_T+2}, {LK-40}")
        a(f"s_cselect_b32 s{S_T+1}, {LV-80}, s{S_T+2}")
        a(f"s_lshl_b32 s{S_T}, s{S_T}, 3")
        a(f"s_add_u32 s{S_T}, s{S_T}, s{S_T+1}")
        a(f"v_add_u32 v{t+3}, s{S_T}, v{t+1}")
        a(f"v_cvt_pk_bf16_f32 v{PB}, v{V_HACC+4*h}, v{V_HACC+4*h+1}")
        a(f"v_cvt_pk_bf16_f32 v{PB+1}, v{V_HACC+4*h+2}, v{V_HACC+4*h+3}")
        a(f"ds_write_b64 v{t+3}, {v(PB,2)}")
        nop(a, 2)
    a(f"v_and_b32 v{t}, 15, v{V_LANE}")
    a(f"v_lshlrev_b32 v{t+3}, 2, v{V_GRP}")
    a(f"v_sub_u32 v{t+3}, v{t}, v{t+3}")
    for r in range(4):
        a(f"v_sub_u32 v{t+4}, {r-2}, v{t+3}")
        a(f"v_and_b32 v{t+4}, 0x80000001, v{t+4}")
        a(f"v_cmp_eq_u32 s[{S_MASK+2*r}:{S_MASK+2*r+1}], 0, v{t+4}")
        a(f"v_subrev_u32 v{t+4}, {r}, v{t+3}")
        a(f"v_and_b32 v{t+4}, 0x80000001, v{t+4}")
        a(f"v_cmp_eq_u32 s[{S_MASK+8+2*r}:{S_MASK+8+2*r+1}], 0, v{t+4}")
    a(f"s_or_b32 s{S_T}, s{S_I}, s{S_WAVE}")
    a(f"s_cmp_eq_u32 s{S_T}, 0")
    for r in range(4):
        a(f"s_cselect_b64 s[{S_M2+2*r}:{S_M2+2*r+1}], 0, s[{S_MASK+2*r}:{S_MASK+2*r+1}]")
    a(f"v_mul_u32_u24 v{t+1}, {QROW}, v{t}")
    a(f"v_lshl_add_u32 v{t+1}, v{V_GRP}, 4, v{t+1}")
    a(f"s_mul_i32 s{S_T}, s{S_WAVE}, {32*QROW}")
    a(f"v_add_u32 v{t+1}, s{S_T}, v{t+1}")
    a(f"v_add_u32 v{t+2}, {LK}, v{t+1}")
    a(f"v_lshrrev_b32 v{t+3}, 2, v{V_LANE}")
    a(f"v_mul_u32_u24 v{t+3}, {QROW}, v{t+3}")
    a(f"v_and_b32 v{t+4}, 3, v{V_LANE}")
    a(f"v_lshl_add_u32 v{t+3}, v{t+4}, 3, v{t+3}")
    a(f"v_add_u32 v{t+3}, s{S_T}, v{t+3}")
    a(f"v_add_u32 v{t+3}, {LV}, v{t+3}")
    a(f"s_lshl_b32 s{S_T}, s{S_I}, 7")
    a(f"s_lshl_b32 s{S_T+1}, s{S_WAVE}, 5")
    a(f"s_add_u32 s{S_T}, s{S_T}, s{S_T+1}")
    a(f"s_mul_i32 s{S_T}, s{S_T}, 1280")
    a(f"s_mul_i32 s{S_T+1}, s{S_J}, 160")
    a(f"s_add_u32 s{S_T}, s{S_T}, s{S_T+1}")
    a(f"s_add_u32 s{S_T}, s{S_T}, {WS_OB}")
    a(f"v_mul_u32_u24 v{t+4}, 1280, v{t}")
    a(f"v_lshl_add_u32 v{t+4}, v{V_GRP}, 3, v{t+4}")
    a(f"v_add_u32 v{t+4}, s{S_T}, v{t+4}")
    a(f"v_add_u32 v{t+5}, {16*1280}, v{t+4}")
    a(f"s_mov_b32 s{S_T+4}, 0x3e64f92e")
    a(f"s_mov_b32 s{S_T+5}, 0xff000000")
    a("s_waitcnt lgkmcnt(0)")
    a("s_barrier")
    for rt in range(2):
        for h in range(4):
            R = 32 + (rt * 4 + h) * 28
            QF, KA, KB_, VF = R, R + 4, R + 8, R + 12
            SA, SB = R + 20, R + 24
            a(f"ds_read_b128 {v(QF,4)}, v{t+1} offset:{LQ + rt*16*QROW + h*64}")
            a(f"ds_read_b128 {v(KA,4)}, v{t+2} offset:{rt*16*QROW + h*64}")
            a(f"ds_read_b128 {v(KB_,4)}, v{t+2} offset:{(rt*16+16)*QROW + h*64}")
            for td in range(2):
                a(f"ds_read_b64_tr_b16 {v(VF+4*td,2)}, v{t+3} offset:{rt*16*QROW + h*64 + 32*td}")
                a(f"ds_read_b64_tr_b16 {v(VF+4*td+2,2)}, v{t+3} offset:{(rt*16+16)*QROW + h*64 + 32*td}")
    a("s_waitcnt lgkmcnt(0)")
    for rt in range(2):
        for h in range(4):
            R = 32 + (rt * 4 + h) * 28
            QF, KA, KB_, VF = R, R + 4, R + 8, R + 12
            SA, SB = R + 20, R + 24
            a(f"v_mfma_f32_16x16x32_bf16 {v(SA,4)}, {v(KA,4)}, {v(QF,4)}, 0")
            a(f"v_mfma_f32_16x16x32_bf16 {v(SB,4)}, {v(KB_,4)}, {v(QF,4)}, 0")
    nop(a, 8)
    TT = 16
    for rt in range(2):
        for h in range(4):
            R = 32 + (rt * 4 + h) * 28
            QF, KA, KB_, VF = R, R + 4, R + 8, R + 12
            S = R + 20
            T8 = TT
            for i in range(4):
                a(f"v_cvt_pk_bf16_f32 v{T8+i}, v{S+2*i}, v{S+2*i+1}")
            for i in range(4):
                a(f"v_lshlrev_b32 v{S+2*i}, 16, v{T8+i}")
                a(f"v_and_b32 v{S+2*i+1}, 0xffff0000, v{T8+i}")
            for i in range(8):
                a(f"v_mul_f32 v{S+i}, s{S_T+4}, v{S+i}")
            for i in range(4):
                a(f"v_cvt_pk_bf16_f32 v{T8+i}, v{S+2*i}, v{S+2*i+1}")
            for i in range(4):
                a(f"v_lshlrev_b32 v{S+2*i}, 16, v{T8+i}")
                a(f"v_and_b32 v{S+2*i+1}, 0xffff0000, v{T8+i}")
            a(f"v_mov_b32 v{T8+4}, s{S_T+5}")
            for i in range(8):
                mk = (S_M2 + 2*i if rt == 0 else S_MASK + 2*i) if i < 4 else S_MASK + 2*i
                a(f"v_cndmask_b32 v{S+i}, v{T8+4}, v{S+i}, s[{mk}:{mk+1}]")
            m = T8 + 5
            a(f"v_max3_f32 v{m}, v{S}, v{S+1}, v{S+2}")
            a(f"v_max3_f32 v{m}, v{m}, v{S+3}, v{S+4}")
            a(f"v_max3_f32 v{m}, v{m}, v{S+5}, v{S+6}")
            a(f"v_max_f32 v{m}, v{m}, v{S+7}")
            a(f"v_mov_b32 v{m+1}, v{m}")
            nop(a, 2)
            a(f"v_permlane16_swap_b32 v{m}, v{m+1}")
            nop(a, 2)
            a(f"v_max_f32 v{m}, v{m}, v{m+1}")
            a(f"v_mov_b32 v{m+1}, v{m}")
            nop(a, 2)
            a(f"v_permlane32_swap_b32 v{m}, v{m+1}")
            nop(a, 2)
            a(f"v_max_f32 v{m}, v{m}, v{m+1}")
            a(f"v_mul_f32 v{m}, s{S_NL}, v{m}")
            for i in range(8):
                a(f"v_fma_f32 v{S+i}, v{S+i}, s{S_L}, v{m}")
            for i in range(8):
                a(f"v_exp_f32 v{S+i}, v{S+i}")
            a("s_nop 0")
            sm = T8 + 5
            a(f"v_add_f32 v{sm}, v{S}, v{S+1}")
            a(f"v_add_f32 v{sm+1}, v{S+2}, v{S+3}")
            a(f"v_add_f32 v{sm}, v{sm}, v{S+4}")
            a(f"v_add_f32 v{sm+1}, v{sm+1}, v{S+5}")
            a(f"v_add_f32 v{sm}, v{sm}, v{S+6}")
            a(f"v_add_f32 v{sm+1}, v{sm+1}, v{S+7}")
            a(f"v_add_f32 v{sm}, v{sm}, v{sm+1}")
            a(f"v_mov_b32 v{sm+1}, v{sm}")
            nop(a, 2)
            a(f"v_permlane16_swap_b32 v{sm}, v{sm+1}")
            nop(a, 2)
            a(f"v_add_f32 v{sm}, v{sm}, v{sm+1}")
            a(f"v_mov_b32 v{sm+1}, v{sm}")
            nop(a, 2)
            a(f"v_permlane32_swap_b32 v{sm}, v{sm+1}")
            nop(a, 2)
            a(f"v_add_f32 v{sm}, v{sm}, v{sm+1}")
            a(f"v_rcp_f32 v{sm}, v{sm}")
            a("s_nop 0")
            for i in range(8):
                a(f"v_mul_f32 v{S+i}, v{S+i}, v{sm}")
            for i in range(4):
                a(f"v_cvt_pk_bf16_f32 v{QF+i}, v{S+2*i}, v{S+2*i+1}")
            nop(a, 2)
            for td in range(2):
                a(f"v_mfma_f32_16x16x32_bf16 {v(S+4*td,4)}, {v(VF+4*td,4)}, {v(QF,4)}, 0")
    nop(a, 8)
    for rt in range(2):
        for h in range(4):
            R = 32 + (rt * 4 + h) * 28
            S = R + 20
            for i in range(4):
                a(f"v_cvt_pk_bf16_f32 v{R+i}, v{S+2*i}, v{S+2*i+1}")
            a(f"buffer_store_dwordx2 {v(R,2)}, v{t+4+rt}, s[{S_WS}:{S_WS+3}], 0 offen offset:{h*40}")
    a("s_mov_b64 exec, 0xffff")
    for rt in range(2):
        for h in range(4):
            R = 32 + (rt * 4 + h) * 28
            a(f"buffer_store_dwordx2 {v(R+2,2)}, v{t+4+rt}, s[{S_WS}:{S_WS+3}], 0 offen offset:{h*40+32}")
    a("s_mov_b64 exec, -1")
    a(f"s_lshl_b32 s{S_T}, s{S_I}, 7")
    a(f"s_lshl_b32 s{S_T+1}, s{S_J}, 4")
    a(f"s_add_u32 s{S_T}, s{S_T}, s{S_T+1}")
    a(f"s_lshl_b32 s{S_T+1}, s{S_WAVE}, 2")
    a(f"s_add_u32 s{S_T}, s{S_T}, s{S_T+1}")
    a(f"v_add_u32 v{t}, s{S_T}, v{V_GRP}")
    a(f"v_and_b32 v{t+1}, 15, v{V_LANE}")
    a(f"v_mul_u32_u24 v{t+1}, 80, v{t+1}")
    a(f"v_mul_u32_u24 v{t+2}, 1280, v{t}")
    a(f"v_add_u32 v{t+2}, v{t+2}, v{t+1}")
    GX, GW = 24, 44
    for k in range(5):
        a(f"buffer_load_dwordx4 {v(GX+4*k,4)}, v{t+2}, s[{S_X}:{S_X+3}], 0 offen offset:{16*k}")
        a(f"buffer_load_dwordx4 {v(GW+4*k,4)}, v{t+1}, s[{S_AUX}:{S_AUX+3}], 0 offen offset:{16*k}")
    a("s_waitcnt vmcnt(0)")
    G0 = 64
    a(f"v_mov_b32 v{G0}, 0")
    a(f"v_mov_b32 v{G0+1}, 0")
    for i in range(20):
        a(f"v_lshlrev_b32 v{G0+2}, 16, v{GX+i}")
        a(f"v_and_b32 v{G0+3}, 0xffff0000, v{GX+i}")
        a(f"v_lshlrev_b32 v{G0+4}, 16, v{GW+i}")
        a(f"v_and_b32 v{G0+5}, 0xffff0000, v{GW+i}")
        a(f"v_mul_f32 v{G0+2}, v{G0+2}, v{G0+4}")
        a(f"v_mul_f32 v{G0+3}, v{G0+3}, v{G0+5}")
        a(f"v_cvt_pk_bf16_f32 v{G0+2}, v{G0+2}, v{G0+3}")
        a(f"v_lshlrev_b32 v{G0+3}, 16, v{G0+2}")
        a(f"v_and_b32 v{G0+2}, 0xffff0000, v{G0+2}")
        a(f"v_add_f32 v{G0}, v{G0}, v{G0+3}")
        a(f"v_add_f32 v{G0+1}, v{G0+1}, v{G0+2}")
    a(f"v_add_f32 v{G0}, v{G0}, v{G0+1}")
    for x in (1, 2, 4, 8):
        a(f"ds_swizzle_b32 v{G0+1}, v{G0} offset:{(x << 10) | 0x1f}")
        a("s_waitcnt lgkmcnt(0)")
        a(f"v_add_f32 v{G0}, v{G0}, v{G0+1}")
    a(f"v_cvt_pk_bf16_f32 v{G0}, v{G0}, v{G0}")
    a(f"v_lshlrev_b32 v{G0}, 16, v{G0}")
    a(f"v_mul_f32 v{G0}, s{S_NL}, v{G0}")
    a(f"v_exp_f32 v{G0}, v{G0}")
    a("s_nop 0")
    a(f"v_add_f32 v{G0}, 1.0, v{G0}")
    a(f"v_rcp_f32 v{G0}, v{G0}")
    a("s_nop 0")
    a(f"v_cvt_pk_bf16_f32 v{G0}, v{G0}, v{G0}")
    a(f"v_lshlrev_b32 v{G0}, 16, v{G0}")
    a(f"v_lshlrev_b32 v{t}, 2, v{t}")
    a(f"v_add_u32 v{t}, {WS_G}, v{t}")
    a(f"v_and_b32 v{t+1}, 15, v{V_LANE}")
    a(f"v_cmp_eq_u32 vcc, 0, v{t+1}")
    a(f"s_and_saveexec_b64 s[{S_T+2}:{S_T+3}], vcc")
    a(f"buffer_store_dword v{G0}, v{t}, s[{S_WS}:{S_WS+3}], 0 offen")
    a(f"s_mov_b64 exec, s[{S_T+2}:{S_T+3}]")

def gen_dump(a):
    t = V_T0
    nop(a, 8)
    a(f"s_lshl_b32 s{S_T}, s{S_BR}, 11")
    a(f"s_lshl_b32 s{S_T+1}, s{S_I}, 7")
    a(f"s_add_u32 s{S_T}, s{S_T}, s{S_T+1}")
    a(f"s_lshl_b32 s{S_T+1}, s{S_WAVE}, 5")
    a(f"s_add_u32 s{S_T}, s{S_T}, s{S_T+1}")
    a(f"s_mul_i32 s{S_T}, s{S_T}, 7680")
    a(f"s_mul_i32 s{S_T+1}, s{S_J}, 320")
    a(f"s_add_u32 s{S_T}, s{S_T}, s{S_T+1}")
    a(f"s_add_u32 s{S_T}, s{S_T}, {WS_DBG}")
    a(f"v_and_b32 v{t}, 15, v{V_LANE}")
    a(f"v_mul_u32_u24 v{t}, 7680, v{t}")
    a(f"v_mul_u32_u24 v{t+1}, 80, v{V_GRP}")
    a(f"v_add_u32 v{t}, v{t}, v{t+1}")
    a(f"v_add_u32 v{t}, s{S_T}, v{t}")
    for rt in range(2):
        for sec in range(3):
            a(f"v_add_u32 v{t+1}, {rt*16*7680 + sec*2560}, v{t}")
            for tt in range(5):
                a(f"buffer_store_dwordx4 {v(acc(rt,sec*5+tt),4)}, v{t+1}, s[{S_WS}:{S_WS+3}], 0 offen offset:{16*tt}")

def gen_k1(a, dump=False):
    name = "k1_kernel"
    kernel_header(a, name)
    gen_prologue(a)
    a(f"s_cmp_eq_u32 s{S_BR}, 0")
    a("s_cbranch_scc0 K1_B")
    gen_wphi_stage(a)
    gen_mainloop(a, halo=False)
    if dump:
        gen_dump(a)
    gen_epilogue_A(a)
    a("s_endpgm")
    a.label("K1_B")
    gen_mainloop(a, halo=True)
    if dump:
        gen_dump(a)
    gen_epilogue_B(a)
    a.label("K1_done")
    a("s_endpgm")
    return name
```

```python
from common import *

def nop(a, n):
    while n > 0:
        k = min(n, 16)
        a(f"s_nop {k-1}")
        n -= k

class VM:
    def __init__(self, a):
        self.a = a; self.q = []
    def issue(self, tag):
        self.q.append(tag)
        assert len(self.q) <= 63, "too many outstanding"
    def wait(self, tag):
        idx = max(i for i, t in enumerate(self.q) if t == tag) if tag in self.q else -1
        if idx < 0:
            return
        n = len(self.q) - 1 - idx
        self.a(f"s_waitcnt vmcnt({n})")
        self.q = self.q[idx+1:]

def gen_kred(a):
    name = "kred_kernel"
    kernel_header(a, name)
    a("s_cmp_ge_u32 s2, 32")
    a("s_cbranch_scc1 KR_done")
    a("s_load_dwordx2 s[4:5], s[0:1], 80")
    a("s_waitcnt lgkmcnt(0)")
    srd(a, 8, 4, WS_SIZE)
    a("v_cmp_gt_u32 vcc, 210, v0")
    a("s_and_saveexec_b64 s[12:13], vcc")
    a("s_cbranch_execz KR_done")
    a("v_mul_u32_u24 v1, 6554, v0")
    a("v_lshrrev_b32 v1, 16, v1")
    a("v_mul_u32_u24 v2, 10, v1")
    a("v_sub_u32 v2, v0, v2")
    a("v_mul_u32_u24 v3, 192, v1")
    a("v_lshl_add_u32 v3, v2, 4, v3")
    a("s_mul_i32 s6, s2, 6144")
    a(f"s_add_u32 s6, s6, {WS_PART}")
    a("v_add_u32 v3, s6, v3")
    for rt in range(16):
        a(f"s_mov_b32 s7, {rt*32*6144}")
        a(f"buffer_load_dwordx4 {v(8+4*rt,4)}, v3, s[8:11], s7 offen")
    a("v_mul_u32_u24 v4, 80, v1")
    a("v_lshl_add_u32 v4, v2, 3, v4")
    a("s_mul_i32 s6, s2, 1680")
    a(f"s_add_u32 s6, s6, {WS_KVB}")
    a("v_add_u32 v4, s6, v4")
    a("s_waitcnt vmcnt(0)")
    for rt in range(1, 16):
        for k in range(4):
            a(f"v_add_f32 v{8+k}, v{8+k}, v{8+4*rt+k}")
    a("v_cvt_pk_bf16_f32 v8, v8, v9")
    a("v_cvt_pk_bf16_f32 v9, v10, v11")
    a("buffer_store_dwordx2 v[8:9], v4, s[8:11], 0 offen")
    a.label("KR_done")
    a("s_endpgm")
    return name

V_LANE = 1; V_T = 2; V_GRP = 10
V_KA0 = 11; V_KA1 = 12; V_WB0 = 13; V_WB1 = 14
V_PQ0 = 15; V_PQ1 = 16; V_OB0 = 17; V_OB1 = 18; V_OUT = 19; V_G = 20; V_XA = 21
V_DMA = 24
V_RING = 50
V_KF = 74
V_N = 106
V_OBF = 122
V_OT = 202
V_OF = 212
A_ACCA = 0; A_ACCB = 40; A_PQ = 80
S_WA = 4; S_WB = 8; S_WS = 12; S_OUT = 16; S_KV = 20
S_I = 24; S_JC = 25; S_WAVE = 26; S_RH = 27; S_KH = 28; S_T = 30; S_SOFF = 38; S_PTR = 40
LKV = 0
LBUF = [57344, 57344 + 53248]
K2_LDS = 163840
RING = 6; D = 5

def av(n, w=1):
    return f"a{n}" if w == 1 else f"a[{n}:{n+w-1}]"

def gen_k2(a):
    name = "k2_kernel"
    kernel_header(a, name)
    vm = VM(a)
    t = V_T
    a("s_cmp_ge_u32 s2, 256")
    a("s_cbranch_scc1 K2_done")
    a(f"s_load_dwordx2 s[{S_PTR}:{S_PTR+1}], s[0:1], 24")
    a(f"s_load_dwordx2 s[{S_PTR+2}:{S_PTR+3}], s[0:1], 48")
    a(f"s_load_dwordx2 s[{S_PTR+4}:{S_PTR+5}], s[0:1], 64")
    a(f"s_load_dwordx2 s[{S_PTR+6}:{S_PTR+7}], s[0:1], 80")
    a(f"s_and_b32 s{S_T}, s2, 7")
    a(f"s_lshr_b32 s{S_T+1}, s2, 3")
    a(f"s_lshl_b32 s{S_I}, s{S_T}, 2")
    a(f"s_and_b32 s{S_T+2}, s{S_T+1}, 3")
    a(f"s_add_u32 s{S_I}, s{S_I}, s{S_T+2}")
    a(f"s_lshr_b32 s{S_JC}, s{S_T+1}, 2")
    a(f"v_lshrrev_b32 v{t}, 6, v0")
    a(f"v_and_b32 v{V_LANE}, 63, v0")
    a(f"v_readfirstlane_b32 s{S_WAVE}, v{t}")
    a(f"v_lshrrev_b32 v{V_GRP}, 4, v{V_LANE}")
    a("s_nop 3")
    a(f"s_and_b32 s{S_RH}, s{S_WAVE}, 1")
    a(f"s_lshr_b32 s{S_KH}, s{S_WAVE}, 1")
    a("s_waitcnt lgkmcnt(0)")
    srd(a, S_WA, S_PTR, 640 * 1280)
    srd(a, S_WB, S_PTR + 2, 640 * 1280)
    srd(a, S_OUT, S_PTR + 4, 2048 * 1280)
    srd(a, S_WS, S_PTR + 6, WS_SIZE)
    srd(a, S_KV, S_PTR + 6, WS_KVB + 53760)
    a(f"v_lshlrev_b32 v{t}, 4, v{V_LANE}")
    a(f"s_lshl_b32 s{S_T}, s{S_WAVE}, 10")
    for n in range(14):
        a(f"s_add_u32 m0, s{S_T}, {n*4096}")
        a(f"s_add_u32 s{S_SOFF}, s{S_T}, {WS_KVB + n*4096}")
        a(f"buffer_load_dwordx4 v{t}, s[{S_KV}:{S_KV+3}], s{S_SOFF} offen lds")
        vm.issue("KV")
    a(f"s_lshl_b32 s{S_T}, s{S_I}, 6")
    a(f"s_lshl_b32 s{S_T+1}, s{S_RH}, 5")
    a(f"s_add_u32 s{S_T}, s{S_T}, s{S_T+1}")
    a(f"v_and_b32 v{t}, 15, v{V_LANE}")
    a(f"v_add_u32 v{t}, s{S_T}, v{t}")
    a(f"v_mul_u32_u24 v{t+1}, 2560, v{t}")
    a(f"v_lshl_add_u32 v{t+1}, v{V_GRP}, 4, v{t+1}")
    a(f"s_mul_i32 s{S_T+1}, s{S_KH}, 1280")
    a(f"s_add_u32 s{S_T+1}, s{S_T+1}, {WS_PHIQ}")
    a(f"v_add_u32 v{V_PQ0}, s{S_T+1}, v{t+1}")
    a(f"v_add_u32 v{V_PQ1}, {16*2560}, v{V_PQ0}")
    a(f"v_mul_u32_u24 v{t+1}, 1280, v{t}")
    a(f"v_lshl_add_u32 v{t+1}, v{V_GRP}, 4, v{t+1}")
    a(f"s_mul_i32 s{S_T+1}, s{S_KH}, 640")
    a(f"s_add_u32 s{S_T+1}, s{S_T+1}, {WS_OB}")
    a(f"v_add_u32 v{V_OB0}, s{S_T+1}, v{t+1}")
    a(f"v_add_u32 v{V_OB1}, {16*1280}, v{V_OB0}")
    a(f"s_lshl_b32 s{S_T+1}, s{S_KH}, 4")
    a(f"v_add_u32 v{t+2}, s{S_T+1}, v{t}")
    a(f"v_lshlrev_b32 v{t+3}, 2, v{t+2}")
    a(f"v_add_u32 v{t+3}, {WS_G}, v{t+3}")
    a(f"v_mul_u32_u24 v{V_OUT}, 1280, v{t+2}")
    a(f"v_lshl_add_u32 v{V_OUT}, v{V_GRP}, 3, v{V_OUT}")
    a(f"s_mul_i32 s{S_T+1}, s{S_JC}, 160")
    a(f"v_add_u32 v{V_OUT}, s{S_T+1}, v{V_OUT}")
    for j in range(8):
        for rt in range(2):
            for k in range(4):
                a(f"v_accvgpr_write_b32 a{A_PQ + ((j*2+rt)*2+1)*4 + k}, 0")
    for r in range(80):
        a(f"v_accvgpr_write_b32 a{r}, 0")
    def pq_loads(Hh):
        for j in range(8):
            for rt in range(2):
                base = V_PQ0 + rt
                a(f"buffer_load_dwordx4 {av(A_PQ+((j*2+rt)*2)*4,4)}, v{base}, s[{S_WS}:{S_WS+3}], 0 offen offset:{(8*Hh+j)*80}")
                vm.issue(f"PQ{j}")
            a("s_mov_b64 exec, 0xffff")
            for rt in range(2):
                base = V_PQ0 + rt
                a(f"buffer_load_dwordx4 {av(A_PQ+((j*2+rt)*2+1)*4,4)}, v{base}, s[{S_WS}:{S_WS+3}], 0 offen offset:{(8*Hh+j)*80+64}")
                vm.issue(f"PQ{j}")
            a("s_mov_b64 exec, -1")
    pq_loads(0)
    a(f"s_mul_i32 s{S_T}, s{S_WAVE}, {13*64}")
    a(f"s_mul_i32 s{S_T+1}, s{S_JC}, 160")
    a(f"s_mov_b32 s{S_T+2}, 6554")
    for n in range(13):
        a(f"v_add_u32 v{t}, s{S_T}, v{V_LANE}")
        if n:
            a(f"v_add_u32 v{t}, {n*64}, v{t}")
        a(f"v_mul_u32_u24 v{t+1}, s{S_T+2}, v{t}")
        a(f"v_lshrrev_b32 v{t+1}, 16, v{t+1}")
        a(f"v_mul_u32_u24 v{t+2}, 10, v{t+1}")
        a(f"v_sub_u32 v{t+2}, v{t}, v{t+2}")
        a(f"v_cmp_le_u32 vcc, 160, v{t+1}")
        a("s_nop 1")
        a(f"v_cndmask_b32 v{t+3}, 0, 1, vcc")
        a(f"v_mul_u32_u24 v{t+4}, 160, v{t+3}")
        a(f"v_sub_u32 v{t+1}, v{t+1}, v{t+4}")
        a(f"v_lshrrev_b32 v{t+4}, 5, v{t+1}")
        a(f"v_bfe_u32 v{t+5}, v{t+1}, 4, 1")
        a(f"v_bfe_u32 v{t+6}, v{t+1}, 2, 2")
        a(f"v_and_b32 v{t+7}, 3, v{t+1}")
        a(f"v_lshl_add_u32 v{t+1}, v{t+5}, 2, v{t+7}")
        a(f"v_lshl_add_u32 v{V_XA}, v{t+3}, 4, v{t+1}")
        a(f"v_mul_u32_u24 v{V_XA}, 20, v{V_XA}")
        a(f"v_mad_u32_u24 v{V_XA}, v{t+6}, 5, v{V_XA}")
        a(f"v_add_u32 v{V_XA}, v{V_XA}, v{t+4}")
        a(f"v_mul_u32_u24 v{V_XA}, 1280, v{V_XA}")
        a(f"v_lshl_add_u32 v{V_XA}, v{t+2}, 4, v{V_XA}")
        a(f"v_add_u32 v{V_DMA+n}, s{S_T+1}, v{V_XA}")
        a(f"v_lshl_add_u32 v{t+1}, v{t+6}, 3, v{t+1}")
        a(f"v_lshl_add_u32 v{t+1}, v{t+4}, 5, v{t+1}")
        a(f"v_mul_u32_u24 v{t+3}, 320, v{t+3}")
        a(f"v_add_u32 v{t+1}, v{t+1}, v{t+3}")
        a(f"v_mul_u32_u24 v{t+1}, 1280, v{t+1}")
        a(f"v_lshl_add_u32 v{t+1}, v{t+2}, 4, v{t+1}")
        a(f"v_add_u32 v{V_DMA+13+n}, s{S_T+1}, v{t+1}")
        a(f"v_cmp_le_u32 vcc, 3200, v{t}")
        a(f"v_mov_b32 v{t+1}, 0x7ff00000")
        a("s_nop 0")
        a(f"v_cndmask_b32 v{V_DMA+n}, v{V_DMA+n}, v{t+1}, vcc")
        a(f"v_cndmask_b32 v{V_DMA+13+n}, v{V_DMA+13+n}, v{t+1}, vcc")
    def stage(phase):
        buf = LBUF[phase % 2]
        isA = phase % 2 == 0
        ph = phase // 2
        sr = S_WA if isA else S_WB
        a(f"s_mul_i32 s{S_T}, s{S_WAVE}, {13*1024}")
        a(f"s_mov_b32 s{S_SOFF}, {ph*160*1280}")
        for n in range(13):
            a(f"s_add_u32 m0, s{S_T}, {buf + n*1024}")
            a("s_nop 0")
            a(f"buffer_load_dwordx4 v{V_DMA + (0 if isA else 13) + n}, s[{sr}:{sr+3}], s{S_SOFF} offen lds")
            vm.issue(f"P{phase}")
    stage(0)
    a(f"buffer_load_dword v{V_G}, v{t+3+0 if False else V_T+3}, s[{S_WS}:{S_WS+3}], 0 offen") if False else None
    a(f"s_lshl_b32 s{S_T}, s{S_I}, 6")
    a(f"s_lshl_b32 s{S_T+1}, s{S_RH}, 5")
    a(f"s_add_u32 s{S_T}, s{S_T}, s{S_T+1}")
    a(f"s_lshl_b32 s{S_T+1}, s{S_KH}, 4")
    a(f"s_add_u32 s{S_T}, s{S_T}, s{S_T+1}")
    a(f"v_and_b32 v{t}, 15, v{V_LANE}")
    a(f"v_add_u32 v{t}, s{S_T}, v{t}")
    a(f"v_lshlrev_b32 v{t}, 2, v{t}")
    a(f"v_add_u32 v{t}, {WS_G}, v{t}")
    a(f"buffer_load_dword v{V_G}, v{t}, s[{S_WS}:{S_WS+3}], 0 offen")
    vm.issue("G")
    a(f"v_and_b32 v{t}, 3, v{V_LANE}")
    a(f"v_bfe_u32 v{t+1}, v{V_LANE}, 2, 2")
    a(f"v_mad_u32_u24 v{t+2}, v{t+1}, 5, v{t}")
    a(f"v_mul_u32_u24 v{t+2}, 80, v{t+2}")
    a(f"v_lshl_add_u32 v{t+2}, v{V_GRP}, 4, v{t+2}")
    a(f"s_mul_i32 s{S_T}, s{S_KH}, {16*1680}")
    a(f"v_add_u32 v{V_KA0}, s{S_T}, v{t+2}")
    a(f"v_mad_u32_u24 v{t+2}, v{t+1}, 5, 4")
    a(f"v_mov_b32 v{t+3}, 20")
    a(f"v_cmp_eq_u32 vcc, 0, v{t}")
    a("s_nop 1")
    a(f"v_cndmask_b32 v{t+2}, v{t+3}, v{t+2}, vcc")
    a(f"v_mul_u32_u24 v{t+2}, 80, v{t+2}")
    a(f"v_lshl_add_u32 v{t+2}, v{V_GRP}, 4, v{t+2}")
    a(f"v_add_u32 v{V_KA1}, s{S_T}, v{t+2}")
    a(f"v_lshrrev_b32 v{t+2}, 2, v{V_LANE}")
    a(f"v_mul_u32_u24 v{t+2}, 160, v{t+2}")
    a(f"v_lshl_add_u32 v{t+2}, v{t}, 3, v{t+2}")
    a(f"s_mul_i32 s{S_T}, s{S_KH}, 25600")
    a(f"v_add_u32 v{t+2}, s{S_T}, v{t+2}")
    a(f"v_add_u32 v{V_WB0}, {LBUF[0]}, v{t+2}")
    a(f"v_add_u32 v{V_WB1}, {LBUF[1]}, v{t+2}")
    a(f"s_mov_b32 s{S_T+7}, 0x358637bd")

    def ob_loads(ph):
        for ks in range(5):
            for rt in range(2):
                a(f"buffer_load_dwordx4 {v(V_OBF+((ph*5+ks)*2+rt)*4,4)}, v{V_OB0+rt}, s[{S_WS}:{S_WS+3}], 0 offen offset:{320*ph+64*ks}")
                vm.issue(f"OB{ph}")

    def kf_reads(Hh, j):
        kb = V_KF + (j % 2) * 16
        for tl in range(2):
            for ks in range(2):
                a(f"ds_read_b128 {v(kb+(tl*2+ks)*4,4)}, v{V_KA0+tl} offset:{(8*Hh+j)*1680 + ks*64}")

    def o_A(Hh, hooks):
        kf_reads(Hh, 0)
        for j in range(8):
            if j + 1 < 8:
                kf_reads(Hh, j + 1)
                a("s_waitcnt lgkmcnt(4)")
            else:
                a("s_waitcnt lgkmcnt(0)")
            vm.wait(f"PQ{j}")
            kb = V_KF + (j % 2) * 16
            for rt in range(2):
                for tl in range(2):
                    d = V_N + (rt * 2 + tl) * 4
                    a(f"v_mfma_f32_16x16x32_bf16 {v(d,4)}, {v(kb+(tl*2)*4,4)}, {av(A_PQ+((j*2+rt)*2)*4,4)}, 0")
                    a(f"v_mfma_f32_16x16x32_bf16 {v(d,4)}, {v(kb+(tl*2+1)*4,4)}, {av(A_PQ+((j*2+rt)*2+1)*4,4)}, {v(d,4)}")
            if j in hooks:
                hooks[j]()
            nop(a, 8)
            for rt in range(2):
                n0 = V_N + rt * 8
                a(f"v_cvt_pk_bf16_f32 v{n0+6}, v{n0}, v{n0+1}")
                a(f"v_cvt_pk_bf16_f32 v{n0+7}, v{n0+2}, v{n0+3}")
                a(f"v_cvt_pk_bf16_f32 v{n0+5}, v{n0+4}, v{n0+5}")
                a(f"v_lshlrev_b32 v{n0}, 16, v{n0+6}")
                a(f"v_and_b32 v{n0+1}, 0xffff0000, v{n0+6}")
                a(f"v_lshlrev_b32 v{n0+2}, 16, v{n0+7}")
                a(f"v_and_b32 v{n0+3}, 0xffff0000, v{n0+7}")
                a(f"v_lshlrev_b32 v{n0+4}, 16, v{n0+5}")
                a(f"v_and_b32 v{n0+5}, 0xffff0000, v{n0+5}")
                a(f"v_add_f32 v{n0+5}, s{S_T+7}, v{n0+5}")
                a(f"v_cvt_pk_bf16_f32 v{n0+5}, v{n0+5}, v{n0+5}")
                a(f"v_lshlrev_b32 v{n0+5}, 16, v{n0+5}")
                a(f"v_rcp_f32 v{n0+5}, v{n0+5}")
                a("s_nop 0")
                for u in range(5):
                    if j % 2 == 0:
                        a(f"v_mul_f32 v{V_OT+rt*5+u}, v{n0+u}, v{n0+5}")
                    else:
                        a(f"v_mul_f32 v{n0+u}, v{n0+u}, v{n0+5}")
                if j % 2 == 1:
                    for u in range(5):
                        a(f"v_cvt_pk_bf16_f32 v{V_OF+(rt*5+u)*4 + j//2}, v{V_OT+rt*5+u}, v{n0+u}")

    def proj(phase, hooks):
        isA = phase % 2 == 0
        ph = phase // 2
        base = V_WB0 + (phase % 2)
        items = [(u, T) for u in range(5) for T in range(5)]
        def reads(N):
            u, T = items[N]
            slot = V_RING + (N % RING) * 4
            for qq in range(2):
                a(f"ds_read_b64_tr_b16 {v(slot+2*qq,2)}, v{base} offset:{(u*2+qq)*2560 + T*32}")
        for N in range(D):
            reads(N)
        for N in range(25):
            if N + D < 25:
                reads(N + D)
                a(f"s_waitcnt lgkmcnt({2*D})")
            else:
                a(f"s_waitcnt lgkmcnt({2*(24-N)})")
            u, T = items[N]
            slot = V_RING + (N % RING) * 4
            for rt in range(2):
                if isA:
                    acc = A_ACCA + (rt * 5 + T) * 4
                    b = v(V_OF + (rt * 5 + u) * 4, 4)
                else:
                    acc = A_ACCB + (rt * 5 + T) * 4
                    b = v(V_OBF + ((ph * 5 + u) * 2 + rt) * 4, 4)
                a(f"v_mfma_f32_16x16x32_bf16 {av(acc,4)}, {v(slot,4)}, {b}, {av(acc,4)}")
            if N in hooks:
                hooks[N]()

    vm.wait("KV")
    a("s_barrier")
    o_A(0, {1: lambda: ob_loads(0), 4: lambda: stage(1)})
    vm.wait("P0")
    a("s_barrier")
    nop(a, 2)
    proj(0, {2: lambda: pq_loads(1)})
    vm.wait("P1")
    a("s_barrier")
    stage(2)
    vm.wait("OB0")
    proj(1, {3: lambda: ob_loads(1)})
    a("s_barrier")
    o_A(1, {2: lambda: stage(3)})
    vm.wait("P2")
    a("s_barrier")
    nop(a, 2)
    proj(2, {})
    vm.wait("P3")
    a("s_barrier")
    vm.wait("OB1")
    proj(3, {})
    a("s_barrier")
    nop(a, 8)
    a(f"v_lshlrev_b32 v{t}, 4, v{V_LANE}")
    a(f"s_mul_i32 s{S_T}, s{S_WAVE}, 10240")
    a(f"v_add_u32 v{t+1}, s{S_T}, v{t}")
    a(f"s_xor_b32 s{S_T+1}, s{S_WAVE}, 2")
    a(f"s_mul_i32 s{S_T+1}, s{S_T+1}, 10240")
    a(f"v_add_u32 v{t+2}, s{S_T+1}, v{t}")
    KA = 24
    KB = 44
    XA = 64; XB = 84
    a(f"s_cmp_eq_u32 s{S_KH}, 0")
    a("s_cbranch_scc0 K2_x1")
    for kh in range(2):
        if kh == 1:
            a.label("K2_x1")
        snd = 1 - kh
        for T in range(5):
            a(f"ds_write_b128 v{t+1}, {av(A_ACCA+(snd*5+T)*4,4)} offset:{T*1024}")
            a(f"ds_write_b128 v{t+1}, {av(A_ACCB+(snd*5+T)*4,4)} offset:{(5+T)*1024}")
        for i in range(20):
            a(f"v_accvgpr_read_b32 v{KA+i}, a{A_ACCA+kh*20+i}")
            a(f"v_accvgpr_read_b32 v{KB+i}, a{A_ACCB+kh*20+i}")
        if kh == 0:
            a("s_branch K2_x2")
    a.label("K2_x2")
    a("s_waitcnt lgkmcnt(0)")
    a("s_barrier")
    for T in range(5):
        a(f"ds_read_b128 {v(XA+4*T,4)}, v{t+2} offset:{T*1024}")
        a(f"ds_read_b128 {v(XB+4*T,4)}, v{t+2} offset:{(5+T)*1024}")
    vm.wait("G")
    a(f"v_sub_f32 v{t+3}, 1.0, v{V_G}")
    a(f"v_cvt_pk_bf16_f32 v{t+3}, v{t+3}, v{t+3}")
    a(f"v_lshlrev_b32 v{t+3}, 16, v{t+3}")
    a("s_waitcnt lgkmcnt(0)")
    for i in range(20):
        a(f"v_add_f32 v{KA+i}, v{KA+i}, v{XA+i}")
        a(f"v_add_f32 v{KB+i}, v{KB+i}, v{XB+i}")
    def rnd(base, n, tmp):
        for i in range(n // 2):
            a(f"v_cvt_pk_bf16_f32 v{tmp+i}, v{base+2*i}, v{base+2*i+1}")
        for i in range(n // 2):
            a(f"v_lshlrev_b32 v{base+2*i}, 16, v{tmp+i}")
            a(f"v_and_b32 v{base+2*i+1}, 0xffff0000, v{tmp+i}")
    rnd(KA, 20, XA); rnd(KB, 20, XB)
    for i in range(20):
        a(f"v_mul_f32 v{KA+i}, v{KA+i}, v{V_G}")
        a(f"v_mul_f32 v{KB+i}, v{KB+i}, v{t+3}")
    rnd(KA, 20, XA); rnd(KB, 20, XB)
    for i in range(20):
        a(f"v_add_f32 v{KA+i}, v{KA+i}, v{KB+i}")
    for i in range(10):
        a(f"v_cvt_pk_bf16_f32 v{XA+i}, v{KA+2*i}, v{KA+2*i+1}")
    for T in range(5):
        a(f"buffer_store_dwordx2 {v(XA+2*T,2)}, v{V_OUT}, s[{S_OUT}:{S_OUT+3}], 0 offen offset:{32*T}")
    a.label("K2_done")
    a("s_endpgm")
    return name
```

```python
import sys
from common import *
import k1, k2
def build(path, dump=False):
    a = Asm()
    hdr = open("cdna_kernels/" + KNAME + ".s.ref").read().split("; Override launch")[0]
    a.raw(hdr.rstrip("\n"))
    a.raw(f"; @launch kernel=k1_kernel grid=(256,1,1) block=(256,1,1) lds={k1.K1_LDS}")
    a.raw(f"; @launch kernel=kred_kernel grid=(32,1,1) block=(256,1,1) lds=0")
    a.raw(f"; @launch kernel=k2_kernel grid=(256,1,1) block=(256,1,1) lds={k2.K2_LDS}")
    a.raw('.amdgcn_target "amdgcn-amd-amdhsa--gfx950"')
    a.raw(".text")
    k1.gen_k1(a, dump=dump)
    k2.gen_kred(a)
    k2.gen_k2(a)
    a.raw('.section .rodata,"a"')
    a.raw(".p2align 6")
    kernel_desc(a, "k1_kernel", 256, 96)
    a.raw(".p2align 6")
    kernel_desc(a, "kred_kernel", 80, 32)
    a.raw(".p2align 6")
    kernel_desc(a, "k2_kernel", 464, 96, accum=256)
    open(path, "w").write(a.text())
if __name__ == "__main__":
    build(sys.argv[1], dump=(len(sys.argv) > 2))
```

```python
from common import *

V_LANE = 1; V_T0 = 2
V_GRP = 10
V_WA = 11; V_WB = 12
V_X0 = 13; V_X1 = 14
V_XH0 = 15; V_XH1 = 16
V_H0 = 17; V_H1 = 18
V_DMA = 20
V_WR = 28
V_X = 52
V_ACC = 76
V_HACC = 140
V_E = 148

S_X = 4; S_W = 8; S_WS = 12; S_AUX = 16
S_I = 20; S_J = 21; S_BR = 22; S_WAVE = 23; S_RG = 24; S_CG = 25
S_T = 26
S_SOFF = 34; S_STEP = 35
S_L = 36; S_NL = 37; S_ROT = 38
S_LD = 40
S_PTR = 44
S_MASK = 56
S_M2 = 72
S_ST = 80

STG = 49152
XOFF = 30720
LDS_WPHI = 3 * STG
LDS_ZERO = LDS_WPHI + 3200
K1_LDS = LDS_ZERO + 1024

D = 5
RING = 6
STAMPS = False
NST = [0]

def nop(a, n):
    while n > 0:
        k = min(n, 16)
        a(f"s_nop {k-1}")
        n -= k

def stamp(a):
    if STAMPS:
        k = NST[0]; NST[0] += 1
        if k == 0:
            a(f"s_memrealtime s[98:99]")
        a(f"s_memtime s[{S_ST+2*k}:{S_ST+2*k+1}]")
def stamp_flush(a):
    if STAMPS:
        n = NST[0]
        a("s_waitcnt lgkmcnt(0) vmcnt(0)")
        a(f"s_memtime s[{S_ST+2*n}:{S_ST+2*n+1}]")
        a(f"s_memrealtime s[100:101]")
        a("s_waitcnt lgkmcnt(0)")
        a(f"s_lshl_b32 s{S_T}, s2, 3")
        a(f"s_add_u32 s{S_T}, s{S_T}, s{S_WAVE}")
        a(f"s_lshl_b32 s{S_T}, s{S_T}, 6")
        a(f"s_add_u32 s{S_T}, s{S_T}, {WS_DBG}")
        a(f"v_mov_b32 v2, s{S_T}")
        a("s_mov_b64 exec, 1")
        for k in range(n + 1):
            a(f"v_mov_b32 v3, s{S_ST+2*k}")
            a(f"buffer_store_dword v3, v2, s[{S_WS}:{S_WS+3}], 0 offen offset:{4*k}")
            a("s_nop 1")
        for k, sr in enumerate((98, 100)):
            a(f"v_mov_b32 v3, s{sr}")
            a(f"buffer_store_dword v3, v2, s[{S_WS}:{S_WS+3}], 0 offen offset:{48+4*k}")
            a("s_nop 1")
        a("s_mov_b64 exec, -1")

class Cnt:
    def __init__(self, a, kind, mx):
        self.a = a; self.q = []; self.kind = kind; self.mx = mx
    def issue(self, tag):
        self.q.append(tag)
        assert len(self.q) <= self.mx, f"too many outstanding {self.kind}"
    def wait(self, *tags):
        idx = -1
        for i, t in enumerate(self.q):
            if t in tags: idx = i
        if idx < 0: return
        n = len(self.q) - 1 - idx
        self.a(f"s_waitcnt {self.kind}({n})")
        self.q = self.q[idx+1:]
    def clear(self):
        self.q = []

def xreg(buf, r):
    return V_X + (buf * 3 + r) * 4
def acc(rt, sl):
    return V_ACC + (rt * 8 + sl) * 4

def gen_prologue(a):
    t = V_T0
    a("s_cmp_ge_u32 s2, 256")
    a("s_cbranch_scc1 K1_done")
    a(f"s_load_dwordx4 s[{S_PTR}:{S_PTR+3}], s[0:1], 0")
    a(f"s_load_dwordx2 s[{S_PTR+4}:{S_PTR+5}], s[0:1], 16")
    a(f"s_load_dwordx2 s[{S_PTR+6}:{S_PTR+7}], s[0:1], 40")
    a(f"s_load_dwordx2 s[{S_PTR+8}:{S_PTR+9}], s[0:1], 56")
    a(f"s_load_dwordx2 s[{S_PTR+10}:{S_PTR+11}], s[0:1], 80")
    a(f"s_and_b32 s{S_T}, s2, 7")
    a(f"s_lshr_b32 s{S_T+1}, s2, 3")
    a(f"s_and_b32 s{S_I}, s{S_T}, 1")
    a(f"s_lshl_b32 s{S_I}, s{S_I}, 3")
    a(f"s_and_b32 s{S_T+2}, s{S_T+1}, 7")
    a(f"s_add_u32 s{S_I}, s{S_I}, s{S_T+2}")
    a(f"s_lshr_b32 s{S_J}, s{S_T}, 1")
    a(f"s_lshl_b32 s{S_J}, s{S_J}, 1")
    a(f"s_lshr_b32 s{S_T+2}, s{S_T+1}, 3")
    a(f"s_and_b32 s{S_T+2}, s{S_T+2}, 1")
    a(f"s_add_u32 s{S_J}, s{S_J}, s{S_T+2}")
    a(f"s_lshr_b32 s{S_BR}, s{S_T+1}, 4")
    a(f"s_mul_i32 s{S_ROT}, s{S_T+1}, 3")
    a(f"s_mul_i32 s{S_T+2}, s{S_ROT}, 6554")
    a(f"s_lshr_b32 s{S_T+2}, s{S_T+2}, 16")
    a(f"s_mul_i32 s{S_T+2}, s{S_T+2}, 10")
    a(f"s_sub_u32 s{S_ROT}, s{S_ROT}, s{S_T+2}")
    a(f"v_lshrrev_b32 v{t}, 6, v0")
    a(f"v_and_b32 v{V_LANE}, 63, v0")
    a(f"v_readfirstlane_b32 s{S_WAVE}, v{t}")
    a(f"v_lshrrev_b32 v{V_GRP}, 4, v{V_LANE}")
    a(f"s_mov_b32 s{S_L}, 0x3fb8aa3b")
    a(f"s_mov_b32 s{S_NL}, 0xbfb8aa3b")
    a(f"s_and_b32 s{S_RG}, s{S_WAVE}, 3")
    a(f"s_lshr_b32 s{S_CG}, s{S_WAVE}, 2")
    a(f"s_mul_i32 s{S_T}, s{S_WAVE}, 384")
    a(f"s_mul_i32 s{S_T+1}, s{S_J}, 160")
    a(f"s_mov_b32 s{S_T+2}, 2185")
    a(f"s_lshl_b32 s{S_T+3}, s{S_I}, 7")
    a(f"s_sub_u32 s{S_T+3}, s{S_T+3}, {16 + 5*48}")
    a(f"s_mov_b32 s{S_T+4}, 1280")
    a(f"s_cmp_ge_u32 s{S_WAVE}, 5")
    a(f"s_cbranch_scc1 K1_xoff")
    for n in range(6):
        d = V_DMA + n
        a(f"v_add_u32 v{t}, s{S_T}, v{V_LANE}")
        if n:
            a(f"v_add_u32 v{t}, {n*64}, v{t}")
        a(f"v_mul_u32_u24 v{t+1}, s{S_T+2}, v{t}")
        a(f"v_lshrrev_b32 v{t+1}, 16, v{t+1}")
        a(f"v_mul_u32_u24 v{t+2}, 30, v{t+1}")
        a(f"v_sub_u32 v{t+2}, v{t}, v{t+2}")
        a(f"v_and_b32 v{t+3}, 0x23, v{t+1}")
        a(f"v_bfe_u32 v{t+4}, v{t+1}, 2, 2")
        a(f"v_lshl_add_u32 v{t+3}, v{t+4}, 3, v{t+3}")
        a(f"v_bfe_u32 v{t+4}, v{t+1}, 4, 1")
        a(f"v_lshl_add_u32 v{t+3}, v{t+4}, 2, v{t+3}")
        a(f"v_mul_u32_u24 v{t+3}, 3840, v{t+3}")
        a(f"v_mul_u32_u24 v{t+4}, 26, v{t+2}")
        a(f"v_lshrrev_b32 v{t+4}, 8, v{t+4}")
        a(f"v_mul_u32_u24 v{t+5}, 1120, v{t+4}")
        a(f"v_add_u32 v{t+3}, v{t+3}, v{t+5}")
        a(f"v_lshl_add_u32 v{t+3}, v{t+2}, 4, v{t+3}")
        a(f"v_add_u32 v{d}, s{S_T+1}, v{t+3}")
    a("s_branch K1_offdone")
    a.label("K1_xoff")
    a(f"v_lshrrev_b32 v{t}, 3, v{V_LANE}")
    a(f"v_and_b32 v{t+1}, 7, v{V_LANE}")
    a(f"v_xor_b32 v{t+1}, v{t+1}, v{t}")
    a(f"v_lshlrev_b32 v{t+1}, 4, v{t+1}")
    a(f"s_mul_i32 s{S_T}, s{S_WAVE}, 48")
    a(f"s_add_u32 s{S_T}, s{S_T}, s{S_T+3}")
    for n in range(6):
        a(f"v_add_u32 v{t+2}, s{S_T}, v{t}")
        if n:
            a(f"v_add_u32 v{t+2}, {8*n}, v{t+2}")
        a(f"v_mul_lo_u32 v{t+2}, v{t+2}, s{S_T+4}")
        a(f"v_add_u32 v{V_DMA+n}, v{t+2}, v{t+1}")
    a.label("K1_offdone")
    a("s_waitcnt lgkmcnt(0)")
    srd(a, S_X, S_PTR, 2048 * 1280)
    srd(a, S_WS, S_PTR + 10, WS_SIZE)
    a(f"s_cmp_eq_u32 s{S_BR}, 0")
    a(f"s_cselect_b32 s{S_T}, s{S_PTR+2}, s{S_PTR+6}")
    a(f"s_cselect_b32 s{S_T+1}, s{S_PTR+3}, s{S_PTR+7}")
    a(f"s_cselect_b32 s{S_T+2}, s{S_PTR+4}, s{S_PTR+8}")
    a(f"s_cselect_b32 s{S_T+3}, s{S_PTR+5}, s{S_PTR+9}")
    a(f"s_mov_b32 s{S_T+5}, 1280")
    a(f"s_cselect_b32 s{S_T+4}, 25600, s{S_T+5}")
    srd(a, S_W, S_T, 640 * 3840)
    a(f"s_mov_b32 s{S_AUX}, s{S_T+2}")
    a(f"s_and_b32 s{S_AUX+1}, s{S_T+3}, 0xffff")
    a(f"s_mov_b32 s{S_AUX+2}, s{S_T+4}")
    a(f"s_mov_b32 s{S_AUX+3}, 0x00020000")
    a(f"s_cmp_ge_u32 s{S_WAVE}, 5")
    for k in range(4):
        a(f"s_cselect_b32 s{S_LD+k}, s{S_X+k}, s{S_W+k}")
    a(f"s_mov_b32 s{S_T}, {64*3840}")
    a(f"s_cselect_b32 s{S_STEP}, 128, s{S_T}")

NO_LOADS = False
def dma(a, c, n):
    if NO_LOADS and c >= 3: return
    b = c % 3
    a(f"s_mul_i32 s{S_T}, s{S_WAVE}, 6144")
    a(f"s_add_u32 m0, s{S_T}, {b*STG + n*1024}")
    if n == 0 or True:
        a(f"s_add_u32 s{S_SOFF}, s{S_ROT}, {c}")
        a(f"s_sub_u32 s{S_T+1}, s{S_SOFF}, 10")
        a(f"s_cmp_ge_u32 s{S_SOFF}, 10")
        a(f"s_cselect_b32 s{S_SOFF}, s{S_T+1}, s{S_SOFF}")
        a(f"s_mul_i32 s{S_SOFF}, s{S_STEP}, s{S_SOFF}")
    a(f"buffer_load_dwordx4 v{V_DMA+n}, s[{S_LD}:{S_LD+3}], s{S_SOFF} offen lds")

def gen_bases(a):
    t = V_T0
    a(f"v_lshrrev_b32 v{t}, 2, v{V_LANE}")
    a(f"v_mul_u32_u24 v{t}, 480, v{t}")
    a(f"v_and_b32 v{t+1}, 3, v{V_LANE}")
    a(f"v_mul_u32_u24 v{t+1}, 40, v{t+1}")
    a(f"v_add_u32 v{t}, v{t}, v{t+1}")
    a(f"s_mul_i32 s{S_T}, s{S_CG}, 160")
    a(f"v_add_u32 v{V_WA}, s{S_T}, v{t}")
    a(f"s_mul_i32 s{S_T}, s{S_CG}, 24")
    a(f"s_add_u32 s{S_T}, s{S_T}, 320")
    a(f"v_add_u32 v{V_WB}, s{S_T}, v{t}")
    for h in range(2):
        a(f"s_add_u32 s{S_T}, s{S_WAVE}, {8*h}")
        a(f"s_cmp_ge_u32 s{S_T}, 10")
        a(f"s_cselect_b32 s{S_T}, s{S_WAVE}, s{S_T}")
        a(f"s_add_u32 s{S_T}, s{S_T}, 5")
        a(f"s_cmp_ge_u32 s{S_T}, 10")
        a(f"s_mov_b32 s{S_T+2}, 120")
        a(f"s_cselect_b32 s{S_T+1}, 240, s{S_T+2}")
        a(f"s_lshl_b32 s{S_T}, s{S_T}, 3")
        a(f"s_add_u32 s{S_T}, s{S_T}, s{S_T+1}")
        a(f"v_add_u32 v{V_H0+h}, s{S_T}, v{t}")
    a(f"v_and_b32 v{t}, 15, v{V_LANE}")
    a(f"v_and_b32 v{t+1}, 7, v{V_LANE}")
    a(f"v_xor_b32 v{t+1}, v{t+1}, v{V_GRP}")
    a(f"v_lshlrev_b32 v{t+1}, 4, v{t+1}")
    a(f"v_lshl_add_u32 v{t+1}, v{t}, 7, v{t+1}")
    a(f"v_add_u32 v{V_XH0}, {XOFF}, v{t+1}")
    a(f"v_xor_b32 v{V_XH1}, 64, v{V_XH0}")
    a(f"s_lshl_b32 s{S_T}, s{S_RG}, 12")
    a(f"s_add_u32 s{S_T}, s{S_T}, 2048")
    a(f"v_add_u32 v{V_X0}, s{S_T}, v{V_XH0}")
    a(f"v_add_u32 v{V_X1}, s{S_T}, v{V_XH1}")

PREFETCH = True
def gen_prefetch(a):
    if not PREFETCH: return
    t = V_E + 16
    a(f"s_lshr_b32 s{S_T}, s2, 3")
    a(f"s_lshl_b32 s{S_T+1}, s{S_T}, 3")
    a(f"s_add_u32 s{S_T+1}, s{S_T+1}, s{S_WAVE}")
    a(f"s_lshl_b32 s{S_T+1}, s{S_T+1}, 6")
    a(f"v_add_u32 v{t}, s{S_T+1}, v{V_LANE}")
    a(f"s_and_b32 s{S_T+2}, s2, 1")
    a(f"s_mul_i32 s{S_T+2}, s{S_T+2}, {1024*1280}")
    a(f"v_lshlrev_b32 v{t+1}, 7, v{t}")
    a(f"v_add_u32 v{t+1}, s{S_T+2}, v{t+1}")
    a(f"v_mov_b32 v{t+2}, 0x7ff00000")
    a(f"v_cmp_le_u32 vcc, 10240, v{t}")
    a(f"v_and_b32 v{t+3}, 0x1fff, v{t}")
    a(f"v_cndmask_b32 v{t+1}, v{t+1}, v{t+2}, vcc")
    a(f"buffer_load_dword v{t+8}, v{t+1}, s[{S_X}:{S_X+3}], 0 offen")
    a(f"v_mul_u32_u24 v{t+4}, 5462, v{t+3}")
    a(f"v_lshrrev_b32 v{t+4}, 16, v{t+4}")
    a(f"v_mul_u32_u24 v{t+5}, 12, v{t+4}")
    a(f"v_sub_u32 v{t+5}, v{t+3}, v{t+5}")
    a(f"v_lshrrev_b32 v{t+6}, 2, v{t+5}")
    a(f"v_and_b32 v{t+5}, 3, v{t+5}")
    a(f"v_mul_u32_u24 v{t+4}, 3840, v{t+4}")
    a(f"v_mul_u32_u24 v{t+6}, 1280, v{t+6}")
    a(f"v_add_u32 v{t+4}, v{t+4}, v{t+6}")
    a(f"v_lshl_add_u32 v{t+4}, v{t+5}, 7, v{t+4}")
    a(f"s_and_b32 s{S_T+2}, s2, 7")
    a(f"s_lshr_b32 s{S_T+2}, s{S_T+2}, 1")
    a(f"s_mul_i32 s{S_T+2}, s{S_T+2}, 320")
    a(f"s_and_b32 s{S_T+2}, s{S_T+2}, 0xffffff80")
    a(f"v_add_u32 v{t+4}, s{S_T+2}, v{t+4}")
    a(f"v_cmp_le_u32 vcc, 7680, v{t+3}")
    a("s_nop 1")
    a(f"v_cndmask_b32 v{t+4}, v{t+4}, v{t+2}, vcc")
    a(f"buffer_load_dword v{t+9}, v{t+4}, s[{S_W}:{S_W+3}], 0 offen")

def gen_mainloop(a, halo, pre_hook=None):
    lg = Cnt(a, "lgkmcnt", 15)
    nxr = 3 if halo else 2
    items = []
    for c in range(10):
        for m in range(2):
            for sl in range(8):
                items.append((c, m, "m", sl))
                if halo and sl in (3, 7):
                    items.append((c, m, "h", sl // 4))
    per_k = len(items) // 20
    per_chunk = 2 * per_k
    total = len(items)
    base_regs = [V_WA, V_WB, V_X0, V_X1, V_XH0, V_XH1, V_H0, V_H1]
    cur_stage = [0]
    def set_stage(c):
        b = c % 3
        if b != cur_stage[0]:
            delta = (b - cur_stage[0]) * STG
            for r in base_regs:
                if not halo and r in (V_XH0, V_XH1, V_H0, V_H1): continue
                if delta > 0:
                    a(f"v_add_u32 v{r}, {delta}, v{r}")
                else:
                    a(f"v_subrev_u32 v{r}, {-delta}, v{r}")
            cur_stage[0] = b
    def x_reads(c, m):
        set_stage(c)
        buf = (2 * c + m) % 2
        for r in range(nxr):
            if r < 2:
                a(f"ds_read_b128 {v(xreg(buf,r),4)}, v{V_X0+m} offset:{r*2048}")
            else:
                a(f"ds_read_b128 {v(xreg(buf,r),4)}, v{V_XH0+m}")
            lg.issue(f"x{c}_{m}")
    def w_reads(N):
        c, m, kind, idx = items[N]
        set_stage(c)
        slot = V_WR + (N % RING) * 4
        for qq in range(2):
            imm = (2 * m + qq) * 16 * 480
            if kind == "m":
                base = V_WA if idx < 5 else V_WB
                imm += 8 * (idx if idx < 5 else idx - 5)
            else:
                base = V_H0 + idx
            a(f"ds_read_b64_tr_b16 {v(slot+2*qq,2)}, v{base} offset:{imm}")
            lg.issue(f"w{N}")
    for n in range(6):
        dma(a, 0, n)
    for n in range(6):
        dma(a, 1, n)
    gen_bases(a)
    if pre_hook: pre_hook()
    stamp(a)
    a(f"s_waitcnt vmcnt(6)")
    a("s_barrier")
    stamp(a)
    x_reads(0, 0)
    for N in range(D):
        w_reads(N)
    nxt = D
    DL = 2
    for N in range(total):
        c, m, kind, idx = items[N]
        n = N - c * per_chunk
        if n == 0:
            a.comment(f"---- chunk {c}")
        bar_here = (n == per_chunk - D + DL and c + 1 <= 9)
        if bar_here:
            a(f"s_waitcnt vmcnt({(8 if (c == 0 and PREFETCH) else 6) if c + 2 <= 9 else 0}) lgkmcnt(0)")
            lg.clear()
            a("s_barrier")
        lim = N + D
        if c + 1 <= 9 and n < per_chunk - D + DL:
            lim = min(lim, (c + 1) * per_chunk - 1)
        lim = min(lim, total - 1)
        while nxt <= lim:
            cc, mm, _, _ = items[nxt]
            if nxt == (cc * 2 + mm) * per_k:
                x_reads(cc, mm)
            w_reads(nxt)
            nxt += 1
        lg.wait(f"w{N}", f"x{c}_{m}")
        slot = V_WR + (N % RING) * 4
        buf = (2 * c + m) % 2
        first = (c == 0 and m == 0)
        if kind == "m":
            for rt in range(2):
                src = "0" if first else v(acc(rt, idx), 4)
                a(f"v_mfma_f32_16x16x32_bf16 {v(acc(rt,idx),4)}, {v(slot,4)}, {v(xreg(buf,rt),4)}, {src}")
        else:
            src = "0" if first else v(V_HACC + idx * 4, 4)
            a(f"v_mfma_f32_16x16x32_bf16 {v(V_HACC+idx*4,4)}, {v(slot,4)}, {v(xreg(buf,2),4)}, {src}")
        if c == 0 and n < 6:
            dma(a, 2, n)
        if c == 0 and n == 6:
            gen_prefetch(a)
        k = N - (c * per_chunk + per_chunk - D + DL)
        for cc in (c, c - 1):
            if cc < 0 or cc + 3 > 9: continue
            k = N - (cc * per_chunk + per_chunk - D + DL)
            if 0 <= k < 6:
                dma(a, cc + 3, k)

def softmax_dual(a, P, T, OUT, X4):
    for i in range(10):
        a(f"v_cvt_pk_bf16_f32 v{T+i}, v{P+2*i}, v{P+2*i+1}")
    for i in range(10):
        a(f"v_lshlrev_b32 v{P+2*i}, 16, v{T+i}")
        a(f"v_and_b32 v{P+2*i+1}, 0xffff0000, v{T+i}")
    mx, mn, nmx, pmn = X4, X4 + 1, X4 + 2, X4 + 3
    a(f"v_max3_f32 v{mx}, v{P}, v{P+1}, v{P+2}")
    a(f"v_min3_f32 v{mn}, v{P}, v{P+1}, v{P+2}")
    for i in range(3, 19, 2):
        a(f"v_max3_f32 v{mx}, v{mx}, v{P+i}, v{P+i+1}")
        a(f"v_min3_f32 v{mn}, v{mn}, v{P+i}, v{P+i+1}")
    a(f"v_max_f32 v{mx}, v{mx}, v{P+19}")
    a(f"v_min_f32 v{mn}, v{mn}, v{P+19}")
    a(f"v_mul_f32 v{nmx}, s{S_NL}, v{mx}")
    a(f"v_mul_f32 v{pmn}, s{S_L}, v{mn}")
    for i in range(20):
        a(f"v_fma_f32 v{T+i}, v{P+i}, s{S_L}, v{nmx}")
        a(f"v_fma_f32 v{P+i}, v{P+i}, s{S_NL}, v{pmn}")
    for i in range(20):
        a(f"v_exp_f32 v{T+i}, v{T+i}")
        a(f"v_exp_f32 v{P+i}, v{P+i}")
    a("s_nop 0")
    s1, s2 = mx, mn
    a(f"v_add_f32 v{s1}, v{T}, v{T+1}")
    a(f"v_add_f32 v{s2}, v{P}, v{P+1}")
    a(f"v_add_f32 v{nmx}, v{T+2}, v{T+3}")
    a(f"v_add_f32 v{pmn}, v{P+2}, v{P+3}")
    for i in range(4, 20, 2):
        a(f"v_add_f32 v{s1}, v{s1}, v{T+i}")
        a(f"v_add_f32 v{s2}, v{s2}, v{P+i}")
        a(f"v_add_f32 v{nmx}, v{nmx}, v{T+i+1}")
        a(f"v_add_f32 v{pmn}, v{pmn}, v{P+i+1}")
    a(f"v_add_f32 v{s1}, v{s1}, v{nmx}")
    a(f"v_add_f32 v{s2}, v{s2}, v{pmn}")
    a(f"v_rcp_f32 v{s1}, v{s1}")
    a(f"v_rcp_f32 v{s2}, v{s2}")
    a("s_nop 0")
    for i in range(20):
        a(f"v_mul_f32 v{T+i}, v{T+i}, v{s1}")
        a(f"v_mul_f32 v{P+i}, v{P+i}, v{s2}")
    for i in range(10):
        a(f"v_cvt_pk_bf16_f32 v{OUT+i}, v{T+2*i}, v{T+2*i+1}")
    for i in range(10):
        a(f"v_cvt_pk_bf16_f32 v{OUT+10+i}, v{P+2*i}, v{P+2*i+1}")

def gen_wphi_issue(a):
    t = V_E
    a(f"v_lshlrev_b32 v{t}, 4, v0")
    a(f"s_mul_i32 s{S_T}, s{S_J}, 3200")
    a(f"v_cmp_gt_u32 vcc, 200, v0")
    a(f"s_and_saveexec_b64 s[{S_T+2}:{S_T+3}], vcc")
    a(f"s_cbranch_execz K1_wp0")
    a(f"buffer_load_dwordx4 {v(t+4,4)}, v{t}, s[{S_AUX}:{S_AUX+3}], s{S_T} offen")
    a.label("K1_wp0")
    a(f"s_mov_b64 exec, s[{S_T+2}:{S_T+3}]")

def gen_wphi_stage(a):
    t = V_E
    a(f"v_cmp_gt_u32 vcc, 200, v0")
    a(f"s_and_saveexec_b64 s[{S_T+2}:{S_T+3}], vcc")
    a(f"s_cbranch_execz K1_wp1")
    a(f"v_add_u32 v{t+1}, {LDS_WPHI}, v{t}")
    a(f"s_waitcnt vmcnt(12)")
    a(f"ds_write_b128 v{t+1}, {v(t+4,4)}")
    a.label("K1_wp1")
    a(f"s_mov_b64 exec, s[{S_T+2}:{S_T+3}]")
    a(f"v_cmp_gt_u32 vcc, 64, v0")
    a(f"s_and_saveexec_b64 s[{S_T+2}:{S_T+3}], vcc")
    a(f"s_cbranch_execz K1_wp2")
    for r in range(4):
        a(f"v_mov_b32 v{t+8+r}, 0")
    a(f"v_add_u32 v{t+1}, {LDS_ZERO}, v{t}")
    a(f"ds_write_b128 v{t+1}, {v(t+8,4)}")
    a.label("K1_wp2")
    a(f"s_mov_b64 exec, s[{S_T+2}:{S_T+3}]")
    a("s_waitcnt lgkmcnt(0)")

PKO = 0
VO = 40960

def gen_epilogue_A(a):
    t = V_T0
    a("s_barrier")
    WF = 148
    QB = 208
    P = 220
    OUT = 28
    a(f"v_and_b32 v{t}, 3, v{V_LANE}")
    a(f"v_bfe_u32 v{t+1}, v{V_LANE}, 2, 2")
    a(f"v_mul_u32_u24 v{t+1}, 40, v{t+1}")
    a(f"v_mul_u32_u24 v{t+2}, 800, v{V_GRP}")
    a(f"v_add_u32 v{t+1}, v{t+1}, v{t+2}")
    a(f"v_add_u32 v{t+1}, {LDS_WPHI}, v{t+1}")
    a(f"v_mov_b32 v{t+2}, {LDS_ZERO}")
    a(f"v_cmp_eq_u32 vcc, v{t}, v{V_GRP}")
    a("s_nop 1")
    a(f"v_cndmask_b32 v{t+1}, v{t+2}, v{t+1}, vcc")
    for tt in range(5):
        for c in range(3):
            r = WF + (tt * 3 + c) * 4
            for qq in range(2):
                if c == 2 and qq == 1:
                    a(f"v_mov_b32 v{r+2}, 0")
                    a(f"v_mov_b32 v{r+3}, 0")
                else:
                    a(f"ds_read_b64_tr_b16 {v(r+2*qq,2)}, v{t+1} offset:{(8*c+4*qq)*40 + 8*tt}")
    a(f"v_mov_b32 v{QB+10}, 0")
    a(f"v_mov_b32 v{QB+11}, 0")
    a(f"s_lshl_b32 s{S_T}, s{S_I}, 3")
    a(f"s_lshl_b32 s{S_T+1}, s{S_RG}, 1")
    a(f"s_add_u32 s{S_T}, s{S_T}, s{S_T+1}")
    a(f"s_lshl_b32 s{S_T}, s{S_T}, 5")
    a(f"s_lshl_b32 s{S_T+1}, s{S_J}, 2")
    a(f"s_add_u32 s{S_T}, s{S_T}, s{S_T+1}")
    a(f"s_mul_i32 s{S_T}, s{S_T}, 1280")
    a(f"s_add_u32 s{S_T}, s{S_T}, {WS_PHIQ}")
    a(f"v_and_b32 v{t}, 15, v{V_LANE}")
    a(f"v_mul_u32_u24 v{t+2}, 1280, v{V_GRP}")
    a(f"v_lshl_add_u32 v{t+2}, v{t}, 4, v{t+2}")
    a(f"v_add_u32 v{t+2}, s{S_T}, v{t+2}")
    a(f"v_add_u32 v{t+7}, {32*1280}, v{t+2}")
    a(f"s_mul_i32 s{S_T}, s{S_RG}, {32*80}")
    a(f"v_mul_u32_u24 v{t+3}, 80, v{t}")
    a(f"v_mul_u32_u24 v{t+4}, 10240, v{V_GRP}")
    a(f"v_add_u32 v{t+3}, v{t+3}, v{t+4}")
    a(f"v_add_u32 v{t+3}, s{S_T}, v{t+3}")
    a(f"s_mul_i32 s{S_T}, s{S_RG}, {32*48}")
    a(f"s_mul_i32 s{S_T+1}, s{S_CG}, 24")
    a(f"s_add_u32 s{S_T}, s{S_T}, s{S_T+1}")
    a(f"v_mul_u32_u24 v{t+4}, 48, v{t}")
    a(f"v_mul_u32_u24 v{t+5}, 6144, v{V_GRP}")
    a(f"v_add_u32 v{t+4}, v{t+4}, v{t+5}")
    a(f"v_add_u32 v{t+4}, s{S_T}, v{t+4}")
    a(f"s_cmp_eq_u32 s{S_CG}, 1")
    a(f"s_cselect_b64 s[{S_T+2}:{S_T+3}], -1, 0")
    a(f"v_mov_b32 v{P+6}, 0x3f80")
    a(f"v_mov_b32 v{P+7}, 0")
    for rt in range(2):
        base = acc(rt, 5)
        for i in range(6):
            a(f"v_cvt_pk_bf16_f32 v{P+i}, v{base+2*i}, v{base+2*i+1}")
        a(f"v_cndmask_b32 v{P+4}, v{P+4}, v{P+6}, s[{S_T+2}:{S_T+3}]")
        a(f"v_cndmask_b32 v{P+5}, v{P+5}, v{P+7}, s[{S_T+2}:{S_T+3}]")
        for k in range(3):
            a(f"ds_write_b64 v{t+4}, {v(P+2*k,2)} offset:{VO + rt*768 + 8*k}")
        nop(a, 1)
    a("s_waitcnt lgkmcnt(0)")
    stamp(a)
    for rt in range(2):
        base = acc(rt, 0)
        for i in range(10):
            a(f"v_cvt_pk_bf16_f32 v{QB+i}, v{base+2*i}, v{base+2*i+1}")
        nop(a, 2)
        for c in range(3):
            for tt in range(5):
                src = "0" if c == 0 else v(P + tt * 4, 4)
                a(f"v_mfma_f32_16x16x32_bf16 {v(P+tt*4,4)}, {v(WF+(tt*3+c)*4,4)}, {v(QB+c*4,4)}, {src}")
        nop(a, 8)
        softmax_dual(a, P, base, OUT, QB)
        l1 = a.newlabel("K1_ak"); l2 = a.newlabel("K1_ae")
        a(f"s_cmp_eq_u32 s{S_CG}, 0")
        a(f"s_cbranch_scc0 {l1}")
        for k in range(5):
            a(f"buffer_store_dwordx4 {v(OUT+4*k,4)}, v{t+2 if rt == 0 else t+7}, s[{S_WS}:{S_WS+3}], 0 offen offset:{256*k}")
        a(f"s_branch {l2}")
        a.label(l1)
        for k in range(5):
            a(f"ds_write_b128 v{t+3}, {v(OUT+4*k,4)} offset:{PKO + rt*1280 + 16*k}")
        a.label(l2)
        nop(a, 2)
        stamp(a)
    a("s_waitcnt lgkmcnt(0)")
    a("s_barrier")
    a(f"v_and_b32 v{t}, 3, v{V_LANE}")
    a(f"v_bfe_u32 v{t+1}, v{V_LANE}, 2, 2")
    a(f"v_lshl_add_u32 v{t+1}, v{V_GRP}, 3, v{t+1}")
    a(f"v_mul_u32_u24 v{t+2}, 80, v{t+1}")
    a(f"v_lshl_add_u32 v{t+2}, v{t}, 3, v{t+2}")
    a(f"s_mul_i32 s{S_T}, s{S_RG}, 10240")
    a(f"v_add_u32 v{t+2}, s{S_T}, v{t+2}")
    a(f"v_mul_u32_u24 v{t+3}, 48, v{t+1}")
    a(f"v_lshl_add_u32 v{t+3}, v{t}, 3, v{t+3}")
    a(f"s_mul_i32 s{S_T}, s{S_RG}, 6144")
    a(f"s_add_u32 s{S_T}, s{S_T}, {VO}")
    a(f"v_add_u32 v{t+3}, s{S_T}, v{t+3}")
    a(f"s_lshl_b32 s{S_T}, s{S_I}, 5")
    a(f"s_lshl_b32 s{S_T+1}, s{S_J}, 2")
    a(f"s_add_u32 s{S_T}, s{S_T}, s{S_T+1}")
    a(f"s_add_u32 s{S_T}, s{S_T}, s{S_RG}")
    a(f"s_mul_i32 s{S_T}, s{S_T}, 6144")
    a(f"s_add_u32 s{S_T}, s{S_T}, {WS_PART}")
    a(f"v_and_b32 v{t}, 15, v{V_LANE}")
    a(f"v_mul_u32_u24 v{t}, 192, v{t}")
    a(f"v_lshl_add_u32 v{t}, v{V_GRP}, 4, v{t}")
    a(f"v_add_u32 v{t}, s{S_T}, v{t}")
    AF = 76; BF = 124; KV = 172; AD = 184
    for y in range(3):
        a(f"s_mul_i32 s{S_T}, s{S_CG}, 3")
        a(f"s_add_u32 s{S_T}, s{S_T}, {y}")
        a(f"s_lshr_b32 s{S_T+1}, s{S_T}, 1")
        a(f"s_and_b32 s{S_T+2}, s{S_T}, 1")
        a(f"s_lshl_b32 s{S_T+3}, s{S_T+1}, 5")
        a(f"v_add_u32 v{AD+y}, s{S_T+3}, v{t+2}")
        a(f"s_lshl_b32 s{S_T+3}, s{S_T+2}, 5")
        a(f"v_add_u32 v{AD+3+y}, s{S_T+3}, v{t+3}")
        a(f"s_lshl_b32 s{S_T+3}, s{S_T+1}, 6")
        a(f"s_mul_i32 s{S_T+4}, s{S_T+2}, {16*192}")
        a(f"s_add_u32 s{S_T+3}, s{S_T+3}, s{S_T+4}")
        a(f"v_add_u32 v{AD+6+y}, s{S_T+3}, v{t}")
    for ks in range(4):
        for y in range(3):
            for qq in range(2):
                a(f"ds_read_b64_tr_b16 {v(AF+(y*4+ks)*4+2*qq,2)}, v{AD+y} offset:{(32*ks+4*qq)*80}")
                a(f"ds_read_b64_tr_b16 {v(BF+(y*4+ks)*4+2*qq,2)}, v{AD+3+y} offset:{(32*ks+4*qq)*48}")
        a("s_waitcnt lgkmcnt(0)")
    for ks in range(4):
        for y in range(3):
            d = KV + y * 4
            src = "0" if ks == 0 else v(d, 4)
            a(f"v_mfma_f32_16x16x32_bf16 {v(d,4)}, {v(AF+(y*4+ks)*4,4)}, {v(BF+(y*4+ks)*4,4)}, {src}")
    nop(a, 8)
    for y in range(3):
        a(f"buffer_store_dwordx4 {v(KV+y*4,4)}, v{AD+6+y}, s[{S_WS}:{S_WS+3}], 0 offen")

QROW = 272
LQ = 0
LK = 128 * QROW
LV = LK + 144 * QROW

def gen_epilogue_B(a):
    t = V_T0
    a("s_barrier")
    a(f"v_and_b32 v{t}, 15, v{V_LANE}")
    a(f"v_mul_u32_u24 v{t+1}, {QROW}, v{t}")
    a(f"v_lshl_add_u32 v{t+1}, v{V_GRP}, 6, v{t+1}")
    a(f"s_mul_i32 s{S_T}, s{S_RG}, {32*QROW}")
    a(f"s_mul_i32 s{S_T+1}, s{S_CG}, {LK + 16*QROW}")
    a(f"s_add_u32 s{S_T+1}, s{S_T+1}, s{S_T}")
    a(f"v_add_u32 v{t+2}, s{S_T+1}, v{t+1}")
    a(f"s_mul_i32 s{S_T+1}, s{S_CG}, 24")
    a(f"s_add_u32 s{S_T+1}, s{S_T+1}, s{S_T}")
    a(f"s_add_u32 s{S_T+1}, s{S_T+1}, {LV + 16*QROW}")
    a(f"v_add_u32 v{t+3}, s{S_T+1}, v{t+1}")
    PB = 28
    for i in range(10, 16):
        a(f"v_mov_b32 v{PB+i}, 0")
    for rt in range(2):
        base = acc(rt, 0)
        for i in range(10):
            a(f"v_cvt_pk_bf16_f32 v{PB+i}, v{base+2*i}, v{base+2*i+1}")
        for k in range(4):
            a(f"ds_write_b128 v{t+2}, {v(PB+4*k,4)} offset:{rt*16*QROW+16*k}")
        base = acc(rt, 5)
        for i in range(6):
            a(f"v_cvt_pk_bf16_f32 v{PB+16+i}, v{base+2*i}, v{base+2*i+1}")
        for k in range(3):
            a(f"ds_write_b64 v{t+3}, {v(PB+16+2*k,2)} offset:{rt*16*QROW+8*k}")
        nop(a, 2)
    for k in range(3):
        a(f"ds_write_b64 v{t+1}, {v(PB+10,2)} offset:{LK + 40 + 8*k}")
    for h in range(2):
        a(f"s_add_u32 s{S_T}, s{S_WAVE}, {8*h}")
        a(f"s_cmp_ge_u32 s{S_T}, 10")
        a(f"s_cselect_b32 s{S_T}, s{S_WAVE}, s{S_T}")
        a(f"s_cmp_ge_u32 s{S_T}, 5")
        a(f"s_mov_b32 s{S_T+2}, {LK}")
        a(f"s_cselect_b32 s{S_T+1}, {LV-40}, s{S_T+2}")
        a(f"s_lshl_b32 s{S_T}, s{S_T}, 3")
        a(f"s_add_u32 s{S_T}, s{S_T}, s{S_T+1}")
        a(f"v_add_u32 v{t+4}, s{S_T}, v{t+1}")
        a(f"v_cvt_pk_bf16_f32 v{PB}, v{V_HACC+4*h}, v{V_HACC+4*h+1}")
        a(f"v_cvt_pk_bf16_f32 v{PB+1}, v{V_HACC+4*h+2}, v{V_HACC+4*h+3}")
        a(f"ds_write_b64 v{t+4}, {v(PB,2)}")
        nop(a, 2)
    a(f"v_lshlrev_b32 v{t+3}, 2, v{V_GRP}")
    a(f"v_sub_u32 v{t+3}, v{t}, v{t+3}")
    for r in range(4):
        a(f"v_sub_u32 v{t+4}, {r-2}, v{t+3}")
        a(f"v_and_b32 v{t+4}, 0x80000001, v{t+4}")
        a(f"v_cmp_eq_u32 s[{S_MASK+2*r}:{S_MASK+2*r+1}], 0, v{t+4}")
        a(f"v_subrev_u32 v{t+4}, {r}, v{t+3}")
        a(f"v_and_b32 v{t+4}, 0x80000001, v{t+4}")
        a(f"v_cmp_eq_u32 s[{S_MASK+8+2*r}:{S_MASK+8+2*r+1}], 0, v{t+4}")
    a(f"s_or_b32 s{S_T}, s{S_I}, s{S_WAVE}")
    a(f"s_cmp_eq_u32 s{S_T}, 0")
    for r in range(4):
        a(f"s_cselect_b64 s[{S_MASK+2*r}:{S_MASK+2*r+1}], 0, s[{S_MASK+2*r}:{S_MASK+2*r+1}]")
    a(f"v_mul_u32_u24 v{t+1}, {QROW}, v{t}")
    a(f"v_lshl_add_u32 v{t+1}, v{V_GRP}, 4, v{t+1}")
    a(f"s_mul_i32 s{S_T}, s{S_WAVE}, {16*QROW}")
    a(f"v_add_u32 v{t+1}, s{S_T}, v{t+1}")
    a(f"v_add_u32 v{t+2}, {LK}, v{t+1}")
    a(f"v_lshrrev_b32 v{t+3}, 2, v{V_LANE}")
    a(f"v_mul_u32_u24 v{t+3}, {QROW}, v{t+3}")
    a(f"v_and_b32 v{t+4}, 3, v{V_LANE}")
    a(f"v_lshl_add_u32 v{t+3}, v{t+4}, 3, v{t+3}")
    a(f"v_add_u32 v{t+3}, s{S_T}, v{t+3}")
    a(f"v_add_u32 v{t+3}, {LV}, v{t+3}")
    a(f"s_mov_b32 s{S_T+4}, 0x3e64f92e")
    a(f"s_mov_b32 s{S_T+5}, 0xff000000")
    OA = 232
    a(f"s_lshl_b32 s{S_T}, s{S_I}, 3")
    a(f"s_add_u32 s{S_T}, s{S_T}, s{S_WAVE}")
    a(f"s_mul_i32 s{S_T}, s{S_T}, 20480")
    a(f"s_add_u32 s{S_T}, s{S_T}, {WS_OB}")
    a(f"s_mul_i32 s{S_T+1}, s{S_J}, 80")
    a(f"v_lshlrev_b32 v{t+4}, 2, v{V_GRP}")
    a(f"v_add_u32 v{t+4}, s{S_T+1}, v{t+4}")
    a(f"v_lshlrev_b32 v{t+5}, 4, v{t}")
    a(f"v_add_u32 v{t+5}, s{S_T}, v{t+5}")
    for h in range(4):
        for td in range(2):
            o = OA + h * 2 + td
            a(f"v_add_u32 v{t+6}, {20*h+16*td}, v{t+4}")
            a(f"v_lshrrev_b32 v{t+7}, 5, v{t+6}")
            a(f"v_lshl_add_u32 v{o}, v{t+7}, 10, v{t+5}")
            a(f"v_bfe_u32 v{t+7}, v{t+6}, 3, 2")
            a(f"v_lshl_add_u32 v{o}, v{t+7}, 8, v{o}")
            a(f"v_bfe_u32 v{t+7}, v{t+6}, 2, 1")
            a(f"v_lshl_add_u32 v{o}, v{t+7}, 3, v{o}")
    a("s_waitcnt lgkmcnt(0)")
    stamp(a)
    a("s_barrier")
    RB = 76
    for h in range(4):
        R = RB + h * 28
        QF, KA, KB_, VF = R, R + 4, R + 8, R + 12
        a(f"ds_read_b128 {v(QF,4)}, v{t+1} offset:{LQ + h*64}")
        a(f"ds_read_b128 {v(KA,4)}, v{t+2} offset:{h*64}")
        a(f"ds_read_b128 {v(KB_,4)}, v{t+2} offset:{16*QROW + h*64}")
        for td in range(2):
            a(f"ds_read_b64_tr_b16 {v(VF+4*td,2)}, v{t+3} offset:{h*64 + 32*td}")
            a(f"ds_read_b64_tr_b16 {v(VF+4*td+2,2)}, v{t+3} offset:{16*QROW + h*64 + 32*td}")
        if h == 1:
            a("s_waitcnt lgkmcnt(0)")
    a("s_waitcnt lgkmcnt(0)")
    for h in range(4):
        R = RB + h * 28
        QF, KA, KB_, VF = R, R + 4, R + 8, R + 12
        SA, SB = R + 20, R + 24
        a(f"v_mfma_f32_16x16x32_bf16 {v(SA,4)}, {v(KA,4)}, {v(QF,4)}, 0")
        a(f"v_mfma_f32_16x16x32_bf16 {v(SB,4)}, {v(KB_,4)}, {v(QF,4)}, 0")
    nop(a, 8)
    stamp(a)
    TT = 28
    for h in range(4):
        R = RB + h * 28
        QF, KA, KB_, VF = R, R + 4, R + 8, R + 12
        S = R + 20
        T8 = TT
        for i in range(4):
            a(f"v_cvt_pk_bf16_f32 v{T8+i}, v{S+2*i}, v{S+2*i+1}")
        for i in range(4):
            a(f"v_lshlrev_b32 v{S+2*i}, 16, v{T8+i}")
            a(f"v_and_b32 v{S+2*i+1}, 0xffff0000, v{T8+i}")
        for i in range(8):
            a(f"v_mul_f32 v{S+i}, s{S_T+4}, v{S+i}")
        for i in range(4):
            a(f"v_cvt_pk_bf16_f32 v{T8+i}, v{S+2*i}, v{S+2*i+1}")
        for i in range(4):
            a(f"v_lshlrev_b32 v{S+2*i}, 16, v{T8+i}")
            a(f"v_and_b32 v{S+2*i+1}, 0xffff0000, v{T8+i}")
        a(f"v_mov_b32 v{T8+4}, s{S_T+5}")
        for i in range(8):
            mk = S_MASK + 2 * i
            a(f"v_cndmask_b32 v{S+i}, v{T8+4}, v{S+i}, s[{mk}:{mk+1}]")
        m = T8 + 5
        a(f"v_max3_f32 v{m}, v{S}, v{S+1}, v{S+2}")
        a(f"v_max3_f32 v{m}, v{m}, v{S+3}, v{S+4}")
        a(f"v_max3_f32 v{m}, v{m}, v{S+5}, v{S+6}")
        a(f"v_max_f32 v{m}, v{m}, v{S+7}")
        a(f"v_mov_b32 v{m+1}, v{m}")
        nop(a, 2)
        a(f"v_permlane16_swap_b32 v{m}, v{m+1}")
        nop(a, 2)
        a(f"v_max_f32 v{m}, v{m}, v{m+1}")
        a(f"v_mov_b32 v{m+1}, v{m}")
        nop(a, 2)
        a(f"v_permlane32_swap_b32 v{m}, v{m+1}")
        nop(a, 2)
        a(f"v_max_f32 v{m}, v{m}, v{m+1}")
        a(f"v_mul_f32 v{m}, s{S_NL}, v{m}")
        for i in range(8):
            a(f"v_fma_f32 v{S+i}, v{S+i}, s{S_L}, v{m}")
        for i in range(8):
            a(f"v_exp_f32 v{S+i}, v{S+i}")
        a("s_nop 0")
        sm = T8 + 5
        a(f"v_add_f32 v{sm}, v{S}, v{S+1}")
        a(f"v_add_f32 v{sm+1}, v{S+2}, v{S+3}")
        a(f"v_add_f32 v{sm}, v{sm}, v{S+4}")
        a(f"v_add_f32 v{sm+1}, v{sm+1}, v{S+5}")
        a(f"v_add_f32 v{sm}, v{sm}, v{S+6}")
        a(f"v_add_f32 v{sm+1}, v{sm+1}, v{S+7}")
        a(f"v_add_f32 v{sm}, v{sm}, v{sm+1}")
        a(f"v_mov_b32 v{sm+1}, v{sm}")
        nop(a, 2)
        a(f"v_permlane16_swap_b32 v{sm}, v{sm+1}")
        nop(a, 2)
        a(f"v_add_f32 v{sm}, v{sm}, v{sm+1}")
        a(f"v_mov_b32 v{sm+1}, v{sm}")
        nop(a, 2)
        a(f"v_permlane32_swap_b32 v{sm}, v{sm+1}")
        nop(a, 2)
        a(f"v_add_f32 v{sm}, v{sm}, v{sm+1}")
        a(f"v_rcp_f32 v{sm}, v{sm}")
        a("s_nop 0")
        for i in range(8):
            a(f"v_mul_f32 v{S+i}, v{S+i}, v{sm}")
        for i in range(4):
            a(f"v_cvt_pk_bf16_f32 v{QF+i}, v{S+2*i}, v{S+2*i+1}")
        nop(a, 2)
        for td in range(2):
            a(f"v_mfma_f32_16x16x32_bf16 {v(S+4*td,4)}, {v(VF+4*td,4)}, {v(QF,4)}, 0")
    nop(a, 8)
    for h in range(4):
        R = RB + h * 28
        S = R + 20
        for i in range(4):
            a(f"v_cvt_pk_bf16_f32 v{R+i}, v{S+2*i}, v{S+2*i+1}")
        a(f"buffer_store_dwordx2 {v(R,2)}, v{OA+2*h}, s[{S_WS}:{S_WS+3}], 0 offen")
    a("s_mov_b64 exec, 0xffff")
    for h in range(4):
        R = RB + h * 28
        a(f"buffer_store_dwordx2 {v(R+2,2)}, v{OA+2*h+1}, s[{S_WS}:{S_WS+3}], 0 offen")
    a("s_mov_b64 exec, -1")
    stamp(a)
    a(f"s_cmp_ge_u32 s{S_WAVE}, 4")
    a("s_cbranch_scc1 K1_gdone")
    a(f"s_lshl_b32 s{S_T}, s{S_I}, 7")
    a(f"s_lshl_b32 s{S_T+1}, s{S_J}, 4")
    a(f"s_add_u32 s{S_T}, s{S_T}, s{S_T+1}")
    a(f"s_lshl_b32 s{S_T+1}, s{S_WAVE}, 2")
    a(f"s_add_u32 s{S_T}, s{S_T}, s{S_T+1}")
    a(f"v_add_u32 v{t}, s{S_T}, v{V_GRP}")
    a(f"v_and_b32 v{t+1}, 15, v{V_LANE}")
    a(f"v_mul_u32_u24 v{t+1}, 80, v{t+1}")
    a(f"v_mul_u32_u24 v{t+2}, 1280, v{t}")
    a(f"v_add_u32 v{t+2}, v{t+2}, v{t+1}")
    GX, GW = 188, 208
    for k in range(5):
        a(f"buffer_load_dwordx4 {v(GX+4*k,4)}, v{t+2}, s[{S_X}:{S_X+3}], 0 offen offset:{16*k}")
        a(f"buffer_load_dwordx4 {v(GW+4*k,4)}, v{t+1}, s[{S_AUX}:{S_AUX+3}], 0 offen offset:{16*k}")
    a("s_waitcnt vmcnt(0)")
    G0 = 28
    a(f"v_mov_b32 v{G0}, 0")
    a(f"v_mov_b32 v{G0+1}, 0")
    for i in range(20):
        a(f"v_lshlrev_b32 v{G0+2}, 16, v{GX+i}")
        a(f"v_and_b32 v{G0+3}, 0xffff0000, v{GX+i}")
        a(f"v_lshlrev_b32 v{G0+4}, 16, v{GW+i}")
        a(f"v_and_b32 v{G0+5}, 0xffff0000, v{GW+i}")
        a(f"v_mul_f32 v{G0+2}, v{G0+2}, v{G0+4}")
        a(f"v_mul_f32 v{G0+3}, v{G0+3}, v{G0+5}")
        a(f"v_cvt_pk_bf16_f32 v{G0+2}, v{G0+2}, v{G0+3}")
        a(f"v_lshlrev_b32 v{G0+3}, 16, v{G0+2}")
        a(f"v_and_b32 v{G0+2}, 0xffff0000, v{G0+2}")
        a(f"v_add_f32 v{G0}, v{G0}, v{G0+3}")
        a(f"v_add_f32 v{G0+1}, v{G0+1}, v{G0+2}")
    a(f"v_add_f32 v{G0}, v{G0}, v{G0+1}")
    for x in (1, 2, 4, 8):
        a(f"ds_swizzle_b32 v{G0+1}, v{G0} offset:{(x << 10) | 0x1f}")
        a("s_waitcnt lgkmcnt(0)")
        a(f"v_add_f32 v{G0}, v{G0}, v{G0+1}")
    a(f"v_cvt_pk_bf16_f32 v{G0}, v{G0}, v{G0}")
    a(f"v_lshlrev_b32 v{G0}, 16, v{G0}")
    a(f"v_mul_f32 v{G0}, s{S_NL}, v{G0}")
    a(f"v_exp_f32 v{G0}, v{G0}")
    a("s_nop 0")
    a(f"v_add_f32 v{G0}, 1.0, v{G0}")
    a(f"v_rcp_f32 v{G0}, v{G0}")
    a("s_nop 0")
    a(f"v_cvt_pk_bf16_f32 v{G0}, v{G0}, v{G0}")
    a(f"v_lshlrev_b32 v{G0}, 16, v{G0}")
    a(f"v_lshlrev_b32 v{t}, 2, v{t}")
    a(f"v_add_u32 v{t}, {WS_G}, v{t}")
    a(f"v_and_b32 v{t+1}, 15, v{V_LANE}")
    a(f"v_cmp_eq_u32 vcc, 0, v{t+1}")
    a(f"s_and_saveexec_b64 s[{S_T+2}:{S_T+3}], vcc")
    a(f"buffer_store_dword v{G0}, v{t}, s[{S_WS}:{S_WS+3}], 0 offen")
    a(f"s_mov_b64 exec, s[{S_T+2}:{S_T+3}]")
    a.label("K1_gdone")

def gen_k1(a):
    name = "k1_kernel"
    kernel_header(a, name)
    NST[0] = 0
    stamp(a)
    gen_prologue(a)
    a(f"s_cmp_eq_u32 s{S_BR}, 0")
    a("s_cbranch_scc0 K1_B")
    gen_wphi_issue(a)
    gen_mainloop(a, halo=False, pre_hook=lambda: gen_wphi_stage(a))
    stamp(a)
    gen_epilogue_A(a)
    stamp_flush(a)
    a("s_endpgm")
    a.label("K1_B")
    NST[0] = 1
    gen_mainloop(a, halo=True)
    stamp(a)
    gen_epilogue_B(a)
    stamp_flush(a)
    a.label("K1_done")
    a("s_endpgm")
    return name
```

```python
from common import *

def nop(a, n):
    while n > 0:
        k = min(n, 16)
        a(f"s_nop {k-1}")
        n -= k

class VM:
    def __init__(self, a):
        self.a = a; self.q = []
    def issue(self, tag):
        self.q.append(tag)
        assert len(self.q) <= 63, "too many outstanding"
    def wait(self, tag):
        idx = max(i for i, t in enumerate(self.q) if t == tag) if tag in self.q else -1
        if idx < 0:
            return
        n = len(self.q) - 1 - idx
        self.a(f"s_waitcnt vmcnt({n})")
        self.q = self.q[idx+1:]

def gen_kred(a):
    name = "kred_kernel"
    kernel_header(a, name)
    a("s_cmp_ge_u32 s2, 32")
    a("s_cbranch_scc1 KR_done")
    a("s_load_dwordx2 s[4:5], s[0:1], 80")
    a("s_waitcnt lgkmcnt(0)")
    srd(a, 8, 4, WS_SIZE)
    a("v_cmp_gt_u32 vcc, 210, v0")
    a("s_and_saveexec_b64 s[12:13], vcc")
    a("s_cbranch_execz KR_done")
    a("v_mul_u32_u24 v1, 6554, v0")
    a("v_lshrrev_b32 v1, 16, v1")
    a("v_mul_u32_u24 v2, 10, v1")
    a("v_sub_u32 v2, v0, v2")
    a("v_mul_u32_u24 v3, 192, v1")
    a("v_lshl_add_u32 v3, v2, 4, v3")
    a("s_mul_i32 s6, s2, 6144")
    a(f"s_add_u32 s6, s6, {WS_PART}")
    a("v_add_u32 v3, s6, v3")
    for rt in range(16):
        a(f"s_mov_b32 s7, {rt*32*6144}")
        a(f"buffer_load_dwordx4 {v(8+4*rt,4)}, v3, s[8:11], s7 offen")
    a("v_mul_u32_u24 v4, 80, v1")
    a("v_lshl_add_u32 v4, v2, 3, v4")
    a("s_mul_i32 s6, s2, 1680")
    a(f"s_add_u32 s6, s6, {WS_KVB}")
    a("v_add_u32 v4, s6, v4")
    a("s_waitcnt vmcnt(0)")
    for rt in range(1, 16):
        for k in range(4):
            a(f"v_add_f32 v{8+k}, v{8+k}, v{8+4*rt+k}")
    a("v_cvt_pk_bf16_f32 v8, v8, v9")
    a("v_cvt_pk_bf16_f32 v9, v10, v11")
    a("buffer_store_dwordx2 v[8:9], v4, s[8:11], 0 offen")
    a.label("KR_done")
    a("s_endpgm")
    return name

V_LANE = 1; V_T = 2; V_GRP = 10
V_KA0 = 11; V_KA1 = 12; V_WB0 = 13; V_WB1 = 14
V_PQ0 = 15; V_PQ1 = 16; V_OB0 = 17; V_OB1 = 18; V_OUT = 19; V_G = 20; V_XA = 21
V_DMA = 24
V_RING = 50
V_KF = 74
V_N = 106
V_OBF = 122
V_OT = 202
V_OF = 212
A_ACCA = 0; A_ACCB = 40; A_PQ = 80
S_WA = 4; S_WB = 8; S_WS = 12; S_OUT = 16; S_KV = 20
S_I = 24; S_JC = 25; S_WAVE = 26; S_RH = 27; S_KH = 28; S_T = 30; S_SOFF = 38; S_PTR = 40
LKV = 0
LBUF = [57344, 57344 + 53248]
K2_LDS = 163840
RING = 6; D = 5

def av(n, w=1):
    return f"a{n}" if w == 1 else f"a[{n}:{n+w-1}]"

STAMPS = False
S_ST = 60
NST = [0]
def stamp(a):
    if STAMPS:
        k = NST[0]; NST[0] += 1
        a(f"s_memtime s[{S_ST+2*k}:{S_ST+2*k+1}]")
def stamp_flush(a):
    if STAMPS:
        n = NST[0]
        a("s_waitcnt lgkmcnt(0) vmcnt(0)")
        a(f"s_memtime s[{S_ST+2*n}:{S_ST+2*n+1}]")
        a("s_waitcnt lgkmcnt(0)")
        a(f"s_lshl_b32 s{S_T}, s2, 3")
        a(f"s_add_u32 s{S_T}, s{S_T}, s{S_WAVE}")
        a(f"s_lshl_b32 s{S_T}, s{S_T}, 6")
        a(f"s_add_u32 s{S_T}, s{S_T}, {WS_DBG + 0x100000}")
        a(f"v_mov_b32 v2, s{S_T}")
        a("s_mov_b64 exec, 1")
        for k in range(n + 1):
            a(f"v_mov_b32 v3, s{S_ST+2*k}")
            a(f"buffer_store_dword v3, v2, s[{S_WS}:{S_WS+3}], 0 offen offset:{4*k}")
            a("s_nop 1")
        a("s_mov_b64 exec, -1")

def gen_k2(a):
    name = "k2_kernel"
    kernel_header(a, name)
    vm = VM(a)
    t = V_T
    NST[0] = 0
    stamp(a)
    a("s_cmp_ge_u32 s2, 256")
    a("s_cbranch_scc1 K2_done")
    a(f"s_load_dwordx2 s[{S_PTR}:{S_PTR+1}], s[0:1], 24")
    a(f"s_load_dwordx2 s[{S_PTR+2}:{S_PTR+3}], s[0:1], 48")
    a(f"s_load_dwordx2 s[{S_PTR+4}:{S_PTR+5}], s[0:1], 64")
    a(f"s_load_dwordx2 s[{S_PTR+6}:{S_PTR+7}], s[0:1], 80")
    a(f"s_and_b32 s{S_T}, s2, 7")
    a(f"s_lshr_b32 s{S_T+1}, s2, 3")
    a(f"s_lshl_b32 s{S_I}, s{S_T}, 2")
    a(f"s_and_b32 s{S_T+2}, s{S_T+1}, 3")
    a(f"s_add_u32 s{S_I}, s{S_I}, s{S_T+2}")
    a(f"s_lshr_b32 s{S_JC}, s{S_T+1}, 2")
    a(f"v_lshrrev_b32 v{t}, 6, v0")
    a(f"v_and_b32 v{V_LANE}, 63, v0")
    a(f"v_readfirstlane_b32 s{S_WAVE}, v{t}")
    a(f"v_lshrrev_b32 v{V_GRP}, 4, v{V_LANE}")
    a("s_nop 3")
    a(f"s_and_b32 s{S_RH}, s{S_WAVE}, 1")
    a(f"s_lshr_b32 s{S_KH}, s{S_WAVE}, 1")
    a("s_waitcnt lgkmcnt(0)")
    srd(a, S_WA, S_PTR, 640 * 1280)
    srd(a, S_WB, S_PTR + 2, 640 * 1280)
    srd(a, S_OUT, S_PTR + 4, 2048 * 1280)
    srd(a, S_WS, S_PTR + 6, WS_SIZE)
    srd(a, S_KV, S_PTR + 6, WS_KVB + 53760)
    a(f"v_lshlrev_b32 v{t}, 4, v{V_LANE}")
    a(f"s_lshl_b32 s{S_T}, s{S_WAVE}, 10")
    for n in range(14):
        a(f"s_add_u32 m0, s{S_T}, {n*4096}")
        a(f"s_add_u32 s{S_SOFF}, s{S_T}, {WS_KVB + n*4096}")
        a(f"buffer_load_dwordx4 v{t}, s[{S_KV}:{S_KV+3}], s{S_SOFF} offen lds")
        vm.issue("KV")
    a(f"s_lshl_b32 s{S_T}, s{S_I}, 6")
    a(f"s_lshl_b32 s{S_T+1}, s{S_RH}, 5")
    a(f"s_add_u32 s{S_T}, s{S_T}, s{S_T+1}")
    a(f"v_and_b32 v{t}, 15, v{V_LANE}")
    a(f"v_add_u32 v{t}, s{S_T}, v{t}")
    a(f"s_lshr_b32 s{S_T+2}, s{S_T}, 4")
    a(f"s_lshl_b32 s{S_T+1}, s{S_T+2}, 5")
    a(f"s_lshl_b32 s{S_T+3}, s{S_KH}, 4")
    a(f"s_add_u32 s{S_T+1}, s{S_T+1}, s{S_T+3}")
    a(f"s_mul_i32 s{S_T+1}, s{S_T+1}, 1280")
    a(f"s_add_u32 s{S_T+1}, s{S_T+1}, {WS_PHIQ}")
    a(f"v_lshlrev_b32 v{t+1}, 4, v{V_LANE}")
    a(f"v_add_u32 v{V_PQ0}, s{S_T+1}, v{t+1}")
    a(f"v_add_u32 v{V_PQ1}, {32*1280}, v{V_PQ0}")
    a(f"s_mul_i32 s{S_T+1}, s{S_T+2}, 20")
    a(f"s_mul_i32 s{S_T+3}, s{S_KH}, 10")
    a(f"s_add_u32 s{S_T+1}, s{S_T+1}, s{S_T+3}")
    a(f"s_lshl_b32 s{S_T+1}, s{S_T+1}, 10")
    a(f"s_add_u32 s{S_T+1}, s{S_T+1}, {WS_OB}")
    a(f"v_add_u32 v{V_OB0}, s{S_T+1}, v{t+1}")
    a(f"v_add_u32 v{V_OB1}, {20*1024}, v{V_OB0}")
    a(f"s_lshl_b32 s{S_T+1}, s{S_KH}, 4")
    a(f"v_add_u32 v{t+2}, s{S_T+1}, v{t}")
    a(f"v_lshlrev_b32 v{t+3}, 2, v{t+2}")
    a(f"v_add_u32 v{t+3}, {WS_G}, v{t+3}")
    a(f"v_mul_u32_u24 v{V_OUT}, 1280, v{t+2}")
    a(f"v_lshl_add_u32 v{V_OUT}, v{V_GRP}, 3, v{V_OUT}")
    a(f"s_mul_i32 s{S_T+1}, s{S_JC}, 160")
    a(f"v_add_u32 v{V_OUT}, s{S_T+1}, v{V_OUT}")
    for j in range(8):
        for rt in range(2):
            for k in range(4):
                a(f"v_accvgpr_write_b32 a{A_PQ + ((j*2+rt)*2+1)*4 + k}, 0")
    for r in range(80):
        a(f"v_accvgpr_write_b32 a{r}, 0")
    def pq_loads(Hh):
        for j in range(8):
            a(f"s_mov_b32 s{S_SOFF+1}, {(8*Hh+j)*1280}")
            for rt in range(2):
                base = V_PQ0 + rt
                a(f"buffer_load_dwordx4 {av(A_PQ+((j*2+rt)*2)*4,4)}, v{base}, s[{S_WS}:{S_WS+3}], s{S_SOFF+1} offen")
                vm.issue(f"PQ{j}")
            a("s_mov_b64 exec, 0xffff")
            for rt in range(2):
                base = V_PQ0 + rt
                a(f"buffer_load_dwordx4 {av(A_PQ+((j*2+rt)*2+1)*4,4)}, v{base}, s[{S_WS}:{S_WS+3}], s{S_SOFF+1} offen offset:1024")
                vm.issue(f"PQ{j}")
            a("s_mov_b64 exec, -1")
    pq_loads(0)
    a(f"s_mul_i32 s{S_T}, s{S_WAVE}, {13*64}")
    a(f"s_mul_i32 s{S_T+1}, s{S_JC}, 160")
    a(f"s_mov_b32 s{S_T+2}, 6554")
    for n in range(13):
        a(f"v_add_u32 v{t}, s{S_T}, v{V_LANE}")
        if n:
            a(f"v_add_u32 v{t}, {n*64}, v{t}")
        a(f"v_mul_u32_u24 v{t+1}, s{S_T+2}, v{t}")
        a(f"v_lshrrev_b32 v{t+1}, 16, v{t+1}")
        a(f"v_mul_u32_u24 v{t+2}, 10, v{t+1}")
        a(f"v_sub_u32 v{t+2}, v{t}, v{t+2}")
        a(f"v_cmp_le_u32 vcc, 160, v{t+1}")
        a("s_nop 1")
        a(f"v_cndmask_b32 v{t+3}, 0, 1, vcc")
        a(f"v_mul_u32_u24 v{t+4}, 160, v{t+3}")
        a(f"v_sub_u32 v{t+1}, v{t+1}, v{t+4}")
        a(f"v_lshrrev_b32 v{t+4}, 5, v{t+1}")
        a(f"v_bfe_u32 v{t+5}, v{t+1}, 4, 1")
        a(f"v_bfe_u32 v{t+6}, v{t+1}, 2, 2")
        a(f"v_and_b32 v{t+7}, 3, v{t+1}")
        a(f"v_lshl_add_u32 v{t+1}, v{t+5}, 2, v{t+7}")
        a(f"v_lshl_add_u32 v{V_XA}, v{t+3}, 4, v{t+1}")
        a(f"v_mul_u32_u24 v{V_XA}, 20, v{V_XA}")
        a(f"v_mad_u32_u24 v{V_XA}, v{t+6}, 5, v{V_XA}")
        a(f"v_add_u32 v{V_XA}, v{V_XA}, v{t+4}")
        a(f"v_mul_u32_u24 v{V_XA}, 1280, v{V_XA}")
        a(f"v_lshl_add_u32 v{V_XA}, v{t+2}, 4, v{V_XA}")
        a(f"v_add_u32 v{V_DMA+n}, s{S_T+1}, v{V_XA}")
        a(f"v_lshl_add_u32 v{t+1}, v{t+6}, 3, v{t+1}")
        a(f"v_lshl_add_u32 v{t+1}, v{t+4}, 5, v{t+1}")
        a(f"v_mul_u32_u24 v{t+3}, 320, v{t+3}")
        a(f"v_add_u32 v{t+1}, v{t+1}, v{t+3}")
        a(f"v_mul_u32_u24 v{t+1}, 1280, v{t+1}")
        a(f"v_lshl_add_u32 v{t+1}, v{t+2}, 4, v{t+1}")
        a(f"v_add_u32 v{V_DMA+13+n}, s{S_T+1}, v{t+1}")
        a(f"v_cmp_le_u32 vcc, 3200, v{t}")
        a(f"v_mov_b32 v{t+1}, 0x7ff00000")
        a("s_nop 0")
        a(f"v_cndmask_b32 v{V_DMA+n}, v{V_DMA+n}, v{t+1}, vcc")
        a(f"v_cndmask_b32 v{V_DMA+13+n}, v{V_DMA+13+n}, v{t+1}, vcc")
    def stage(phase):
        buf = LBUF[phase % 2]
        isA = phase % 2 == 0
        ph = phase // 2
        sr = S_WA if isA else S_WB
        a(f"s_mul_i32 s{S_T}, s{S_WAVE}, {13*1024}")
        a(f"s_mov_b32 s{S_SOFF}, {ph*160*1280}")
        for n in range(13):
            a(f"s_add_u32 m0, s{S_T}, {buf + n*1024}")
            a("s_nop 0")
            a(f"buffer_load_dwordx4 v{V_DMA + (0 if isA else 13) + n}, s[{sr}:{sr+3}], s{S_SOFF} offen lds")
            vm.issue(f"P{phase}")
    stage(0)
    a(f"buffer_load_dword v{V_G}, v{t+3+0 if False else V_T+3}, s[{S_WS}:{S_WS+3}], 0 offen") if False else None
    a(f"s_lshl_b32 s{S_T}, s{S_I}, 6")
    a(f"s_lshl_b32 s{S_T+1}, s{S_RH}, 5")
    a(f"s_add_u32 s{S_T}, s{S_T}, s{S_T+1}")
    a(f"s_lshl_b32 s{S_T+1}, s{S_KH}, 4")
    a(f"s_add_u32 s{S_T}, s{S_T}, s{S_T+1}")
    a(f"v_and_b32 v{t}, 15, v{V_LANE}")
    a(f"v_add_u32 v{t}, s{S_T}, v{t}")
    a(f"v_lshlrev_b32 v{t}, 2, v{t}")
    a(f"v_add_u32 v{t}, {WS_G}, v{t}")
    a(f"buffer_load_dword v{V_G}, v{t}, s[{S_WS}:{S_WS+3}], 0 offen")
    vm.issue("G")
    a(f"v_and_b32 v{t}, 3, v{V_LANE}")
    a(f"v_bfe_u32 v{t+1}, v{V_LANE}, 2, 2")
    a(f"v_mad_u32_u24 v{t+2}, v{t+1}, 5, v{t}")
    a(f"v_mul_u32_u24 v{t+2}, 80, v{t+2}")
    a(f"v_lshl_add_u32 v{t+2}, v{V_GRP}, 4, v{t+2}")
    a(f"s_mul_i32 s{S_T}, s{S_KH}, {16*1680}")
    a(f"v_add_u32 v{V_KA0}, s{S_T}, v{t+2}")
    a(f"v_mad_u32_u24 v{t+2}, v{t+1}, 5, 4")
    a(f"v_mov_b32 v{t+3}, 20")
    a(f"v_cmp_eq_u32 vcc, 0, v{t}")
    a("s_nop 1")
    a(f"v_cndmask_b32 v{t+2}, v{t+3}, v{t+2}, vcc")
    a(f"v_mul_u32_u24 v{t+2}, 80, v{t+2}")
    a(f"v_lshl_add_u32 v{t+2}, v{V_GRP}, 4, v{t+2}")
    a(f"v_add_u32 v{V_KA1}, s{S_T}, v{t+2}")
    a(f"v_lshrrev_b32 v{t+2}, 2, v{V_LANE}")
    a(f"v_mul_u32_u24 v{t+2}, 160, v{t+2}")
    a(f"v_lshl_add_u32 v{t+2}, v{t}, 3, v{t+2}")
    a(f"s_mul_i32 s{S_T}, s{S_KH}, 25600")
    a(f"v_add_u32 v{t+2}, s{S_T}, v{t+2}")
    a(f"v_add_u32 v{V_WB0}, {LBUF[0]}, v{t+2}")
    a(f"v_add_u32 v{V_WB1}, {LBUF[1]}, v{t+2}")
    a(f"s_mov_b32 s{S_T+7}, 0x358637bd")

    def ob_loads(ph):
        for ks in range(5):
            a(f"s_mov_b32 s{S_SOFF+1}, {(5*ph+ks)*1024}")
            for rt in range(2):
                a(f"buffer_load_dwordx4 {v(V_OBF+((ph*5+ks)*2+rt)*4,4)}, v{V_OB0+rt}, s[{S_WS}:{S_WS+3}], s{S_SOFF+1} offen")
                vm.issue(f"OB{ph}")

    def kf_reads(Hh, j):
        kb = V_KF + (j % 2) * 16
        for tl in range(2):
            for ks in range(2):
                a(f"ds_read_b128 {v(kb+(tl*2+ks)*4,4)}, v{V_KA0+tl} offset:{(8*Hh+j)*1680 + ks*64}")

    def o_A(Hh, hooks):
        kf_reads(Hh, 0)
        for j in range(8):
            if j + 1 < 8:
                kf_reads(Hh, j + 1)
                a("s_waitcnt lgkmcnt(4)")
            else:
                a("s_waitcnt lgkmcnt(0)")
            vm.wait(f"PQ{j}")
            kb = V_KF + (j % 2) * 16
            for rt in range(2):
                for tl in range(2):
                    d = V_N + (rt * 2 + tl) * 4
                    a(f"v_mfma_f32_16x16x32_bf16 {v(d,4)}, {v(kb+(tl*2)*4,4)}, {av(A_PQ+((j*2+rt)*2)*4,4)}, 0")
                    a(f"v_mfma_f32_16x16x32_bf16 {v(d,4)}, {v(kb+(tl*2+1)*4,4)}, {av(A_PQ+((j*2+rt)*2+1)*4,4)}, {v(d,4)}")
            if j in hooks:
                hooks[j]()
            nop(a, 8)
            for rt in range(2):
                n0 = V_N + rt * 8
                a(f"v_cvt_pk_bf16_f32 v{n0+6}, v{n0}, v{n0+1}")
                a(f"v_cvt_pk_bf16_f32 v{n0+7}, v{n0+2}, v{n0+3}")
                a(f"v_cvt_pk_bf16_f32 v{n0+5}, v{n0+4}, v{n0+5}")
                a(f"v_lshlrev_b32 v{n0}, 16, v{n0+6}")
                a(f"v_and_b32 v{n0+1}, 0xffff0000, v{n0+6}")
                a(f"v_lshlrev_b32 v{n0+2}, 16, v{n0+7}")
                a(f"v_and_b32 v{n0+3}, 0xffff0000, v{n0+7}")
                a(f"v_lshlrev_b32 v{n0+4}, 16, v{n0+5}")
                a(f"v_and_b32 v{n0+5}, 0xffff0000, v{n0+5}")
                a(f"v_add_f32 v{n0+5}, s{S_T+7}, v{n0+5}")
                a(f"v_cvt_pk_bf16_f32 v{n0+5}, v{n0+5}, v{n0+5}")
                a(f"v_lshlrev_b32 v{n0+5}, 16, v{n0+5}")
                a(f"v_rcp_f32 v{n0+5}, v{n0+5}")
                a("s_nop 0")
                for u in range(5):
                    if j % 2 == 0:
                        a(f"v_mul_f32 v{V_OT+rt*5+u}, v{n0+u}, v{n0+5}")
                    else:
                        a(f"v_mul_f32 v{n0+u}, v{n0+u}, v{n0+5}")
                if j % 2 == 1:
                    for u in range(5):
                        a(f"v_cvt_pk_bf16_f32 v{V_OF+(rt*5+u)*4 + j//2}, v{V_OT+rt*5+u}, v{n0+u}")

    def proj(phase, hooks):
        isA = phase % 2 == 0
        ph = phase // 2
        base = V_WB0 + (phase % 2)
        items = [(u, T) for u in range(5) for T in range(5)]
        def reads(N):
            u, T = items[N]
            slot = V_RING + (N % RING) * 4
            for qq in range(2):
                a(f"ds_read_b64_tr_b16 {v(slot+2*qq,2)}, v{base} offset:{(u*2+qq)*2560 + T*32}")
        for N in range(D):
            reads(N)
        for N in range(25):
            if N + D < 25:
                reads(N + D)
                a(f"s_waitcnt lgkmcnt({2*D})")
            else:
                a(f"s_waitcnt lgkmcnt({2*(24-N)})")
            u, T = items[N]
            slot = V_RING + (N % RING) * 4
            for rt in range(2):
                if isA:
                    acc = A_ACCA + (rt * 5 + T) * 4
                    b = v(V_OF + (rt * 5 + u) * 4, 4)
                else:
                    acc = A_ACCB + (rt * 5 + T) * 4
                    b = v(V_OBF + ((ph * 5 + u) * 2 + rt) * 4, 4)
                a(f"v_mfma_f32_16x16x32_bf16 {av(acc,4)}, {v(slot,4)}, {b}, {av(acc,4)}")
            if N in hooks:
                hooks[N]()

    stamp(a)
    vm.wait("KV")
    a("s_barrier")
    stamp(a)
    o_A(0, {1: lambda: ob_loads(0), 4: lambda: stage(1)})
    stamp(a)
    vm.wait("P0")
    a("s_barrier")
    nop(a, 2)
    proj(0, {2: lambda: pq_loads(1)})
    stamp(a)
    vm.wait("P1")
    a("s_barrier")
    stage(2)
    vm.wait("OB0")
    proj(1, {3: lambda: ob_loads(1)})
    stamp(a)
    a("s_barrier")
    o_A(1, {2: lambda: stage(3)})
    stamp(a)
    vm.wait("P2")
    a("s_barrier")
    nop(a, 2)
    proj(2, {})
    stamp(a)
    vm.wait("P3")
    a("s_barrier")
    vm.wait("OB1")
    proj(3, {})
    stamp(a)
    a("s_barrier")
    nop(a, 8)
    a(f"v_lshlrev_b32 v{t}, 4, v{V_LANE}")
    a(f"s_mul_i32 s{S_T}, s{S_WAVE}, 10240")
    a(f"v_add_u32 v{t+1}, s{S_T}, v{t}")
    a(f"s_xor_b32 s{S_T+1}, s{S_WAVE}, 2")
    a(f"s_mul_i32 s{S_T+1}, s{S_T+1}, 10240")
    a(f"v_add_u32 v{t+2}, s{S_T+1}, v{t}")
    KA = 24
    KB = 44
    XA = 64; XB = 84
    a(f"s_cmp_eq_u32 s{S_KH}, 0")
    a("s_cbranch_scc0 K2_x1")
    for kh in range(2):
        if kh == 1:
            a.label("K2_x1")
        snd = 1 - kh
        for T in range(5):
            a(f"ds_write_b128 v{t+1}, {av(A_ACCA+(snd*5+T)*4,4)} offset:{T*1024}")
            a(f"ds_write_b128 v{t+1}, {av(A_ACCB+(snd*5+T)*4,4)} offset:{(5+T)*1024}")
        for i in range(20):
            a(f"v_accvgpr_read_b32 v{KA+i}, a{A_ACCA+kh*20+i}")
            a(f"v_accvgpr_read_b32 v{KB+i}, a{A_ACCB+kh*20+i}")
        if kh == 0:
            a("s_branch K2_x2")
    a.label("K2_x2")
    a("s_waitcnt lgkmcnt(0)")
    a("s_barrier")
    for T in range(5):
        a(f"ds_read_b128 {v(XA+4*T,4)}, v{t+2} offset:{T*1024}")
        a(f"ds_read_b128 {v(XB+4*T,4)}, v{t+2} offset:{(5+T)*1024}")
    vm.wait("G")
    a(f"v_sub_f32 v{t+3}, 1.0, v{V_G}")
    a(f"v_cvt_pk_bf16_f32 v{t+3}, v{t+3}, v{t+3}")
    a(f"v_lshlrev_b32 v{t+3}, 16, v{t+3}")
    a("s_waitcnt lgkmcnt(0)")
    for i in range(20):
        a(f"v_add_f32 v{KA+i}, v{KA+i}, v{XA+i}")
        a(f"v_add_f32 v{KB+i}, v{KB+i}, v{XB+i}")
    def rnd(base, n, tmp):
        for i in range(n // 2):
            a(f"v_cvt_pk_bf16_f32 v{tmp+i}, v{base+2*i}, v{base+2*i+1}")
        for i in range(n // 2):
            a(f"v_lshlrev_b32 v{base+2*i}, 16, v{tmp+i}")
            a(f"v_and_b32 v{base+2*i+1}, 0xffff0000, v{tmp+i}")
    rnd(KA, 20, XA); rnd(KB, 20, XB)
    for i in range(20):
        a(f"v_mul_f32 v{KA+i}, v{KA+i}, v{V_G}")
        a(f"v_mul_f32 v{KB+i}, v{KB+i}, v{t+3}")
    rnd(KA, 20, XA); rnd(KB, 20, XB)
    for i in range(20):
        a(f"v_add_f32 v{KA+i}, v{KA+i}, v{KB+i}")
    for i in range(10):
        a(f"v_cvt_pk_bf16_f32 v{XA+i}, v{KA+2*i}, v{KA+2*i+1}")
    for T in range(5):
        a(f"buffer_store_dwordx2 {v(XA+2*T,2)}, v{V_OUT}, s[{S_OUT}:{S_OUT+3}], 0 offen offset:{32*T}")
    stamp_flush(a)
    a.label("K2_done")
    a("s_endpgm")
    return name
```

```python
from common import *
from k2 import VM, nop

WS_OA = 0x1800000

def av(n, w=1):
    return f"a{n}" if w == 1 else f"a[{n}:{n+w-1}]"

def gen_kmid(a):
    name = "kmid_kernel"
    kernel_header(a, name)
    S_WS = 8; S_H = 12; S_RB = 13; S_WAVE = 14; S_T = 16
    V_LANE = 1; V_GRP = 2; t = 3
    a("s_cmp_ge_u32 s2, 256")
    a("s_cbranch_scc1 KM_done")
    a("s_load_dwordx2 s[4:5], s[0:1], 80")
    a(f"s_and_b32 s{S_H}, s2, 31")
    a(f"s_lshr_b32 s{S_RB}, s2, 5")
    a(f"v_lshrrev_b32 v{t}, 6, v0")
    a(f"v_and_b32 v{V_LANE}, 63, v0")
    a(f"v_readfirstlane_b32 s{S_WAVE}, v{t}")
    a(f"v_lshrrev_b32 v{V_GRP}, 4, v{V_LANE}")
    a(f"v_mul_u32_u24 v{t}, 6554, v0")
    a(f"v_lshrrev_b32 v{t}, 16, v{t}")
    a(f"v_mul_u32_u24 v{t+1}, 10, v{t}")
    a(f"v_sub_u32 v{t+1}, v0, v{t+1}")
    a(f"v_mul_u32_u24 v{t+2}, 192, v{t}")
    a(f"v_lshl_add_u32 v{t+2}, v{t+1}, 4, v{t+2}")
    a(f"v_mul_u32_u24 v{t+3}, 80, v{t}")
    a(f"v_lshl_add_u32 v{t+3}, v{t+1}, 3, v{t+3}")
    a(f"s_mul_i32 s{S_T}, s{S_H}, 6144")
    a(f"s_add_u32 s{S_T}, s{S_T}, {WS_PART}")
    a(f"v_add_u32 v{t+2}, s{S_T}, v{t+2}")
    a("s_waitcnt lgkmcnt(0)")
    srd(a, S_WS, 4, WS_SIZE)
    PB = 16
    a("v_cmp_gt_u32 vcc, 210, v0")
    a(f"s_and_saveexec_b64 s[{S_T+2}:{S_T+3}], vcc")
    a("s_cbranch_execz KM_a")
    for rt in range(16):
        a(f"s_mov_b32 s{S_T+4}, {rt*32*6144}")
        a(f"buffer_load_dwordx4 {v(PB+4*rt,4)}, v{t+2}, s[{S_WS}:{S_WS+3}], s{S_T+4} offen")
    a.label("KM_a")
    a(f"s_mov_b64 exec, s[{S_T+2}:{S_T+3}]")
    PQ = 80
    for i in range(4):
        for k in range(4):
            a(f"v_mov_b32 v{PQ+(i*2+1)*4+k}, 0")
    a(f"s_lshl_b32 s{S_T}, s{S_RB}, 4")
    a(f"s_lshl_b32 s{S_T+1}, s{S_WAVE}, 2")
    a(f"s_add_u32 s{S_T}, s{S_T}, s{S_T+1}")
    a(f"s_lshl_b32 s{S_T+1}, s{S_T}, 5")
    a(f"s_add_u32 s{S_T+1}, s{S_T+1}, s{S_H}")
    a(f"s_mul_i32 s{S_T+1}, s{S_T+1}, 1280")
    a(f"s_add_u32 s{S_T+1}, s{S_T+1}, {WS_PHIQ}")
    a(f"v_lshlrev_b32 v{t+4}, 4, v{V_LANE}")
    a(f"v_add_u32 v{t+4}, s{S_T+1}, v{t+4}")
    for i in range(4):
        a(f"s_mov_b32 s{S_T+4}, {i*32*1280}")
        a(f"buffer_load_dwordx4 {v(PQ+(i*2)*4,4)}, v{t+4}, s[{S_WS}:{S_WS+3}], s{S_T+4} offen")
    a("s_mov_b64 exec, 0xffff")
    for i in range(4):
        a(f"s_mov_b32 s{S_T+4}, {i*32*1280}")
        a(f"buffer_load_dwordx4 {v(PQ+(i*2+1)*4,4)}, v{t+4}, s[{S_WS}:{S_WS+3}], s{S_T+4} offen offset:1024")
    a("s_mov_b64 exec, -1")
    a(f"v_mov_b32 v{t+5}, 0")
    a(f"v_mov_b32 v{t+6}, 0")
    a(f"v_lshlrev_b32 v{t+7}, 3, v{V_LANE}")
    a(f"ds_write_b64 v{t+7}, {v(t+5,2)} offset:1680")
    OA = 112
    a(f"s_mul_i32 s{S_T+1}, s{S_T}, 20480")
    a(f"s_add_u32 s{S_T+1}, s{S_T+1}, {WS_OA}")
    a(f"s_mul_i32 s{S_T+4}, s{S_H}, 20")
    a(f"v_and_b32 v{t+5}, 15, v{V_LANE}")
    a(f"v_lshlrev_b32 v{t+5}, 4, v{t+5}")
    a(f"v_add_u32 v{t+5}, s{S_T+1}, v{t+5}")
    a(f"v_lshlrev_b32 v{t+6}, 2, v{V_GRP}")
    a(f"v_add_u32 v{t+6}, s{S_T+4}, v{t+6}")
    for td in range(2):
        o = OA + td
        a(f"v_add_u32 v{t+7}, {16*td}, v{t+6}")
        a(f"v_lshrrev_b32 v{t+8}, 5, v{t+7}")
        a(f"v_lshl_add_u32 v{o}, v{t+8}, 10, v{t+5}")
        a(f"v_bfe_u32 v{t+8}, v{t+7}, 3, 2")
        a(f"v_lshl_add_u32 v{o}, v{t+8}, 8, v{o}")
        a(f"v_bfe_u32 v{t+8}, v{t+7}, 2, 1")
        a(f"v_lshl_add_u32 v{o}, v{t+8}, 3, v{o}")
    a(f"v_and_b32 v{t+5}, 15, v{V_LANE}")
    a(f"v_mul_u32_u24 v{t+6}, 80, v{t+5}")
    a(f"v_lshl_add_u32 v{OA+2}, v{V_GRP}, 4, v{t+6}")
    a(f"v_add_u32 v{t+6}, 16, v{t+5}")
    a(f"v_min_u32 v{t+6}, 20, v{t+6}")
    a(f"v_mul_u32_u24 v{t+6}, 80, v{t+6}")
    a(f"v_lshl_add_u32 v{OA+3}, v{V_GRP}, 4, v{t+6}")
    a("v_cmp_gt_u32 vcc, 210, v0")
    a(f"s_and_saveexec_b64 s[{S_T+2}:{S_T+3}], vcc")
    a("s_cbranch_execz KM_b")
    a("s_waitcnt vmcnt(8)")
    for rt in range(1, 16):
        for k in range(4):
            a(f"v_add_f32 v{PB+k}, v{PB+k}, v{PB+4*rt+k}")
    a(f"v_cvt_pk_bf16_f32 v{PB}, v{PB}, v{PB+1}")
    a(f"v_cvt_pk_bf16_f32 v{PB+1}, v{PB+2}, v{PB+3}")
    a(f"ds_write_b64 v{t+3}, {v(PB,2)}")
    a.label("KM_b")
    a(f"s_mov_b64 exec, s[{S_T+2}:{S_T+3}]")
    a("s_waitcnt lgkmcnt(0)")
    a("s_barrier")
    KF = 16
    for tl in range(2):
        for ks in range(2):
            a(f"ds_read_b128 {v(KF+(tl*2+ks)*4,4)}, v{OA+2+tl} offset:{ks*64}")
    a(f"s_mov_b32 s{S_T+7}, 0x358637bd")
    a("s_waitcnt lgkmcnt(0) vmcnt(0)")
    N = 32
    for i in range(4):
        for tl in range(2):
            a(f"v_mfma_f32_16x16x32_bf16 {v(N+i*8+tl*4,4)}, {v(KF+(tl*2)*4,4)}, {v(PQ+(i*2)*4,4)}, 0")
    for i in range(4):
        for tl in range(2):
            d = N + i * 8 + tl * 4
            a(f"v_mfma_f32_16x16x32_bf16 {v(d,4)}, {v(KF+(tl*2+1)*4,4)}, {v(PQ+(i*2+1)*4,4)}, {v(d,4)}")
    nop(a, 8)
    a(f"v_cmp_gt_u32 vcc, 16, v{V_LANE}")
    T2 = 64
    for i in range(4):
        n0 = N + i * 8
        a(f"v_mov_b32 v{T2+2*i}, v{n0+4}")
        a(f"v_mov_b32 v{T2+2*i+1}, v{n0+4}")
    nop(a, 2)
    for i in range(4):
        a(f"v_permlane16_swap_b32 v{T2+2*i}, v{T2+2*i+1}")
    nop(a, 2)
    for i in range(4):
        n0 = N + i * 8
        dn = T2 + 2 * i
        a(f"v_cndmask_b32 v{dn}, v{n0+4}, v{dn+1}, vcc")
        a(f"v_cvt_pk_bf16_f32 v{dn}, v{dn}, v{dn}")
        a(f"v_lshlrev_b32 v{dn}, 16, v{dn}")
        a(f"v_add_f32 v{dn}, s{S_T+7}, v{dn}")
        a(f"v_cvt_pk_bf16_f32 v{dn}, v{dn}, v{dn}")
        a(f"v_lshlrev_b32 v{dn}, 16, v{dn}")
        a(f"v_rcp_f32 v{dn}, v{dn}")
        for k in range(4):
            a(f"v_cvt_pk_bf16_f32 v{PQ+k}, v{n0+2*k}, v{n0+2*k+1}")
        for k in range(4):
            a(f"v_lshlrev_b32 v{n0+2*k}, 16, v{PQ+k}")
            a(f"v_and_b32 v{n0+2*k+1}, 0xffff0000, v{PQ+k}")
        for k in range(8):
            a(f"v_mul_f32 v{n0+k}, v{n0+k}, v{dn}")
        for k in range(4):
            a(f"v_cvt_pk_bf16_f32 v{n0+k}, v{n0+2*k}, v{n0+2*k+1}")
        a(f"s_mov_b32 s{S_T+4}, {i*20480}")
        a(f"buffer_store_dwordx2 {v(n0,2)}, v{OA}, s[{S_WS}:{S_WS+3}], s{S_T+4} offen")
    a("s_mov_b64 exec, 0xffff")
    for i in range(4):
        n0 = N + i * 8
        a(f"s_mov_b32 s{S_T+4}, {i*20480}")
        a(f"buffer_store_dwordx2 {v(n0+2,2)}, v{OA+1}, s[{S_WS}:{S_WS+3}], s{S_T+4} offen")
    a.label("KM_done")
    a("s_endpgm")
    return name

V_LANE = 1; V_T = 2; V_GRP = 10; V_WB = 11; V_OB0 = 12; V_OB1 = 13; V_G = 14; V_WB2 = 22
V_DMA = 16
V_RING = 24
V_OBF = 48
V_ACC = 128
S_W = 4; S_WS = 12; S_OUT = 16
S_I = 24; S_JC = 25; S_WAVE = 26; S_RH = 27; S_KQ = 28; S_ROT = 29; S_T = 30; S_SOFF = 38; S_PTR = 40
S_WA = 48; S_WB_ = 52
K3_LDS = 163840
RING = 6; D = 5
STAMPS = False
S_ST = 60
NST = [0]
def stamp(a):
    if STAMPS:
        k = NST[0]; NST[0] += 1
        a(f"s_memtime s[{S_ST+2*k}:{S_ST+2*k+1}]")
def stamp_flush(a):
    if STAMPS:
        n = NST[0]
        a("s_waitcnt lgkmcnt(0) vmcnt(0)")
        a(f"s_memtime s[{S_ST+2*n}:{S_ST+2*n+1}]")
        a("s_waitcnt lgkmcnt(0)")
        a(f"s_lshl_b32 s{S_T}, s2, 3")
        a(f"s_add_u32 s{S_T}, s{S_T}, s{S_WAVE}")
        a(f"s_lshl_b32 s{S_T}, s{S_T}, 6")
        a(f"s_add_u32 s{S_T}, s{S_T}, {WS_DBG + 0x100000}")
        a(f"v_mov_b32 v2, s{S_T}")
        a("s_mov_b64 exec, 1")
        for k in range(n + 1):
            a(f"v_mov_b32 v3, s{S_ST+2*k}")
            a(f"buffer_store_dword v3, v2, s[{S_WS}:{S_WS+3}], 0 offen offset:{4*k}")
            a("s_nop 1")
        a("s_mov_b64 exec, -1")

def gen_k3(a):
    name = "k3_kernel"
    kernel_header(a, name)
    vm = VM(a)
    t = V_T
    NST[0] = 0
    stamp(a)
    a("s_cmp_ge_u32 s2, 256")
    a("s_cbranch_scc1 K3_done")
    a(f"s_load_dwordx2 s[{S_PTR}:{S_PTR+1}], s[0:1], 24")
    a(f"s_load_dwordx2 s[{S_PTR+2}:{S_PTR+3}], s[0:1], 48")
    a(f"s_load_dwordx2 s[{S_PTR+4}:{S_PTR+5}], s[0:1], 64")
    a(f"s_load_dwordx2 s[{S_PTR+6}:{S_PTR+7}], s[0:1], 80")
    a(f"s_and_b32 s{S_T}, s2, 7")
    a(f"s_lshr_b32 s{S_T+1}, s2, 3")
    a(f"s_lshl_b32 s{S_I}, s{S_T}, 2")
    a(f"s_and_b32 s{S_ROT}, s{S_T+1}, 3")
    a(f"s_add_u32 s{S_I}, s{S_I}, s{S_ROT}")
    a(f"s_lshr_b32 s{S_JC}, s{S_T+1}, 2")
    a(f"v_lshrrev_b32 v{t}, 6, v0")
    a(f"v_and_b32 v{V_LANE}, 63, v0")
    a(f"v_readfirstlane_b32 s{S_WAVE}, v{t}")
    a(f"v_lshrrev_b32 v{V_GRP}, 4, v{V_LANE}")
    a(f"s_mul_i32 s{S_T+1}, s{S_JC}, 160")
    a(f"s_mov_b32 s{S_T+2}, 6554")
    a(f"s_and_b32 s{S_RH}, s{S_WAVE}, 1")
    a(f"s_lshr_b32 s{S_KQ}, s{S_WAVE}, 1")
    for n in range(5):
        a(f"v_add_u32 v{t}, {n*64}, v{V_LANE}")
        a(f"v_mul_u32_u24 v{t+1}, s{S_T+2}, v{t}")
        a(f"v_lshrrev_b32 v{t+1}, 16, v{t+1}")
        a(f"v_mul_u32_u24 v{t+2}, 10, v{t+1}")
        a(f"v_sub_u32 v{t+2}, v{t}, v{t+2}")
        a(f"v_lshlrev_b32 v{t+2}, 4, v{t+2}")
        a(f"v_add_u32 v{t+2}, s{S_T+1}, v{t+2}")
        a(f"v_bfe_u32 v{t+3}, v{t+1}, 4, 1")
        a(f"v_bfe_u32 v{t+4}, v{t+1}, 2, 2")
        a(f"v_and_b32 v{t+5}, 3, v{t+1}")
        a(f"v_lshl_add_u32 v{t+5}, v{t+3}, 2, v{t+5}")
        a(f"v_lshl_add_u32 v{t+6}, v{t+4}, 3, v{t+5}")
        a(f"v_mul_u32_u24 v{t+6}, 1280, v{t+6}")
        a(f"v_add_u32 v{V_DMA+n}, v{t+6}, v{t+2}")
    a("s_waitcnt lgkmcnt(0)")
    srd(a, S_WA, S_PTR, 640 * 1280)
    srd(a, S_WB_, S_PTR + 2, 640 * 1280)
    a(f"s_cmp_lt_u32 s{S_KQ}, 2")
    for k in range(4):
        a(f"s_cselect_b32 s{S_W+k}, s{S_WA+k}, s{S_WB_+k}")
    def step_ks(i, dst):
        if i < 4:
            a(f"s_add_u32 s{dst}, s{S_ROT}, {i}")
            a(f"s_and_b32 s{dst}, s{dst}, 3")
            a(f"s_lshl_b32 s{dst}, s{dst}, 1")
        else:
            a(f"s_mov_b32 s{dst}, 8")
    def block(i):
        step_ks(i, S_T)
        a(f"s_add_u32 s{S_T}, s{S_T}, s{S_RH}")
        a(f"s_and_b32 s{S_T+2}, s{S_KQ}, 1")
        a(f"s_mul_i32 s{S_T+2}, s{S_T+2}, 10")
        a(f"s_add_u32 s{S_T}, s{S_T}, s{S_T+2}")
        a(f"s_mul_i32 s{S_SOFF}, s{S_T}, {32*1280}")
        a(f"s_lshl_b32 s{S_T+1}, s{S_KQ}, 3")
        a(f"s_add_u32 s{S_T+1}, s{S_T+1}, s{S_RH}")
        a(f"s_add_u32 s{S_T+1}, s{S_T+1}, {(i%4)*2}")
        a(f"s_mul_i32 s{S_T+1}, s{S_T+1}, 5120")
        for n in range(5):
            a(f"s_add_u32 m0, s{S_T+1}, {n*1024}")
            a("s_nop 0")
            a(f"buffer_load_dwordx4 v{V_DMA+n}, s[{S_W}:{S_W+3}], s{S_SOFF} offen lds")
            vm.issue(f"S{i}")
    block(0)
    srd(a, S_WS, S_PTR + 6, WS_SIZE)
    srd(a, S_OUT, S_PTR + 4, 2048 * 1280)
    a(f"s_lshl_b32 s{S_T}, s{S_I}, 2")
    a(f"s_lshl_b32 s{S_T+1}, s{S_RH}, 1")
    a(f"s_add_u32 s{S_T}, s{S_T}, s{S_T+1}")
    a(f"s_mul_i32 s{S_T+1}, s{S_T}, 20")
    a(f"s_and_b32 s{S_T+2}, s{S_KQ}, 1")
    a(f"s_mul_i32 s{S_T+2}, s{S_T+2}, 10")
    a(f"s_add_u32 s{S_T+1}, s{S_T+1}, s{S_T+2}")
    a(f"s_lshl_b32 s{S_T+1}, s{S_T+1}, 10")
    a(f"s_cmp_lt_u32 s{S_KQ}, 2")
    a(f"s_mov_b32 s{S_T+3}, {WS_OB}")
    a(f"s_cselect_b32 s{S_T+2}, {WS_OA}, s{S_T+3}")
    a(f"s_add_u32 s{S_T+1}, s{S_T+1}, s{S_T+2}")
    a(f"v_lshlrev_b32 v{t+1}, 4, v{V_LANE}")
    a(f"v_add_u32 v{V_OB0}, s{S_T+1}, v{t+1}")
    a(f"v_add_u32 v{V_OB1}, {20*1024}, v{V_OB0}")
    def ob_loads(i, tag):
        step_ks(i, S_SOFF + 1)
        a(f"s_lshl_b32 s{S_SOFF+1}, s{S_SOFF+1}, 10")
        for e in range(2):
            for rt in range(2):
                a(f"buffer_load_dwordx4 {v(V_OBF+((2*i+e)*2+rt)*4,4)}, v{V_OB0+rt}, s[{S_WS}:{S_WS+3}], s{S_SOFF+1} offen offset:{e*1024}")
                vm.issue(tag)
    ob_loads(0, "S0")
    block(1)
    ob_loads(1, "S1")
    a(f"s_lshl_b32 s{S_T}, s{S_I}, 6")
    a(f"s_lshl_b32 s{S_T+1}, s{S_RH}, 5")
    a(f"s_add_u32 s{S_T}, s{S_T}, s{S_T+1}")
    a(f"v_and_b32 v{t+3}, 15, v{V_LANE}")
    a(f"v_add_u32 v{t+3}, s{S_T}, v{t+3}")
    a(f"v_lshlrev_b32 v{t+3}, 2, v{t+3}")
    a(f"v_add_u32 v{t+3}, {WS_G}, v{t+3}")
    a(f"buffer_load_dword v{V_G}, v{t+3}, s[{S_WS}:{S_WS+3}], 0 offen")
    vm.issue("G")
    a(f"buffer_load_dword v{V_G+1}, v{t+3}, s[{S_WS}:{S_WS+3}], 0 offen offset:64")
    vm.issue("G")
    a(f"v_and_b32 v{t}, 3, v{V_LANE}")
    a(f"v_lshrrev_b32 v{t+2}, 2, v{V_LANE}")
    a(f"v_mul_u32_u24 v{t+2}, 160, v{t+2}")
    a(f"v_lshl_add_u32 v{t+2}, v{t}, 3, v{t+2}")
    a(f"s_mul_i32 s{S_T}, s{S_KQ}, 40960")
    a(f"v_add_u32 v{V_WB}, s{S_T}, v{t+2}")
    stamp(a)
    items = [(b, T) for b in range(10) for T in range(5)]
    n_it = len(items)
    def reads(N):
        b, T = items[N]
        slot = V_RING + (N % RING) * 4
        for qq in range(2):
            a(f"ds_read_b64_tr_b16 {v(slot+2*qq,2)}, v{V_WB} offset:{(b%8)*5120 + qq*2560 + T*32}")
    nxt = 0
    ready = 0
    for N in range(n_it):
        b, T = items[N]
        stp = (N + D) // 10
        if ready <= N + D and ready < n_it and (N % 10 >= 10 - D + 2 or ready <= N):
            i = ready // 10
            if i == 1:
                pass
            if i == 4:
                vm.wait("S4", ) if False else None
            vm.wait(f"S{i}")
            if i == 4:
                vm.wait("O4")
            if i >= 1:
                a("s_waitcnt lgkmcnt(0)")
            a("s_barrier")
            if i == 1:
                block(4)
            if i == 0:
                stamp(a)
            ready += 10
        lim = min(N + D, ready - 1)
        while nxt <= lim:
            reads(nxt); nxt += 1
        a(f"s_waitcnt lgkmcnt({2*(nxt-1-N)})")
        slot = V_RING + (N % RING) * 4
        for rt in range(2):
            acc = V_ACC + (rt * 5 + T) * 4
            bb = v(V_OBF + (b * 2 + rt) * 4, 4)
            src = "0" if b == 0 else v(acc, 4)
            a(f"v_mfma_f32_16x16x32_bf16 {v(acc,4)}, {v(slot,4)}, {bb}, {src}")
        if N == 1: block(2)
        if N == 3: ob_loads(2, "S2")
        if N == 11: block(3)
        if N == 13: ob_loads(3, "S3")
        if N == 15: ob_loads(4, "O4")
    stamp(a)
    a("s_barrier")
    nop(a, 8)
    a("s_waitcnt vmcnt(0)")
    a(f"v_lshlrev_b32 v{t}, 4, v{V_LANE}")
    a(f"s_mul_i32 s{S_T}, s{S_WAVE}, 10240")
    a(f"v_add_u32 v{t+1}, s{S_T}, v{t}")
    for u in range(10):
        a(f"ds_write_b128 v{t+1}, {v(V_ACC+u*4,4)} offset:{u*1024}")
    a("s_waitcnt lgkmcnt(0)")
    a("s_barrier")
    X = 48
    for y in range(3):
        if y == 2:
            a(f"s_cmp_ge_u32 s{S_KQ}, 2")
            a("s_cbranch_scc1 K3_fin")
        a(f"s_add_u32 s{S_T}, s{S_KQ}, {4*y}")
        a(f"s_cmp_ge_u32 s{S_T}, 5")
        a(f"s_cselect_b32 s{S_T+1}, 1, 0")
        a(f"s_mul_i32 s{S_T+2}, s{S_T+1}, 5")
        a(f"s_sub_u32 s{S_T+2}, s{S_T}, s{S_T+2}")
        a(f"s_lshl_b32 s{S_T+3}, s{S_T}, 10")
        a(f"s_mul_i32 s{S_T+4}, s{S_RH}, 10240")
        a(f"s_add_u32 s{S_T+3}, s{S_T+3}, s{S_T+4}")
        a(f"v_add_u32 v{t+2}, s{S_T+3}, v{t}")
        for q in range(4):
            a(f"ds_read_b128 {v(X+q*4,4)}, v{t+2} offset:{q*20480}")
        a(f"s_lshl_b32 s{S_T+3}, s{S_I}, 6")
        a(f"s_lshl_b32 s{S_T+4}, s{S_RH}, 5")
        a(f"s_add_u32 s{S_T+3}, s{S_T+3}, s{S_T+4}")
        a(f"s_lshl_b32 s{S_T+4}, s{S_T+1}, 4")
        a(f"s_add_u32 s{S_T+3}, s{S_T+3}, s{S_T+4}")
        a(f"v_and_b32 v{t+3}, 15, v{V_LANE}")
        a(f"v_add_u32 v{t+3}, s{S_T+3}, v{t+3}")
        a(f"s_cmp_eq_u32 s{S_T+1}, 1")
        a(f"s_cselect_b64 vcc, -1, 0")
        a(f"v_cndmask_b32 v{t+6}, v{V_G}, v{V_G+1}, vcc")
        a(f"v_mul_u32_u24 v{t+3}, 1280, v{t+3}")
        a(f"v_lshl_add_u32 v{t+3}, v{V_GRP}, 3, v{t+3}")
        a(f"s_mul_i32 s{S_T+3}, s{S_JC}, 160")
        a(f"s_lshl_b32 s{S_T+4}, s{S_T+2}, 5")
        a(f"s_add_u32 s{S_T+3}, s{S_T+3}, s{S_T+4}")
        a(f"v_add_u32 v{t+3}, s{S_T+3}, v{t+3}")
        a("s_waitcnt lgkmcnt(0)")
        for k in range(4):
            a(f"v_add_f32 v{X+k}, v{X+k}, v{X+4+k}")
            a(f"v_add_f32 v{X+8+k}, v{X+8+k}, v{X+12+k}")
        a(f"v_cvt_pk_bf16_f32 v{X+4}, v{X}, v{X+1}")
        a(f"v_cvt_pk_bf16_f32 v{X+5}, v{X+2}, v{X+3}")
        a(f"v_cvt_pk_bf16_f32 v{X+6}, v{X+8}, v{X+9}")
        a(f"v_cvt_pk_bf16_f32 v{X+7}, v{X+10}, v{X+11}")
        for k in range(2):
            a(f"v_lshlrev_b32 v{X+2*k}, 16, v{X+4+k}")
            a(f"v_and_b32 v{X+2*k+1}, 0xffff0000, v{X+4+k}")
            a(f"v_lshlrev_b32 v{X+8+2*k}, 16, v{X+6+k}")
            a(f"v_and_b32 v{X+8+2*k+1}, 0xffff0000, v{X+6+k}")
        a(f"v_sub_f32 v{t+5}, 1.0, v{t+6}")
        a(f"v_cvt_pk_bf16_f32 v{t+5}, v{t+5}, v{t+5}")
        a(f"v_lshlrev_b32 v{t+5}, 16, v{t+5}")
        for k in range(4):
            a(f"v_mul_f32 v{X+k}, v{X+k}, v{t+6}")
            a(f"v_mul_f32 v{X+8+k}, v{X+8+k}, v{t+5}")
        a(f"v_cvt_pk_bf16_f32 v{X+4}, v{X}, v{X+1}")
        a(f"v_cvt_pk_bf16_f32 v{X+5}, v{X+2}, v{X+3}")
        a(f"v_cvt_pk_bf16_f32 v{X+6}, v{X+8}, v{X+9}")
        a(f"v_cvt_pk_bf16_f32 v{X+7}, v{X+10}, v{X+11}")
        for k in range(2):
            a(f"v_lshlrev_b32 v{X+2*k}, 16, v{X+4+k}")
            a(f"v_and_b32 v{X+2*k+1}, 0xffff0000, v{X+4+k}")
            a(f"v_lshlrev_b32 v{X+8+2*k}, 16, v{X+6+k}")
            a(f"v_and_b32 v{X+8+2*k+1}, 0xffff0000, v{X+6+k}")
        for k in range(4):
            a(f"v_add_f32 v{X+k}, v{X+k}, v{X+8+k}")
        a(f"v_cvt_pk_bf16_f32 v{X+4}, v{X}, v{X+1}")
        a(f"v_cvt_pk_bf16_f32 v{X+5}, v{X+2}, v{X+3}")
        a(f"buffer_store_dwordx2 {v(X+4,2)}, v{t+3}, s[{S_OUT}:{S_OUT+3}], 0 offen")
        nop(a, 2)
    a.label("K3_fin")
    stamp_flush(a)
    a.label("K3_done")
    a("s_endpgm")
    return name
```

```python
import sys
from common import *
import k1v2 as k1, k3
def build(path, stamps=False):
    k1.STAMPS = stamps
    k3.STAMPS = stamps
    k1.PREFETCH = False
    a = Asm()
    hdr = open("cdna_kernels/" + KNAME + ".s.ref").read().split("; Override launch")[0]
    a.raw(hdr.rstrip("\n"))
    a.raw(f"; @launch kernel=k1_kernel grid=(256,1,1) block=(512,1,1) lds={k1.K1_LDS}")
    a.raw(f"; @launch kernel=kmid_kernel grid=(256,1,1) block=(256,1,1) lds=4096")
    a.raw(f"; @launch kernel=k3_kernel grid=(256,1,1) block=(512,1,1) lds={k3.K3_LDS}")
    a.raw('.amdgcn_target "amdgcn-amd-amdhsa--gfx950"')
    a.raw(".text")
    k1.gen_k1(a)
    k3.gen_kmid(a)
    k3.gen_k3(a)
    a.raw('.section .rodata,"a"')
    a.raw(".p2align 6")
    kernel_desc(a, "k1_kernel", 240, 102)
    a.raw(".p2align 6")
    kernel_desc(a, "kmid_kernel", 120, 32)
    a.raw(".p2align 6")
    kernel_desc(a, "k3_kernel", 168, 96)
    open(path, "w").write(a.text())
if __name__ == "__main__":
    build(sys.argv[1], stamps=("stamps" in sys.argv))
```

```python
from common import *

V_LANE = 1; V_T0 = 2
V_GRP = 10
V_WA = 11; V_WB = 12
V_X0 = 13; V_X1 = 14
V_XH0 = 15; V_XH1 = 16
V_H0 = 17; V_H1 = 18
V_DMA = 20
V_WR = 28
V_X = 52
V_ACC = 76
V_HACC = 140
V_E = 148

S_X = 4; S_W = 8; S_WS = 12; S_AUX = 16
S_I = 20; S_J = 21; S_BR = 22; S_WAVE = 23; S_RG = 24; S_CG = 25
S_T = 26
S_SOFF = 34; S_STEP = 35
S_L = 36; S_NL = 37; S_ROT = 38
S_LD = 40
S_PTR = 44
S_MASK = 56
S_M2 = 72
S_ST = 80

STG = 49152
XOFF = 30720
LDS_WPHI = 3 * STG
LDS_ZERO = LDS_WPHI + 3200
K1_LDS = LDS_ZERO + 1024

D = 5
RING = 6
STAMPS = False
NST = [0]

def nop(a, n):
    while n > 0:
        k = min(n, 16)
        a(f"s_nop {k-1}")
        n -= k

def stamp(a):
    if STAMPS:
        k = NST[0]; NST[0] += 1
        if k == 0:
            a(f"s_memrealtime s[98:99]")
        a(f"s_memtime s[{S_ST+2*k}:{S_ST+2*k+1}]")
def stamp_flush(a):
    if STAMPS:
        n = NST[0]
        a("s_waitcnt lgkmcnt(0) vmcnt(0)")
        a(f"s_memtime s[{S_ST+2*n}:{S_ST+2*n+1}]")
        a(f"s_memrealtime s[100:101]")
        a("s_waitcnt lgkmcnt(0)")
        a(f"s_lshl_b32 s{S_T}, s2, 3")
        a(f"s_add_u32 s{S_T}, s{S_T}, s{S_WAVE}")
        a(f"s_lshl_b32 s{S_T}, s{S_T}, 6")
        a(f"s_add_u32 s{S_T}, s{S_T}, {WS_DBG}")
        a(f"v_mov_b32 v2, s{S_T}")
        a("s_mov_b64 exec, 1")
        for k in range(n + 1):
            a(f"v_mov_b32 v3, s{S_ST+2*k}")
            a(f"buffer_store_dword v3, v2, s[{S_WS}:{S_WS+3}], 0 offen offset:{4*k}")
            a("s_nop 1")
        for k, sr in enumerate((98, 100)):
            a(f"v_mov_b32 v3, s{sr}")
            a(f"buffer_store_dword v3, v2, s[{S_WS}:{S_WS+3}], 0 offen offset:{48+4*k}")
            a("s_nop 1")
        a("s_mov_b64 exec, -1")

class Cnt:
    def __init__(self, a, kind, mx):
        self.a = a; self.q = []; self.kind = kind; self.mx = mx
    def issue(self, tag):
        self.q.append(tag)
        assert len(self.q) <= self.mx, f"too many outstanding {self.kind}"
    def wait(self, *tags):
        idx = -1
        for i, t in enumerate(self.q):
            if t in tags: idx = i
        if idx < 0: return
        n = len(self.q) - 1 - idx
        self.a(f"s_waitcnt {self.kind}({n})")
        self.q = self.q[idx+1:]
    def clear(self):
        self.q = []

def xreg(buf, r):
    return V_X + (buf * 3 + r) * 4
def acc(rt, sl):
    return V_ACC + (rt * 8 + sl) * 4

def gen_prologue(a):
    t = V_T0
    a("s_cmp_ge_u32 s2, 256")
    a("s_cbranch_scc1 K1_done")
    a(f"s_load_dwordx4 s[{S_PTR}:{S_PTR+3}], s[0:1], 0")
    a(f"s_load_dwordx2 s[{S_PTR+4}:{S_PTR+5}], s[0:1], 16")
    a(f"s_load_dwordx2 s[{S_PTR+6}:{S_PTR+7}], s[0:1], 40")
    a(f"s_load_dwordx2 s[{S_PTR+8}:{S_PTR+9}], s[0:1], 56")
    a(f"s_load_dwordx2 s[{S_PTR+10}:{S_PTR+11}], s[0:1], 80")
    a(f"s_and_b32 s{S_T}, s2, 7")
    a(f"s_lshr_b32 s{S_T+1}, s2, 3")
    a(f"s_and_b32 s{S_I}, s{S_T}, 1")
    a(f"s_lshl_b32 s{S_I}, s{S_I}, 3")
    a(f"s_and_b32 s{S_T+2}, s{S_T+1}, 7")
    a(f"s_add_u32 s{S_I}, s{S_I}, s{S_T+2}")
    a(f"s_lshr_b32 s{S_J}, s{S_T}, 1")
    a(f"s_lshl_b32 s{S_J}, s{S_J}, 1")
    a(f"s_lshr_b32 s{S_T+2}, s{S_T+1}, 3")
    a(f"s_and_b32 s{S_T+2}, s{S_T+2}, 1")
    a(f"s_add_u32 s{S_J}, s{S_J}, s{S_T+2}")
    a(f"s_lshr_b32 s{S_BR}, s{S_T+1}, 4")
    a(f"s_mul_i32 s{S_ROT}, s{S_T+1}, 3")
    a(f"s_mul_i32 s{S_T+2}, s{S_ROT}, 6554")
    a(f"s_lshr_b32 s{S_T+2}, s{S_T+2}, 16")
    a(f"s_mul_i32 s{S_T+2}, s{S_T+2}, 10")
    a(f"s_sub_u32 s{S_ROT}, s{S_ROT}, s{S_T+2}")
    a(f"v_lshrrev_b32 v{t}, 6, v0")
    a(f"v_and_b32 v{V_LANE}, 63, v0")
    a(f"v_readfirstlane_b32 s{S_WAVE}, v{t}")
    a(f"v_lshrrev_b32 v{V_GRP}, 4, v{V_LANE}")
    a(f"s_mov_b32 s{S_L}, 0x3fb8aa3b")
    a(f"s_mov_b32 s{S_NL}, 0xbfb8aa3b")
    a(f"s_and_b32 s{S_RG}, s{S_WAVE}, 3")
    a(f"s_lshr_b32 s{S_CG}, s{S_WAVE}, 2")
    a(f"s_mul_i32 s{S_T}, s{S_WAVE}, 384")
    a(f"s_mul_i32 s{S_T+1}, s{S_J}, 160")
    a(f"s_mov_b32 s{S_T+2}, 2185")
    a(f"s_lshl_b32 s{S_T+3}, s{S_I}, 7")
    a(f"s_sub_u32 s{S_T+3}, s{S_T+3}, {16 + 5*48}")
    a(f"s_mov_b32 s{S_T+4}, 1280")
    a(f"s_cmp_ge_u32 s{S_WAVE}, 5")
    a(f"s_cbranch_scc1 K1_xoff")
    for n in range(6):
        d = V_DMA + n
        a(f"v_add_u32 v{t}, s{S_T}, v{V_LANE}")
        if n:
            a(f"v_add_u32 v{t}, {n*64}, v{t}")
        a(f"v_mul_u32_u24 v{t+1}, s{S_T+2}, v{t}")
        a(f"v_lshrrev_b32 v{t+1}, 16, v{t+1}")
        a(f"v_mul_u32_u24 v{t+2}, 30, v{t+1}")
        a(f"v_sub_u32 v{t+2}, v{t}, v{t+2}")
        a(f"v_and_b32 v{t+3}, 0x23, v{t+1}")
        a(f"v_bfe_u32 v{t+4}, v{t+1}, 2, 2")
        a(f"v_lshl_add_u32 v{t+3}, v{t+4}, 3, v{t+3}")
        a(f"v_bfe_u32 v{t+4}, v{t+1}, 4, 1")
        a(f"v_lshl_add_u32 v{t+3}, v{t+4}, 2, v{t+3}")
        a(f"v_mul_u32_u24 v{t+3}, 3840, v{t+3}")
        a(f"v_mul_u32_u24 v{t+4}, 26, v{t+2}")
        a(f"v_lshrrev_b32 v{t+4}, 8, v{t+4}")
        a(f"v_mul_u32_u24 v{t+5}, 1120, v{t+4}")
        a(f"v_add_u32 v{t+3}, v{t+3}, v{t+5}")
        a(f"v_lshl_add_u32 v{t+3}, v{t+2}, 4, v{t+3}")
        a(f"v_add_u32 v{d}, s{S_T+1}, v{t+3}")
    a("s_branch K1_offdone")
    a.label("K1_xoff")
    a(f"v_lshrrev_b32 v{t}, 3, v{V_LANE}")
    a(f"v_and_b32 v{t+1}, 7, v{V_LANE}")
    a(f"v_xor_b32 v{t+1}, v{t+1}, v{t}")
    a(f"v_lshlrev_b32 v{t+1}, 4, v{t+1}")
    a(f"s_mul_i32 s{S_T}, s{S_WAVE}, 48")
    a(f"s_add_u32 s{S_T}, s{S_T}, s{S_T+3}")
    for n in range(6):
        a(f"v_add_u32 v{t+2}, s{S_T}, v{t}")
        if n:
            a(f"v_add_u32 v{t+2}, {8*n}, v{t+2}")
        a(f"v_mul_lo_u32 v{t+2}, v{t+2}, s{S_T+4}")
        a(f"v_add_u32 v{V_DMA+n}, v{t+2}, v{t+1}")
    a.label("K1_offdone")
    a("s_waitcnt lgkmcnt(0)")
    srd(a, S_X, S_PTR, 2048 * 1280)
    srd(a, S_WS, S_PTR + 10, WS_SIZE)
    a(f"s_cmp_eq_u32 s{S_BR}, 0")
    a(f"s_cselect_b32 s{S_T}, s{S_PTR+2}, s{S_PTR+6}")
    a(f"s_cselect_b32 s{S_T+1}, s{S_PTR+3}, s{S_PTR+7}")
    a(f"s_cselect_b32 s{S_T+2}, s{S_PTR+4}, s{S_PTR+8}")
    a(f"s_cselect_b32 s{S_T+3}, s{S_PTR+5}, s{S_PTR+9}")
    a(f"s_mov_b32 s{S_T+5}, 1280")
    a(f"s_cselect_b32 s{S_T+4}, 25600, s{S_T+5}")
    srd(a, S_W, S_T, 640 * 3840)
    a(f"s_mov_b32 s{S_AUX}, s{S_T+2}")
    a(f"s_and_b32 s{S_AUX+1}, s{S_T+3}, 0xffff")
    a(f"s_mov_b32 s{S_AUX+2}, s{S_T+4}")
    a(f"s_mov_b32 s{S_AUX+3}, 0x00020000")
    a(f"s_cmp_ge_u32 s{S_WAVE}, 5")
    for k in range(4):
        a(f"s_cselect_b32 s{S_LD+k}, s{S_X+k}, s{S_W+k}")
    a(f"s_mov_b32 s{S_T}, {64*3840}")
    a(f"s_cselect_b32 s{S_STEP}, 128, s{S_T}")

NO_LOADS = False
TOVGPR = False
def dma(a, c, n):
    if NO_LOADS and c >= 3: return
    b = c % 3
    a(f"s_mul_i32 s{S_T}, s{S_WAVE}, 6144")
    a(f"s_add_u32 m0, s{S_T}, {b*STG + n*1024}")
    if n == 0 or True:
        a(f"s_add_u32 s{S_SOFF}, s{S_ROT}, {c}")
        a(f"s_sub_u32 s{S_T+1}, s{S_SOFF}, 10")
        a(f"s_cmp_ge_u32 s{S_SOFF}, 10")
        a(f"s_cselect_b32 s{S_SOFF}, s{S_T+1}, s{S_SOFF}")
        a(f"s_mul_i32 s{S_SOFF}, s{S_STEP}, s{S_SOFF}")
    if TOVGPR and c >= 3:
        a(f"buffer_load_dwordx4 v[{200+4*n}:{203+4*n}], v{V_DMA+n}, s[{S_LD}:{S_LD+3}], s{S_SOFF} offen")
    else:
        a(f"buffer_load_dwordx4 v{V_DMA+n}, s[{S_LD}:{S_LD+3}], s{S_SOFF} offen lds")

def gen_bases(a):
    t = V_T0
    a(f"v_lshrrev_b32 v{t}, 2, v{V_LANE}")
    a(f"v_mul_u32_u24 v{t}, 480, v{t}")
    a(f"v_and_b32 v{t+1}, 3, v{V_LANE}")
    a(f"v_mul_u32_u24 v{t+1}, 40, v{t+1}")
    a(f"v_add_u32 v{t}, v{t}, v{t+1}")
    a(f"s_mul_i32 s{S_T}, s{S_CG}, 160")
    a(f"v_add_u32 v{V_WA}, s{S_T}, v{t}")
    a(f"s_mul_i32 s{S_T}, s{S_CG}, 24")
    a(f"s_add_u32 s{S_T}, s{S_T}, 320")
    a(f"v_add_u32 v{V_WB}, s{S_T}, v{t}")
    for h in range(2):
        a(f"s_add_u32 s{S_T}, s{S_WAVE}, {8*h}")
        a(f"s_cmp_ge_u32 s{S_T}, 10")
        a(f"s_cselect_b32 s{S_T}, s{S_WAVE}, s{S_T}")
        a(f"s_add_u32 s{S_T}, s{S_T}, 5")
        a(f"s_cmp_ge_u32 s{S_T}, 10")
        a(f"s_mov_b32 s{S_T+2}, 120")
        a(f"s_cselect_b32 s{S_T+1}, 240, s{S_T+2}")
        a(f"s_lshl_b32 s{S_T}, s{S_T}, 3")
        a(f"s_add_u32 s{S_T}, s{S_T}, s{S_T+1}")
        a(f"v_add_u32 v{V_H0+h}, s{S_T}, v{t}")
    a(f"v_and_b32 v{t}, 15, v{V_LANE}")
    a(f"v_and_b32 v{t+1}, 7, v{V_LANE}")
    a(f"v_xor_b32 v{t+1}, v{t+1}, v{V_GRP}")
    a(f"v_lshlrev_b32 v{t+1}, 4, v{t+1}")
    a(f"v_lshl_add_u32 v{t+1}, v{t}, 7, v{t+1}")
    a(f"v_add_u32 v{V_XH0}, {XOFF}, v{t+1}")
    a(f"v_xor_b32 v{V_XH1}, 64, v{V_XH0}")
    a(f"s_lshl_b32 s{S_T}, s{S_RG}, 12")
    a(f"s_add_u32 s{S_T}, s{S_T}, 2048")
    a(f"v_add_u32 v{V_X0}, s{S_T}, v{V_XH0}")
    a(f"v_add_u32 v{V_X1}, s{S_T}, v{V_XH1}")

PREFETCH = True
def gen_prefetch(a):
    if not PREFETCH: return
    t = V_E + 16
    a(f"s_lshr_b32 s{S_T}, s2, 3")
    a(f"s_lshl_b32 s{S_T+1}, s{S_T}, 3")
    a(f"s_add_u32 s{S_T+1}, s{S_T+1}, s{S_WAVE}")
    a(f"s_lshl_b32 s{S_T+1}, s{S_T+1}, 6")
    a(f"v_add_u32 v{t}, s{S_T+1}, v{V_LANE}")
    a(f"s_and_b32 s{S_T+2}, s2, 1")
    a(f"s_mul_i32 s{S_T+2}, s{S_T+2}, {1024*1280}")
    a(f"v_lshlrev_b32 v{t+1}, 7, v{t}")
    a(f"v_add_u32 v{t+1}, s{S_T+2}, v{t+1}")
    a(f"v_mov_b32 v{t+2}, 0x7ff00000")
    a(f"v_cmp_le_u32 vcc, 10240, v{t}")
    a(f"v_and_b32 v{t+3}, 0x1fff, v{t}")
    a(f"v_cndmask_b32 v{t+1}, v{t+1}, v{t+2}, vcc")
    a(f"buffer_load_dword v{t+8}, v{t+1}, s[{S_X}:{S_X+3}], 0 offen")
    a(f"v_mul_u32_u24 v{t+4}, 5462, v{t+3}")
    a(f"v_lshrrev_b32 v{t+4}, 16, v{t+4}")
    a(f"v_mul_u32_u24 v{t+5}, 12, v{t+4}")
    a(f"v_sub_u32 v{t+5}, v{t+3}, v{t+5}")
    a(f"v_lshrrev_b32 v{t+6}, 2, v{t+5}")
    a(f"v_and_b32 v{t+5}, 3, v{t+5}")
    a(f"v_mul_u32_u24 v{t+4}, 3840, v{t+4}")
    a(f"v_mul_u32_u24 v{t+6}, 1280, v{t+6}")
    a(f"v_add_u32 v{t+4}, v{t+4}, v{t+6}")
    a(f"v_lshl_add_u32 v{t+4}, v{t+5}, 7, v{t+4}")
    a(f"s_and_b32 s{S_T+2}, s2, 7")
    a(f"s_lshr_b32 s{S_T+2}, s{S_T+2}, 1")
    a(f"s_mul_i32 s{S_T+2}, s{S_T+2}, 320")
    a(f"s_and_b32 s{S_T+2}, s{S_T+2}, 0xffffff80")
    a(f"v_add_u32 v{t+4}, s{S_T+2}, v{t+4}")
    a(f"v_cmp_le_u32 vcc, 7680, v{t+3}")
    a("s_nop 1")
    a(f"v_cndmask_b32 v{t+4}, v{t+4}, v{t+2}, vcc")
    a(f"buffer_load_dword v{t+9}, v{t+4}, s[{S_W}:{S_W+3}], 0 offen")

def gen_mainloop(a, halo, pre_hook=None):
    lg = Cnt(a, "lgkmcnt", 15)
    nxr = 3 if halo else 2
    items = []
    for c in range(10):
        for m in range(2):
            for sl in range(8):
                items.append((c, m, "m", sl))
                if halo and sl in (3, 7):
                    items.append((c, m, "h", sl // 4))
    per_k = len(items) // 20
    per_chunk = 2 * per_k
    total = len(items)
    base_regs = [V_WA, V_WB, V_X0, V_X1, V_XH0, V_XH1, V_H0, V_H1]
    cur_stage = [0]
    def set_stage(c):
        b = c % 3
        if b != cur_stage[0]:
            delta = (b - cur_stage[0]) * STG
            for r in base_regs:
                if not halo and r in (V_XH0, V_XH1, V_H0, V_H1): continue
                if delta > 0:
                    a(f"v_add_u32 v{r}, {delta}, v{r}")
                else:
                    a(f"v_subrev_u32 v{r}, {-delta}, v{r}")
            cur_stage[0] = b
    def x_reads(c, m):
        set_stage(c)
        buf = (2 * c + m) % 2
        for r in range(nxr):
            if r < 2:
                a(f"ds_read_b128 {v(xreg(buf,r),4)}, v{V_X0+m} offset:{r*2048}")
            else:
                a(f"ds_read_b128 {v(xreg(buf,r),4)}, v{V_XH0+m}")
            lg.issue(f"x{c}_{m}")
    def w_reads(N):
        c, m, kind, idx = items[N]
        set_stage(c)
        slot = V_WR + (N % RING) * 4
        for qq in range(2):
            imm = (2 * m + qq) * 16 * 480
            if kind == "m":
                base = V_WA if idx < 5 else V_WB
                imm += 8 * (idx if idx < 5 else idx - 5)
            else:
                base = V_H0 + idx
            a(f"ds_read_b64_tr_b16 {v(slot+2*qq,2)}, v{base} offset:{imm}")
            lg.issue(f"w{N}")
    for n in range(6):
        dma(a, 0, n)
    for n in range(6):
        dma(a, 1, n)
    gen_bases(a)
    if pre_hook: pre_hook()
    stamp(a)
    a(f"s_waitcnt vmcnt(6)")
    a("s_barrier")
    stamp(a)
    x_reads(0, 0)
    for N in range(D):
        w_reads(N)
    nxt = D
    DL = 2
    for N in range(total):
        c, m, kind, idx = items[N]
        n = N - c * per_chunk
        if n == 0:
            a.comment(f"---- chunk {c}")
        bar_here = (n == per_chunk - D + DL and c + 1 <= 9)
        if bar_here:
            a(f"s_waitcnt vmcnt({(8 if (c == 0 and PREFETCH) else 6) if c + 2 <= 9 else 0}) lgkmcnt(0)")
            lg.clear()
            a("s_barrier")
        lim = N + D
        if c + 1 <= 9 and n < per_chunk - D + DL:
            lim = min(lim, (c + 1) * per_chunk - 1)
        lim = min(lim, total - 1)
        while nxt <= lim:
            cc, mm, _, _ = items[nxt]
            if nxt == (cc * 2 + mm) * per_k:
                x_reads(cc, mm)
            w_reads(nxt)
            nxt += 1
        lg.wait(f"w{N}", f"x{c}_{m}")
        slot = V_WR + (N % RING) * 4
        buf = (2 * c + m) % 2
        first = (c == 0 and m == 0)
        if kind == "m":
            for rt in range(2):
                src = "0" if first else v(acc(rt, idx), 4)
                a(f"v_mfma_f32_16x16x32_bf16 {v(acc(rt,idx),4)}, {v(slot,4)}, {v(xreg(buf,rt),4)}, {src}")
        else:
            src = "0" if first else v(V_HACC + idx * 4, 4)
            a(f"v_mfma_f32_16x16x32_bf16 {v(V_HACC+idx*4,4)}, {v(slot,4)}, {v(xreg(buf,2),4)}, {src}")
        if c == 0 and n < 6:
            dma(a, 2, n)
        if c == 0 and n == 6:
            gen_prefetch(a)
        k = N - (c * per_chunk + per_chunk - D + DL)
        for cc in (c, c - 1):
            if cc < 0 or cc + 3 > 9: continue
            k = N - (cc * per_chunk + per_chunk - D + DL)
            if 0 <= k < 6:
                dma(a, cc + 3, k)

def softmax_dual(a, P, T, OUT, X4):
    for i in range(10):
        a(f"v_cvt_pk_bf16_f32 v{T+i}, v{P+2*i}, v{P+2*i+1}")
    for i in range(10):
        a(f"v_lshlrev_b32 v{P+2*i}, 16, v{T+i}")
        a(f"v_and_b32 v{P+2*i+1}, 0xffff0000, v{T+i}")
    mx, mn, nmx, pmn = X4, X4 + 1, X4 + 2, X4 + 3
    a(f"v_max3_f32 v{mx}, v{P}, v{P+1}, v{P+2}")
    a(f"v_min3_f32 v{mn}, v{P}, v{P+1}, v{P+2}")
    for i in range(3, 19, 2):
        a(f"v_max3_f32 v{mx}, v{mx}, v{P+i}, v{P+i+1}")
        a(f"v_min3_f32 v{mn}, v{mn}, v{P+i}, v{P+i+1}")
    a(f"v_max_f32 v{mx}, v{mx}, v{P+19}")
    a(f"v_min_f32 v{mn}, v{mn}, v{P+19}")
    a(f"v_mul_f32 v{nmx}, s{S_NL}, v{mx}")
    a(f"v_mul_f32 v{pmn}, s{S_L}, v{mn}")
    for i in range(20):
        a(f"v_fma_f32 v{T+i}, v{P+i}, s{S_L}, v{nmx}")
        a(f"v_fma_f32 v{P+i}, v{P+i}, s{S_NL}, v{pmn}")
    for i in range(20):
        a(f"v_exp_f32 v{T+i}, v{T+i}")
        a(f"v_exp_f32 v{P+i}, v{P+i}")
    a("s_nop 0")
    s1, s2 = mx, mn
    a(f"v_add_f32 v{s1}, v{T}, v{T+1}")
    a(f"v_add_f32 v{s2}, v{P}, v{P+1}")
    a(f"v_add_f32 v{nmx}, v{T+2}, v{T+3}")
    a(f"v_add_f32 v{pmn}, v{P+2}, v{P+3}")
    for i in range(4, 20, 2):
        a(f"v_add_f32 v{s1}, v{s1}, v{T+i}")
        a(f"v_add_f32 v{s2}, v{s2}, v{P+i}")
        a(f"v_add_f32 v{nmx}, v{nmx}, v{T+i+1}")
        a(f"v_add_f32 v{pmn}, v{pmn}, v{P+i+1}")
    a(f"v_add_f32 v{s1}, v{s1}, v{nmx}")
    a(f"v_add_f32 v{s2}, v{s2}, v{pmn}")
    a(f"v_rcp_f32 v{s1}, v{s1}")
    a(f"v_rcp_f32 v{s2}, v{s2}")
    a("s_nop 0")
    for i in range(20):
        a(f"v_mul_f32 v{T+i}, v{T+i}, v{s1}")
        a(f"v_mul_f32 v{P+i}, v{P+i}, v{s2}")
    for i in range(10):
        a(f"v_cvt_pk_bf16_f32 v{OUT+i}, v{T+2*i}, v{T+2*i+1}")
    for i in range(10):
        a(f"v_cvt_pk_bf16_f32 v{OUT+10+i}, v{P+2*i}, v{P+2*i+1}")

def gen_wphi_issue(a):
    t = V_E
    a(f"v_lshlrev_b32 v{t}, 4, v0")
    a(f"s_mul_i32 s{S_T}, s{S_J}, 3200")
    a(f"v_cmp_gt_u32 vcc, 200, v0")
    a(f"s_and_saveexec_b64 s[{S_T+2}:{S_T+3}], vcc")
    a(f"s_cbranch_execz K1_wp0")
    a(f"buffer_load_dwordx4 {v(t+4,4)}, v{t}, s[{S_AUX}:{S_AUX+3}], s{S_T} offen")
    a.label("K1_wp0")
    a(f"s_mov_b64 exec, s[{S_T+2}:{S_T+3}]")

def gen_wphi_stage(a):
    t = V_E
    a(f"v_cmp_gt_u32 vcc, 200, v0")
    a(f"s_and_saveexec_b64 s[{S_T+2}:{S_T+3}], vcc")
    a(f"s_cbranch_execz K1_wp1")
    a(f"v_add_u32 v{t+1}, {LDS_WPHI}, v{t}")
    a(f"s_waitcnt vmcnt(12)")
    a(f"ds_write_b128 v{t+1}, {v(t+4,4)}")
    a.label("K1_wp1")
    a(f"s_mov_b64 exec, s[{S_T+2}:{S_T+3}]")
    a(f"v_cmp_gt_u32 vcc, 64, v0")
    a(f"s_and_saveexec_b64 s[{S_T+2}:{S_T+3}], vcc")
    a(f"s_cbranch_execz K1_wp2")
    for r in range(4):
        a(f"v_mov_b32 v{t+8+r}, 0")
    a(f"v_add_u32 v{t+1}, {LDS_ZERO}, v{t}")
    a(f"ds_write_b128 v{t+1}, {v(t+8,4)}")
    a.label("K1_wp2")
    a(f"s_mov_b64 exec, s[{S_T+2}:{S_T+3}]")
    a("s_waitcnt lgkmcnt(0)")

PKO = 0
VO = 40960

def gen_epilogue_A(a):
    t = V_T0
    a("s_barrier")
    WF = 148
    QB = 208
    P = 220
    OUT = 28
    a(f"v_and_b32 v{t}, 3, v{V_LANE}")
    a(f"v_bfe_u32 v{t+1}, v{V_LANE}, 2, 2")
    a(f"v_mul_u32_u24 v{t+1}, 40, v{t+1}")
    a(f"v_mul_u32_u24 v{t+2}, 800, v{V_GRP}")
    a(f"v_add_u32 v{t+1}, v{t+1}, v{t+2}")
    a(f"v_add_u32 v{t+1}, {LDS_WPHI}, v{t+1}")
    a(f"v_mov_b32 v{t+2}, {LDS_ZERO}")
    a(f"v_cmp_eq_u32 vcc, v{t}, v{V_GRP}")
    a("s_nop 1")
    a(f"v_cndmask_b32 v{t+1}, v{t+2}, v{t+1}, vcc")
    for tt in range(5):
        for c in range(3):
            r = WF + (tt * 3 + c) * 4
            for qq in range(2):
                if c == 2 and qq == 1:
                    a(f"v_mov_b32 v{r+2}, 0")
                    a(f"v_mov_b32 v{r+3}, 0")
                else:
                    a(f"ds_read_b64_tr_b16 {v(r+2*qq,2)}, v{t+1} offset:{(8*c+4*qq)*40 + 8*tt}")
    a(f"v_mov_b32 v{QB+10}, 0")
    a(f"v_mov_b32 v{QB+11}, 0")
    a(f"s_lshl_b32 s{S_T}, s{S_I}, 3")
    a(f"s_lshl_b32 s{S_T+1}, s{S_RG}, 1")
    a(f"s_add_u32 s{S_T}, s{S_T}, s{S_T+1}")
    a(f"s_lshl_b32 s{S_T}, s{S_T}, 5")
    a(f"s_lshl_b32 s{S_T+1}, s{S_J}, 2")
    a(f"s_add_u32 s{S_T}, s{S_T}, s{S_T+1}")
    a(f"s_mul_i32 s{S_T}, s{S_T}, 1280")
    a(f"s_add_u32 s{S_T}, s{S_T}, {WS_PHIQ}")
    a(f"v_and_b32 v{t}, 15, v{V_LANE}")
    a(f"v_mul_u32_u24 v{t+2}, 1280, v{V_GRP}")
    a(f"v_lshl_add_u32 v{t+2}, v{t}, 4, v{t+2}")
    a(f"v_add_u32 v{t+2}, s{S_T}, v{t+2}")
    a(f"v_add_u32 v{t+7}, {32*1280}, v{t+2}")
    a(f"s_mul_i32 s{S_T}, s{S_RG}, {32*80}")
    a(f"v_mul_u32_u24 v{t+3}, 80, v{t}")
    a(f"v_mul_u32_u24 v{t+4}, 10240, v{V_GRP}")
    a(f"v_add_u32 v{t+3}, v{t+3}, v{t+4}")
    a(f"v_add_u32 v{t+3}, s{S_T}, v{t+3}")
    a(f"s_mul_i32 s{S_T}, s{S_RG}, {32*48}")
    a(f"s_mul_i32 s{S_T+1}, s{S_CG}, 24")
    a(f"s_add_u32 s{S_T}, s{S_T}, s{S_T+1}")
    a(f"v_mul_u32_u24 v{t+4}, 48, v{t}")
    a(f"v_mul_u32_u24 v{t+5}, 6144, v{V_GRP}")
    a(f"v_add_u32 v{t+4}, v{t+4}, v{t+5}")
    a(f"v_add_u32 v{t+4}, s{S_T}, v{t+4}")
    a(f"s_cmp_eq_u32 s{S_CG}, 1")
    a(f"s_cselect_b64 s[{S_T+2}:{S_T+3}], -1, 0")
    a(f"v_mov_b32 v{P+6}, 0x3f80")
    a(f"v_mov_b32 v{P+7}, 0")
    for rt in range(2):
        base = acc(rt, 5)
        for i in range(6):
            a(f"v_cvt_pk_bf16_f32 v{P+i}, v{base+2*i}, v{base+2*i+1}")
        a(f"v_cndmask_b32 v{P+4}, v{P+4}, v{P+6}, s[{S_T+2}:{S_T+3}]")
        a(f"v_cndmask_b32 v{P+5}, v{P+5}, v{P+7}, s[{S_T+2}:{S_T+3}]")
        for k in range(3):
            a(f"ds_write_b64 v{t+4}, {v(P+2*k,2)} offset:{VO + rt*768 + 8*k}")
        nop(a, 1)
    a("s_waitcnt lgkmcnt(0)")
    stamp(a)
    for rt in range(2):
        base = acc(rt, 0)
        for i in range(10):
            a(f"v_cvt_pk_bf16_f32 v{QB+i}, v{base+2*i}, v{base+2*i+1}")
        nop(a, 2)
        for c in range(3):
            for tt in range(5):
                src = "0" if c == 0 else v(P + tt * 4, 4)
                a(f"v_mfma_f32_16x16x32_bf16 {v(P+tt*4,4)}, {v(WF+(tt*3+c)*4,4)}, {v(QB+c*4,4)}, {src}")
        nop(a, 8)
        softmax_dual(a, P, base, OUT, QB)
        l1 = a.newlabel("K1_ak"); l2 = a.newlabel("K1_ae")
        a(f"s_cmp_eq_u32 s{S_CG}, 0")
        a(f"s_cbranch_scc0 {l1}")
        for k in range(5):
            a(f"buffer_store_dwordx4 {v(OUT+4*k,4)}, v{t+2 if rt == 0 else t+7}, s[{S_WS}:{S_WS+3}], 0 offen offset:{256*k}")
        a(f"s_branch {l2}")
        a.label(l1)
        for k in range(5):
            a(f"ds_write_b128 v{t+3}, {v(OUT+4*k,4)} offset:{PKO + rt*1280 + 16*k}")
        a.label(l2)
        nop(a, 2)
        stamp(a)
    a("s_waitcnt lgkmcnt(0)")
    a("s_barrier")
    a(f"v_and_b32 v{t}, 3, v{V_LANE}")
    a(f"v_bfe_u32 v{t+1}, v{V_LANE}, 2, 2")
    a(f"v_lshl_add_u32 v{t+1}, v{V_GRP}, 3, v{t+1}")
    a(f"v_mul_u32_u24 v{t+2}, 80, v{t+1}")
    a(f"v_lshl_add_u32 v{t+2}, v{t}, 3, v{t+2}")
    a(f"s_mul_i32 s{S_T}, s{S_RG}, 10240")
    a(f"v_add_u32 v{t+2}, s{S_T}, v{t+2}")
    a(f"v_mul_u32_u24 v{t+3}, 48, v{t+1}")
    a(f"v_lshl_add_u32 v{t+3}, v{t}, 3, v{t+3}")
    a(f"s_mul_i32 s{S_T}, s{S_RG}, 6144")
    a(f"s_add_u32 s{S_T}, s{S_T}, {VO}")
    a(f"v_add_u32 v{t+3}, s{S_T}, v{t+3}")
    a(f"s_lshl_b32 s{S_T}, s{S_I}, 5")
    a(f"s_lshl_b32 s{S_T+1}, s{S_J}, 2")
    a(f"s_add_u32 s{S_T}, s{S_T}, s{S_T+1}")
    a(f"s_add_u32 s{S_T}, s{S_T}, s{S_RG}")
    a(f"s_mul_i32 s{S_T}, s{S_T}, 6144")
    a(f"s_add_u32 s{S_T}, s{S_T}, {WS_PART}")
    a(f"v_and_b32 v{t}, 15, v{V_LANE}")
    a(f"v_mul_u32_u24 v{t}, 192, v{t}")
    a(f"v_lshl_add_u32 v{t}, v{V_GRP}, 4, v{t}")
    a(f"v_add_u32 v{t}, s{S_T}, v{t}")
    AF = 76; BF = 124; KV = 172; AD = 184
    for y in range(3):
        a(f"s_mul_i32 s{S_T}, s{S_CG}, 3")
        a(f"s_add_u32 s{S_T}, s{S_T}, {y}")
        a(f"s_lshr_b32 s{S_T+1}, s{S_T}, 1")
        a(f"s_and_b32 s{S_T+2}, s{S_T}, 1")
        a(f"s_lshl_b32 s{S_T+3}, s{S_T+1}, 5")
        a(f"v_add_u32 v{AD+y}, s{S_T+3}, v{t+2}")
        a(f"s_lshl_b32 s{S_T+3}, s{S_T+2}, 5")
        a(f"v_add_u32 v{AD+3+y}, s{S_T+3}, v{t+3}")
        a(f"s_lshl_b32 s{S_T+3}, s{S_T+1}, 6")
        a(f"s_mul_i32 s{S_T+4}, s{S_T+2}, {16*192}")
        a(f"s_add_u32 s{S_T+3}, s{S_T+3}, s{S_T+4}")
        a(f"v_add_u32 v{AD+6+y}, s{S_T+3}, v{t}")
    for ks in range(4):
        for y in range(3):
            for qq in range(2):
                a(f"ds_read_b64_tr_b16 {v(AF+(y*4+ks)*4+2*qq,2)}, v{AD+y} offset:{(32*ks+4*qq)*80}")
                a(f"ds_read_b64_tr_b16 {v(BF+(y*4+ks)*4+2*qq,2)}, v{AD+3+y} offset:{(32*ks+4*qq)*48}")
        a("s_waitcnt lgkmcnt(0)")
    for ks in range(4):
        for y in range(3):
            d = KV + y * 4
            src = "0" if ks == 0 else v(d, 4)
            a(f"v_mfma_f32_16x16x32_bf16 {v(d,4)}, {v(AF+(y*4+ks)*4,4)}, {v(BF+(y*4+ks)*4,4)}, {src}")
    nop(a, 8)
    for y in range(3):
        a(f"buffer_store_dwordx4 {v(KV+y*4,4)}, v{AD+6+y}, s[{S_WS}:{S_WS+3}], 0 offen")

QROW = 272
LQ = 0
LK = 128 * QROW
LV = LK + 144 * QROW

def gen_epilogue_B(a):
    t = V_T0
    a("s_barrier")
    a(f"v_and_b32 v{t}, 15, v{V_LANE}")
    a(f"v_mul_u32_u24 v{t+1}, {QROW}, v{t}")
    a(f"v_lshl_add_u32 v{t+1}, v{V_GRP}, 6, v{t+1}")
    a(f"s_mul_i32 s{S_T}, s{S_RG}, {32*QROW}")
    a(f"s_mul_i32 s{S_T+1}, s{S_CG}, {LK + 16*QROW}")
    a(f"s_add_u32 s{S_T+1}, s{S_T+1}, s{S_T}")
    a(f"v_add_u32 v{t+2}, s{S_T+1}, v{t+1}")
    a(f"s_mul_i32 s{S_T+1}, s{S_CG}, 24")
    a(f"s_add_u32 s{S_T+1}, s{S_T+1}, s{S_T}")
    a(f"s_add_u32 s{S_T+1}, s{S_T+1}, {LV + 16*QROW}")
    a(f"v_add_u32 v{t+3}, s{S_T+1}, v{t+1}")
    PB = 28
    for i in range(10, 16):
        a(f"v_mov_b32 v{PB+i}, 0")
    for rt in range(2):
        base = acc(rt, 0)
        for i in range(10):
            a(f"v_cvt_pk_bf16_f32 v{PB+i}, v{base+2*i}, v{base+2*i+1}")
        for k in range(4):
            a(f"ds_write_b128 v{t+2}, {v(PB+4*k,4)} offset:{rt*16*QROW+16*k}")
        base = acc(rt, 5)
        for i in range(6):
            a(f"v_cvt_pk_bf16_f32 v{PB+16+i}, v{base+2*i}, v{base+2*i+1}")
        for k in range(3):
            a(f"ds_write_b64 v{t+3}, {v(PB+16+2*k,2)} offset:{rt*16*QROW+8*k}")
        nop(a, 2)
    for k in range(3):
        a(f"ds_write_b64 v{t+1}, {v(PB+10,2)} offset:{LK + 40 + 8*k}")
    for h in range(2):
        a(f"s_add_u32 s{S_T}, s{S_WAVE}, {8*h}")
        a(f"s_cmp_ge_u32 s{S_T}, 10")
        a(f"s_cselect_b32 s{S_T}, s{S_WAVE}, s{S_T}")
        a(f"s_cmp_ge_u32 s{S_T}, 5")
        a(f"s_mov_b32 s{S_T+2}, {LK}")
        a(f"s_cselect_b32 s{S_T+1}, {LV-40}, s{S_T+2}")
        a(f"s_lshl_b32 s{S_T}, s{S_T}, 3")
        a(f"s_add_u32 s{S_T}, s{S_T}, s{S_T+1}")
        a(f"v_add_u32 v{t+4}, s{S_T}, v{t+1}")
        a(f"v_cvt_pk_bf16_f32 v{PB}, v{V_HACC+4*h}, v{V_HACC+4*h+1}")
        a(f"v_cvt_pk_bf16_f32 v{PB+1}, v{V_HACC+4*h+2}, v{V_HACC+4*h+3}")
        a(f"ds_write_b64 v{t+4}, {v(PB,2)}")
        nop(a, 2)
    a(f"v_lshlrev_b32 v{t+3}, 2, v{V_GRP}")
    a(f"v_sub_u32 v{t+3}, v{t}, v{t+3}")
    for r in range(4):
        a(f"v_sub_u32 v{t+4}, {r-2}, v{t+3}")
        a(f"v_and_b32 v{t+4}, 0x80000001, v{t+4}")
        a(f"v_cmp_eq_u32 s[{S_MASK+2*r}:{S_MASK+2*r+1}], 0, v{t+4}")
        a(f"v_subrev_u32 v{t+4}, {r}, v{t+3}")
        a(f"v_and_b32 v{t+4}, 0x80000001, v{t+4}")
        a(f"v_cmp_eq_u32 s[{S_MASK+8+2*r}:{S_MASK+8+2*r+1}], 0, v{t+4}")
    a(f"s_or_b32 s{S_T}, s{S_I}, s{S_WAVE}")
    a(f"s_cmp_eq_u32 s{S_T}, 0")
    for r in range(4):
        a(f"s_cselect_b64 s[{S_MASK+2*r}:{S_MASK+2*r+1}], 0, s[{S_MASK+2*r}:{S_MASK+2*r+1}]")
    a(f"v_mul_u32_u24 v{t+1}, {QROW}, v{t}")
    a(f"v_lshl_add_u32 v{t+1}, v{V_GRP}, 4, v{t+1}")
    a(f"s_mul_i32 s{S_T}, s{S_WAVE}, {16*QROW}")
    a(f"v_add_u32 v{t+1}, s{S_T}, v{t+1}")
    a(f"v_add_u32 v{t+2}, {LK}, v{t+1}")
    a(f"v_lshrrev_b32 v{t+3}, 2, v{V_LANE}")
    a(f"v_mul_u32_u24 v{t+3}, {QROW}, v{t+3}")
    a(f"v_and_b32 v{t+4}, 3, v{V_LANE}")
    a(f"v_lshl_add_u32 v{t+3}, v{t+4}, 3, v{t+3}")
    a(f"v_add_u32 v{t+3}, s{S_T}, v{t+3}")
    a(f"v_add_u32 v{t+3}, {LV}, v{t+3}")
    a(f"s_mov_b32 s{S_T+4}, 0x3e64f92e")
    a(f"s_mov_b32 s{S_T+5}, 0xff000000")
    OA = 232
    a(f"s_lshl_b32 s{S_T}, s{S_I}, 3")
    a(f"s_add_u32 s{S_T}, s{S_T}, s{S_WAVE}")
    a(f"s_mul_i32 s{S_T}, s{S_T}, 20480")
    a(f"s_add_u32 s{S_T}, s{S_T}, {WS_OB}")
    a(f"s_mul_i32 s{S_T+1}, s{S_J}, 80")
    a(f"v_lshlrev_b32 v{t+4}, 2, v{V_GRP}")
    a(f"v_add_u32 v{t+4}, s{S_T+1}, v{t+4}")
    a(f"v_lshlrev_b32 v{t+5}, 4, v{t}")
    a(f"v_add_u32 v{t+5}, s{S_T}, v{t+5}")
    for h in range(4):
        for td in range(2):
            o = OA + h * 2 + td
            a(f"v_add_u32 v{t+6}, {20*h+16*td}, v{t+4}")
            a(f"v_lshrrev_b32 v{t+7}, 5, v{t+6}")
            a(f"v_lshl_add_u32 v{o}, v{t+7}, 10, v{t+5}")
            a(f"v_bfe_u32 v{t+7}, v{t+6}, 3, 2")
            a(f"v_lshl_add_u32 v{o}, v{t+7}, 8, v{o}")
            a(f"v_bfe_u32 v{t+7}, v{t+6}, 2, 1")
            a(f"v_lshl_add_u32 v{o}, v{t+7}, 3, v{o}")
    a("s_waitcnt lgkmcnt(0)")
    stamp(a)
    a("s_barrier")
    RB = 76
    for h in range(4):
        R = RB + h * 28
        QF, KA, KB_, VF = R, R + 4, R + 8, R + 12
        a(f"ds_read_b128 {v(QF,4)}, v{t+1} offset:{LQ + h*64}")
        a(f"ds_read_b128 {v(KA,4)}, v{t+2} offset:{h*64}")
        a(f"ds_read_b128 {v(KB_,4)}, v{t+2} offset:{16*QROW + h*64}")
        for td in range(2):
            a(f"ds_read_b64_tr_b16 {v(VF+4*td,2)}, v{t+3} offset:{h*64 + 32*td}")
            a(f"ds_read_b64_tr_b16 {v(VF+4*td+2,2)}, v{t+3} offset:{16*QROW + h*64 + 32*td}")
        if h == 1:
            a("s_waitcnt lgkmcnt(0)")
    a("s_waitcnt lgkmcnt(0)")
    for h in range(4):
        R = RB + h * 28
        QF, KA, KB_, VF = R, R + 4, R + 8, R + 12
        SA, SB = R + 20, R + 24
        a(f"v_mfma_f32_16x16x32_bf16 {v(SA,4)}, {v(KA,4)}, {v(QF,4)}, 0")
        a(f"v_mfma_f32_16x16x32_bf16 {v(SB,4)}, {v(KB_,4)}, {v(QF,4)}, 0")
    nop(a, 8)
    stamp(a)
    TT = 28
    for h in range(4):
        R = RB + h * 28
        QF, KA, KB_, VF = R, R + 4, R + 8, R + 12
        S = R + 20
        T8 = TT
        for i in range(4):
            a(f"v_cvt_pk_bf16_f32 v{T8+i}, v{S+2*i}, v{S+2*i+1}")
        for i in range(4):
            a(f"v_lshlrev_b32 v{S+2*i}, 16, v{T8+i}")
            a(f"v_and_b32 v{S+2*i+1}, 0xffff0000, v{T8+i}")
        for i in range(8):
            a(f"v_mul_f32 v{S+i}, s{S_T+4}, v{S+i}")
        for i in range(4):
            a(f"v_cvt_pk_bf16_f32 v{T8+i}, v{S+2*i}, v{S+2*i+1}")
        for i in range(4):
            a(f"v_lshlrev_b32 v{S+2*i}, 16, v{T8+i}")
            a(f"v_and_b32 v{S+2*i+1}, 0xffff0000, v{T8+i}")
        a(f"v_mov_b32 v{T8+4}, s{S_T+5}")
        for i in range(8):
            mk = S_MASK + 2 * i
            a(f"v_cndmask_b32 v{S+i}, v{T8+4}, v{S+i}, s[{mk}:{mk+1}]")
        m = T8 + 5
        a(f"v_max3_f32 v{m}, v{S}, v{S+1}, v{S+2}")
        a(f"v_max3_f32 v{m}, v{m}, v{S+3}, v{S+4}")
        a(f"v_max3_f32 v{m}, v{m}, v{S+5}, v{S+6}")
        a(f"v_max_f32 v{m}, v{m}, v{S+7}")
        a(f"v_mov_b32 v{m+1}, v{m}")
        nop(a, 2)
        a(f"v_permlane16_swap_b32 v{m}, v{m+1}")
        nop(a, 2)
        a(f"v_max_f32 v{m}, v{m}, v{m+1}")
        a(f"v_mov_b32 v{m+1}, v{m}")
        nop(a, 2)
        a(f"v_permlane32_swap_b32 v{m}, v{m+1}")
        nop(a, 2)
        a(f"v_max_f32 v{m}, v{m}, v{m+1}")
        a(f"v_mul_f32 v{m}, s{S_NL}, v{m}")
        for i in range(8):
            a(f"v_fma_f32 v{S+i}, v{S+i}, s{S_L}, v{m}")
        for i in range(8):
            a(f"v_exp_f32 v{S+i}, v{S+i}")
        a("s_nop 0")
        sm = T8 + 5
        a(f"v_add_f32 v{sm}, v{S}, v{S+1}")
        a(f"v_add_f32 v{sm+1}, v{S+2}, v{S+3}")
        a(f"v_add_f32 v{sm}, v{sm}, v{S+4}")
        a(f"v_add_f32 v{sm+1}, v{sm+1}, v{S+5}")
        a(f"v_add_f32 v{sm}, v{sm}, v{S+6}")
        a(f"v_add_f32 v{sm+1}, v{sm+1}, v{S+7}")
        a(f"v_add_f32 v{sm}, v{sm}, v{sm+1}")
        a(f"v_mov_b32 v{sm+1}, v{sm}")
        nop(a, 2)
        a(f"v_permlane16_swap_b32 v{sm}, v{sm+1}")
        nop(a, 2)
        a(f"v_add_f32 v{sm}, v{sm}, v{sm+1}")
        a(f"v_mov_b32 v{sm+1}, v{sm}")
        nop(a, 2)
        a(f"v_permlane32_swap_b32 v{sm}, v{sm+1}")
        nop(a, 2)
        a(f"v_add_f32 v{sm}, v{sm}, v{sm+1}")
        a(f"v_rcp_f32 v{sm}, v{sm}")
        a("s_nop 0")
        for i in range(8):
            a(f"v_mul_f32 v{S+i}, v{S+i}, v{sm}")
        for i in range(4):
            a(f"v_cvt_pk_bf16_f32 v{QF+i}, v{S+2*i}, v{S+2*i+1}")
        nop(a, 2)
        for td in range(2):
            a(f"v_mfma_f32_16x16x32_bf16 {v(S+4*td,4)}, {v(VF+4*td,4)}, {v(QF,4)}, 0")
    nop(a, 8)
    for h in range(4):
        R = RB + h * 28
        S = R + 20
        for i in range(4):
            a(f"v_cvt_pk_bf16_f32 v{R+i}, v{S+2*i}, v{S+2*i+1}")
        a(f"buffer_store_dwordx2 {v(R,2)}, v{OA+2*h}, s[{S_WS}:{S_WS+3}], 0 offen")
    a("s_mov_b64 exec, 0xffff")
    for h in range(4):
        R = RB + h * 28
        a(f"buffer_store_dwordx2 {v(R+2,2)}, v{OA+2*h+1}, s[{S_WS}:{S_WS+3}], 0 offen")
    a("s_mov_b64 exec, -1")
    stamp(a)
    a(f"s_cmp_ge_u32 s{S_WAVE}, 4")
    a("s_cbranch_scc1 K1_gdone")
    a(f"s_lshl_b32 s{S_T}, s{S_I}, 7")
    a(f"s_lshl_b32 s{S_T+1}, s{S_J}, 4")
    a(f"s_add_u32 s{S_T}, s{S_T}, s{S_T+1}")
    a(f"s_lshl_b32 s{S_T+1}, s{S_WAVE}, 2")
    a(f"s_add_u32 s{S_T}, s{S_T}, s{S_T+1}")
    a(f"v_add_u32 v{t}, s{S_T}, v{V_GRP}")
    a(f"v_and_b32 v{t+1}, 15, v{V_LANE}")
    a(f"v_mul_u32_u24 v{t+1}, 80, v{t+1}")
    a(f"v_mul_u32_u24 v{t+2}, 1280, v{t}")
    a(f"v_add_u32 v{t+2}, v{t+2}, v{t+1}")
    GX, GW = 188, 208
    for k in range(5):
        a(f"buffer_load_dwordx4 {v(GX+4*k,4)}, v{t+2}, s[{S_X}:{S_X+3}], 0 offen offset:{16*k}")
        a(f"buffer_load_dwordx4 {v(GW+4*k,4)}, v{t+1}, s[{S_AUX}:{S_AUX+3}], 0 offen offset:{16*k}")
    a("s_waitcnt vmcnt(0)")
    G0 = 28
    a(f"v_mov_b32 v{G0}, 0")
    a(f"v_mov_b32 v{G0+1}, 0")
    for i in range(20):
        a(f"v_lshlrev_b32 v{G0+2}, 16, v{GX+i}")
        a(f"v_and_b32 v{G0+3}, 0xffff0000, v{GX+i}")
        a(f"v_lshlrev_b32 v{G0+4}, 16, v{GW+i}")
        a(f"v_and_b32 v{G0+5}, 0xffff0000, v{GW+i}")
        a(f"v_mul_f32 v{G0+2}, v{G0+2}, v{G0+4}")
        a(f"v_mul_f32 v{G0+3}, v{G0+3}, v{G0+5}")
        a(f"v_cvt_pk_bf16_f32 v{G0+2}, v{G0+2}, v{G0+3}")
        a(f"v_lshlrev_b32 v{G0+3}, 16, v{G0+2}")
        a(f"v_and_b32 v{G0+2}, 0xffff0000, v{G0+2}")
        a(f"v_add_f32 v{G0}, v{G0}, v{G0+3}")
        a(f"v_add_f32 v{G0+1}, v{G0+1}, v{G0+2}")
    a(f"v_add_f32 v{G0}, v{G0}, v{G0+1}")
    for x in (1, 2, 4, 8):
        a(f"ds_swizzle_b32 v{G0+1}, v{G0} offset:{(x << 10) | 0x1f}")
        a("s_waitcnt lgkmcnt(0)")
        a(f"v_add_f32 v{G0}, v{G0}, v{G0+1}")
    a(f"v_cvt_pk_bf16_f32 v{G0}, v{G0}, v{G0}")
    a(f"v_lshlrev_b32 v{G0}, 16, v{G0}")
    a(f"v_mul_f32 v{G0}, s{S_NL}, v{G0}")
    a(f"v_exp_f32 v{G0}, v{G0}")
    a("s_nop 0")
    a(f"v_add_f32 v{G0}, 1.0, v{G0}")
    a(f"v_rcp_f32 v{G0}, v{G0}")
    a("s_nop 0")
    a(f"v_cvt_pk_bf16_f32 v{G0}, v{G0}, v{G0}")
    a(f"v_lshlrev_b32 v{G0}, 16, v{G0}")
    a(f"v_lshlrev_b32 v{t}, 2, v{t}")
    a(f"v_add_u32 v{t}, {WS_G}, v{t}")
    a(f"v_and_b32 v{t+1}, 15, v{V_LANE}")
    a(f"v_cmp_eq_u32 vcc, 0, v{t+1}")
    a(f"s_and_saveexec_b64 s[{S_T+2}:{S_T+3}], vcc")
    a(f"buffer_store_dword v{G0}, v{t}, s[{S_WS}:{S_WS+3}], 0 offen")
    a(f"s_mov_b64 exec, s[{S_T+2}:{S_T+3}]")
    a.label("K1_gdone")

def gen_k1(a):
    name = "k1_kernel"
    kernel_header(a, name)
    NST[0] = 0
    stamp(a)
    gen_prologue(a)
    a(f"s_cmp_eq_u32 s{S_BR}, 0")
    a("s_cbranch_scc0 K1_B")
    gen_wphi_issue(a)
    gen_mainloop(a, halo=False, pre_hook=lambda: gen_wphi_stage(a))
    stamp(a)
    gen_epilogue_A(a)
    stamp_flush(a)
    a("s_endpgm")
    a.label("K1_B")
    NST[0] = 1
    gen_mainloop(a, halo=True)
    stamp(a)
    gen_epilogue_B(a)
    stamp_flush(a)
    a.label("K1_done")
    a("s_endpgm")
    return name
```

```python
from common import *
from k2 import VM, nop

WS_OA = 0x1800000

V_LANE = 1; V_T = 2; V_GRP = 10; V_WB = 11; V_OB0 = 12; V_OB1 = 13; V_G = 14
V_OA0 = 16; V_OA1 = 17
V_DMA = 18
V_RING = 24
V_OBF = 48
V_OAF = 88
V_ACCB = 128
V_ACCA = 168
V_P = 88
S_W = 4; S_WS = 12; S_OUT = 16; S_DBG = 20
S_I = 24; S_JC = 25; S_WAVE = 26; S_RH = 27; S_KQ = 28; S_ROT = 29; S_T = 30; S_SOFF = 38; S_PTR = 40
S_WA = 52; S_WB_ = 56; S_H = 60; S_RB = 61; S_E = 62
K4_LDS = 163840
LKV = 31 * 5120
RING = 6; D = 5
STAMPS = False
S_ST = 64
NST = [0]
def stamp(a):
    if STAMPS:
        k = NST[0]; NST[0] += 1
        a(f"s_memtime s[{S_ST+2*k}:{S_ST+2*k+1}]")
def stamp_flush(a):
    if STAMPS:
        n = NST[0]
        a("s_waitcnt lgkmcnt(0) vmcnt(0)")
        a(f"s_memtime s[{S_ST+2*n}:{S_ST+2*n+1}]")
        a("s_waitcnt lgkmcnt(0)")
        a(f"s_lshl_b32 s{S_T}, s2, 3")
        a(f"s_add_u32 s{S_T}, s{S_T}, s{S_WAVE}")
        a(f"s_lshl_b32 s{S_T}, s{S_T}, 6")
        a(f"s_add_u32 s{S_T}, s{S_T}, {WS_DBG + 0x100000}")
        a(f"v_mov_b32 v2, s{S_T}")
        a("s_mov_b64 exec, 1")
        for k in range(n + 1):
            a(f"v_mov_b32 v3, s{S_ST+2*k}")
            a(f"buffer_store_dword v3, v2, s[{S_WS}:{S_WS+3}], 0 offen offset:{4*k}")
            a("s_nop 1")
        a("s_mov_b64 exec, -1")

def slotA(ks):
    return 20 + ks if ks < 11 else ks - 11

def gen_k4(a, standalone=True):
    name = "k4_kernel"
    if standalone:
        kernel_header(a, name)
    vm = VM(a)
    t = V_T
    NST[0] = 0
    stamp(a)
    if standalone:
        a("s_cmp_ge_u32 s2, 256")
        a("s_cbranch_scc1 K4_done")
    a(f"s_load_dwordx2 s[{S_PTR}:{S_PTR+1}], s[0:1], 24")
    a(f"s_load_dwordx2 s[{S_PTR+2}:{S_PTR+3}], s[0:1], 48")
    a(f"s_load_dwordx4 s[{S_PTR+4}:{S_PTR+7}], s[0:1], 64")
    a(f"s_load_dwordx2 s[{S_PTR+8}:{S_PTR+9}], s[0:1], 80")
    a(f"s_and_b32 s{S_E}, s2, 7")
    a(f"s_lshr_b32 s{S_T+1}, s2, 3")
    a(f"s_lshl_b32 s{S_I}, s{S_E}, 2")
    a(f"s_and_b32 s{S_ROT}, s{S_T+1}, 3")
    a(f"s_add_u32 s{S_I}, s{S_I}, s{S_ROT}")
    a(f"s_lshr_b32 s{S_JC}, s{S_T+1}, 2")
    a(f"s_and_b32 s{S_H}, s2, 31")
    a(f"s_lshr_b32 s{S_RB}, s2, 5")
    a(f"v_lshrrev_b32 v{t}, 6, v0")
    a(f"v_and_b32 v{V_LANE}, 63, v0")
    a(f"v_readfirstlane_b32 s{S_WAVE}, v{t}")
    a(f"v_lshrrev_b32 v{V_GRP}, 4, v{V_LANE}")
    a(f"v_mul_u32_u24 v{t}, 6554, v0")
    a(f"v_lshrrev_b32 v{t}, 16, v{t}")
    a(f"v_mul_u32_u24 v{t+1}, 10, v{t}")
    a(f"v_sub_u32 v{t+1}, v0, v{t+1}")
    a(f"v_mul_u32_u24 v{t+2}, 192, v{t}")
    a(f"v_lshl_add_u32 v{t+2}, v{t+1}, 4, v{t+2}")
    a(f"v_mul_u32_u24 v{t+3}, 80, v{t}")
    a(f"v_lshl_add_u32 v{t+3}, v{t+1}, 3, v{t+3}")
    a(f"v_add_u32 v{t+3}, {LKV}, v{t+3}")
    a(f"s_mul_i32 s{S_T}, s{S_H}, 6144")
    a(f"s_add_u32 s{S_T}, s{S_T}, {WS_PART}")
    a(f"v_add_u32 v{t+2}, s{S_T}, v{t+2}")
    a(f"s_and_b32 s{S_RH}, s{S_WAVE}, 1")
    a(f"s_lshr_b32 s{S_KQ}, s{S_WAVE}, 1")
    a("s_waitcnt lgkmcnt(0)")
    srd(a, S_WS, S_PTR + 8, WS_SIZE)
    SC = " sc1" if not standalone else ""
    PB = V_P
    PQ = V_P + 64
    N = V_P + 80
    a("v_cmp_gt_u32 vcc, 210, v0")
    a(f"s_and_saveexec_b64 s[{S_T+2}:{S_T+3}], vcc")
    a("s_cbranch_execz K4_a")
    for rt in range(16):
        a(f"s_mov_b32 s{S_T+4}, {rt*32*6144}")
        a(f"buffer_load_dwordx4 {v(PB+4*rt,4)}, v{t+2}, s[{S_WS}:{S_WS+3}], s{S_T+4} offen{SC}")
    a.label("K4_a")
    a(f"s_mov_b64 exec, s[{S_T+2}:{S_T+3}]")
    for i in range(2):
        for k in range(4):
            a(f"v_mov_b32 v{PQ+(i*2+1)*4+k}, 0")
    a(f"s_lshl_b32 s{S_T}, s{S_RB}, 4")
    a(f"s_lshl_b32 s{S_T+1}, s{S_WAVE}, 1")
    a(f"s_add_u32 s{S_T}, s{S_T}, s{S_T+1}")
    a(f"s_lshl_b32 s{S_T+1}, s{S_T}, 5")
    a(f"s_add_u32 s{S_T+1}, s{S_T+1}, s{S_H}")
    a(f"s_mul_i32 s{S_T+1}, s{S_T+1}, 1280")
    a(f"s_add_u32 s{S_T+1}, s{S_T+1}, {WS_PHIQ}")
    a(f"v_lshlrev_b32 v{t+4}, 4, v{V_LANE}")
    a(f"v_add_u32 v{t+5}, s{S_T+1}, v{t+4}")
    for i in range(2):
        a(f"s_mov_b32 s{S_T+4}, {i*32*1280}")
        a(f"buffer_load_dwordx4 {v(PQ+(i*2)*4,4)}, v{t+5}, s[{S_WS}:{S_WS+3}], s{S_T+4} offen{SC}")
        vm.issue("PQ")
    a("s_mov_b64 exec, 0xffff")
    for i in range(2):
        a(f"s_mov_b32 s{S_T+4}, {i*32*1280}")
        a(f"buffer_load_dwordx4 {v(PQ+(i*2+1)*4,4)}, v{t+5}, s[{S_WS}:{S_WS+3}], s{S_T+4} offen offset:1024{SC}")
        vm.issue("PQ")
    a("s_mov_b64 exec, -1")
    a(f"s_mul_i32 s{S_T+1}, s{S_T}, 20480")
    a(f"s_add_u32 s{S_T+1}, s{S_T+1}, {WS_OA}")
    a(f"s_mul_i32 s{S_T+4}, s{S_H}, 20")
    a(f"v_and_b32 v{t+5}, 15, v{V_LANE}")
    a(f"v_lshlrev_b32 v{t+5}, 4, v{t+5}")
    a(f"v_add_u32 v{t+5}, s{S_T+1}, v{t+5}")
    a(f"v_lshlrev_b32 v{t+6}, 2, v{V_GRP}")
    a(f"v_add_u32 v{t+6}, s{S_T+4}, v{t+6}")
    for td in range(2):
        o = V_OA0 + td
        a(f"v_add_u32 v{t+7}, {16*td}, v{t+6}")
        a(f"v_lshrrev_b32 v{t}, 5, v{t+7}")
        a(f"v_lshl_add_u32 v{o}, v{t}, 10, v{t+5}")
        a(f"v_bfe_u32 v{t}, v{t+7}, 3, 2")
        a(f"v_lshl_add_u32 v{o}, v{t}, 8, v{o}")
        a(f"v_bfe_u32 v{t}, v{t+7}, 2, 1")
        a(f"v_lshl_add_u32 v{o}, v{t}, 3, v{o}")
    a(f"s_mul_i32 s{S_T+1}, s{S_JC}, 160")
    a(f"s_mov_b32 s{S_T+2}, 6554")
    R0 = V_RING
    for n in range(5):
        a(f"v_add_u32 v{R0}, {n*64}, v{V_LANE}")
        a(f"v_mul_u32_u24 v{R0+1}, s{S_T+2}, v{R0}")
        a(f"v_lshrrev_b32 v{R0+1}, 16, v{R0+1}")
        a(f"v_mul_u32_u24 v{R0+2}, 10, v{R0+1}")
        a(f"v_sub_u32 v{R0+2}, v{R0}, v{R0+2}")
        a(f"v_lshlrev_b32 v{R0+2}, 4, v{R0+2}")
        a(f"v_add_u32 v{R0+2}, s{S_T+1}, v{R0+2}")
        a(f"v_bfe_u32 v{R0+3}, v{R0+1}, 4, 1")
        a(f"v_bfe_u32 v{R0+4}, v{R0+1}, 2, 2")
        a(f"v_and_b32 v{R0+5}, 3, v{R0+1}")
        a(f"v_lshl_add_u32 v{R0+5}, v{R0+3}, 2, v{R0+5}")
        a(f"v_lshl_add_u32 v{R0+6}, v{R0+4}, 3, v{R0+5}")
        a(f"v_mul_u32_u24 v{R0+6}, 1280, v{R0+6}")
        a(f"v_add_u32 v{V_DMA+n}, v{R0+6}, v{R0+2}")
    srd(a, S_WA, S_PTR, 640 * 1280)
    srd(a, S_WB_, S_PTR + 2, 640 * 1280)
    srd(a, S_OUT, S_PTR + 4, 2048 * 1280)
    srd(a, S_DBG, S_PTR + 6, 256)
    lbl = [0]
    def wgroup(isA, gi, count=True):
        sr = S_WA if isA else S_WB_
        if isA:
            lo, hi = {0: (0, 8), 1: (8, 11), 2: (11, 19), 3: (19, 20)}[gi]
        else:
            lo, hi = {0: (0, 8), 1: (8, 16), 2: (16, 20)}[gi]
        nb = hi - lo
        lab = None
        if nb < 8:
            lbl[0] += 1; lab = f"K4_w{lbl[0]}"
            a(f"s_cmp_ge_u32 s{S_WAVE}, {nb}")
            a(f"s_cbranch_scc1 {lab}")
        a(f"s_add_u32 s{S_T}, s{S_WAVE}, {lo}")
        a(f"s_mul_i32 s{S_SOFF}, s{S_T}, {32*1280}")
        base_slot = (slotA(lo) if isA else lo) - lo
        a(f"s_add_u32 s{S_T}, s{S_T}, {base_slot}" if base_slot >= 0 else f"s_sub_u32 s{S_T}, s{S_T}, {-base_slot}")
        a(f"s_mul_i32 s{S_T+1}, s{S_T}, 5120")
        for n in range(5):
            a(f"s_add_u32 m0, s{S_T+1}, {n*1024}")
            a("s_nop 0")
            a(f"buffer_load_dwordx4 v{V_DMA+n}, s[{sr}:{sr+3}], s{S_SOFF} offen lds")
            if nb == 8:
                vm.issue("WA" if isA else "WB")
        if lab:
            a.label(lab)
    wgroup(False, 0); wgroup(False, 1); wgroup(False, 2)
    a(f"s_lshl_b32 s{S_T}, s{S_I}, 2")
    a(f"s_lshl_b32 s{S_T+1}, s{S_RH}, 1")
    a(f"s_add_u32 s{S_T}, s{S_T}, s{S_T+1}")
    a(f"s_mul_i32 s{S_T+1}, s{S_T}, 20")
    a(f"s_mul_i32 s{S_T+2}, s{S_KQ}, 5")
    a(f"s_add_u32 s{S_T+1}, s{S_T+1}, s{S_T+2}")
    a(f"s_lshl_b32 s{S_T+1}, s{S_T+1}, 10")
    a(f"v_add_u32 v{V_OB0}, s{S_T+1}, v{t+4}")
    a(f"v_add_u32 v{V_OB1}, {20*1024}, v{V_OB0}")
    def o_loads(dst, base, tag, sc):
        for ks in range(5):
            a(f"s_mov_b32 s{S_SOFF+1}, {base + ks*1024}")
            for rt in range(2):
                a(f"buffer_load_dwordx4 {v(dst+(ks*2+rt)*4,4)}, v{V_OB0+rt}, s[{S_WS}:{S_WS+3}], s{S_SOFF+1} offen{sc}")
                vm.issue(tag)
    o_loads(V_OBF, WS_OB, "OB", SC)
    a(f"s_lshl_b32 s{S_T}, s{S_I}, 6")
    a(f"s_lshl_b32 s{S_T+1}, s{S_RH}, 5")
    a(f"s_add_u32 s{S_T}, s{S_T}, s{S_T+1}")
    a(f"v_and_b32 v{t}, 15, v{V_LANE}")
    a(f"v_add_u32 v{t}, s{S_T}, v{t}")
    a(f"v_lshlrev_b32 v{t}, 2, v{t}")
    a(f"v_add_u32 v{t}, {WS_G}, v{t}")
    a(f"buffer_load_dword v{V_G}, v{t}, s[{S_WS}:{S_WS+3}], 0 offen{SC}")
    vm.issue("OB")
    a(f"buffer_load_dword v{V_G+1}, v{t}, s[{S_WS}:{S_WS+3}], 0 offen offset:64{SC}")
    vm.issue("OB")
    a(f"v_mov_b32 v{t}, 0")
    a(f"v_mov_b32 v{t+1}, 0")
    a(f"v_lshlrev_b32 v{t+7}, 3, v{V_LANE}")
    a(f"v_add_u32 v{t+7}, {LKV + 1680}, v{t+7}")
    a(f"ds_write_b64 v{t+7}, {v(t,2)}")
    a(f"v_and_b32 v{t+5}, 15, v{V_LANE}")
    a(f"v_mul_u32_u24 v{t+6}, 80, v{t+5}")
    a(f"v_lshl_add_u32 v{t}, v{V_GRP}, 4, v{t+6}")
    a(f"v_add_u32 v{t}, {LKV}, v{t}")
    a(f"v_add_u32 v{t+6}, 16, v{t+5}")
    a(f"v_min_u32 v{t+6}, 20, v{t+6}")
    a(f"v_mul_u32_u24 v{t+6}, 80, v{t+6}")
    a(f"v_lshl_add_u32 v{t+1}, v{V_GRP}, 4, v{t+6}")
    a(f"v_add_u32 v{t+1}, {LKV}, v{t+1}")
    stamp(a)
    a("v_cmp_gt_u32 vcc, 210, v0")
    a(f"s_and_saveexec_b64 s[{S_T+2}:{S_T+3}], vcc")
    a("s_cbranch_execz K4_b")
    a(f"s_waitcnt vmcnt({len(vm.q)})")
    for rt in range(1, 16):
        for k in range(4):
            a(f"v_add_f32 v{PB+k}, v{PB+k}, v{PB+4*rt+k}")
    a(f"v_cvt_pk_bf16_f32 v{PB}, v{PB}, v{PB+1}")
    a(f"v_cvt_pk_bf16_f32 v{PB+1}, v{PB+2}, v{PB+3}")
    a(f"ds_write_b64 v{t+3}, {v(PB,2)}")
    a.label("K4_b")
    a(f"s_mov_b64 exec, s[{S_T+2}:{S_T+3}]")
    a("s_waitcnt lgkmcnt(0)")
    a("s_barrier")
    KF = PB
    for tl in range(2):
        for ks in range(2):
            a(f"ds_read_b128 {v(KF+(tl*2+ks)*4,4)}, v{t+tl} offset:{ks*64}")
    a(f"s_mov_b32 s{S_T+7}, 0x358637bd")
    vm.wait("PQ")
    a("s_waitcnt lgkmcnt(0)")
    for i in range(2):
        for tl in range(2):
            a(f"v_mfma_f32_16x16x32_bf16 {v(N+i*8+tl*4,4)}, {v(KF+(tl*2)*4,4)}, {v(PQ+(i*2)*4,4)}, 0")
    for i in range(2):
        for tl in range(2):
            d = N + i * 8 + tl * 4
            a(f"v_mfma_f32_16x16x32_bf16 {v(d,4)}, {v(KF+(tl*2+1)*4,4)}, {v(PQ+(i*2+1)*4,4)}, {v(d,4)}")
    nop(a, 8)
    a(f"v_cmp_gt_u32 vcc, 16, v{V_LANE}")
    T2 = PB + 16
    for i in range(2):
        n0 = N + i * 8
        a(f"v_mov_b32 v{T2+2*i}, v{n0+4}")
        a(f"v_mov_b32 v{T2+2*i+1}, v{n0+4}")
    nop(a, 2)
    for i in range(2):
        a(f"v_permlane16_swap_b32 v{T2+2*i}, v{T2+2*i+1}")
    nop(a, 2)
    for i in range(2):
        n0 = N + i * 8
        dn = T2 + 2 * i
        a(f"v_cndmask_b32 v{dn}, v{n0+4}, v{dn+1}, vcc")
        a(f"v_cvt_pk_bf16_f32 v{dn}, v{dn}, v{dn}")
        a(f"v_lshlrev_b32 v{dn}, 16, v{dn}")
        a(f"v_add_f32 v{dn}, s{S_T+7}, v{dn}")
        a(f"v_cvt_pk_bf16_f32 v{dn}, v{dn}, v{dn}")
        a(f"v_lshlrev_b32 v{dn}, 16, v{dn}")
        a(f"v_rcp_f32 v{dn}, v{dn}")
        for k in range(4):
            a(f"v_cvt_pk_bf16_f32 v{PQ+k}, v{n0+2*k}, v{n0+2*k+1}")
        for k in range(4):
            a(f"v_lshlrev_b32 v{n0+2*k}, 16, v{PQ+k}")
            a(f"v_and_b32 v{n0+2*k+1}, 0xffff0000, v{PQ+k}")
        for k in range(8):
            a(f"v_mul_f32 v{n0+k}, v{n0+k}, v{dn}")
        for k in range(4):
            a(f"v_cvt_pk_bf16_f32 v{n0+k}, v{n0+2*k}, v{n0+2*k+1}")
        a(f"s_mov_b32 s{S_T+4}, {i*20480}")
        a(f"buffer_store_dwordx2 {v(n0,2)}, v{V_OA0}, s[{S_WS}:{S_WS+3}], s{S_T+4} offen sc1")
    a("s_mov_b64 exec, 0xffff")
    for i in range(2):
        n0 = N + i * 8
        a(f"s_mov_b32 s{S_T+4}, {i*20480}")
        a(f"buffer_store_dwordx2 {v(n0+2,2)}, v{V_OA1}, s[{S_WS}:{S_WS+3}], s{S_T+4} offen sc1")
    a("s_mov_b64 exec, -1")
    a("s_waitcnt vmcnt(0)")
    vm.q = []
    a("s_barrier")
    a(f"s_cmp_lg_u32 s{S_WAVE}, 0")
    a("s_cbranch_scc1 K4_sig")
    a(f"s_lshl_b32 s{S_T}, s{S_RB}, 2")
    a(f"v_mov_b32 v{t}, s{S_T}")
    a(f"v_mov_b32 v{t+1}, 1")
    a("s_mov_b64 exec, 1")
    a(f"buffer_atomic_add v{t+1}, v{t}, s[{S_DBG}:{S_DBG+3}], 0 offen sc1")
    a("s_mov_b64 exec, -1")
    a.label("K4_sig")
    stamp(a)
    a(f"v_and_b32 v{t}, 3, v{V_LANE}")
    a(f"v_lshrrev_b32 v{t+2}, 2, v{V_LANE}")
    a(f"v_mul_u32_u24 v{t+2}, 160, v{t+2}")
    a(f"v_lshl_add_u32 v{V_WB}, v{t}, 3, v{t+2}")
    def gemm(isA, hooks):
        items = [(b, T) for b in range(5) for T in range(5)]
        n_it = 25
        def reads(Nn):
            b, T = items[Nn]
            slot = V_RING + (Nn % RING) * 4
            if T == 0:
                a(f"s_mul_i32 s{S_T}, s{S_KQ}, 5")
                a(f"s_add_u32 s{S_T}, s{S_T}, {b}")
                if isA:
                    a(f"s_add_u32 s{S_T+1}, s{S_T}, 20")
                    a(f"s_sub_u32 s{S_T+2}, s{S_T}, 11")
                    a(f"s_cmp_lt_u32 s{S_T}, 11")
                    a(f"s_cselect_b32 s{S_T}, s{S_T+1}, s{S_T+2}")
                a(f"s_mul_i32 s{S_T}, s{S_T}, 5120")
                a(f"v_add_u32 v{t+(b%2)}, s{S_T}, v{V_WB}")
            for qq in range(2):
                a(f"ds_read_b64_tr_b16 {v(slot+2*qq,2)}, v{t+(b%2)} offset:{qq*2560 + T*32}")
        for Nn in range(D):
            reads(Nn)
        for Nn in range(n_it):
            if Nn + D < n_it:
                reads(Nn + D)
                a(f"s_waitcnt lgkmcnt({2*D})")
            else:
                a(f"s_waitcnt lgkmcnt({2*(n_it-1-Nn)})")
            b, T = items[Nn]
            slot = V_RING + (Nn % RING) * 4
            for rt in range(2):
                acc = (V_ACCA if isA else V_ACCB) + (rt * 5 + T) * 4
                bb = v((V_OAF if isA else V_OBF) + (b * 2 + rt) * 4, 4)
                src = "0" if b == 0 else v(acc, 4)
                a(f"v_mfma_f32_16x16x32_bf16 {v(acc,4)}, {v(slot,4)}, {bb}, {src}")
            if Nn in hooks:
                hooks[Nn]()
    gemm(False, {1: lambda: wgroup(True, 0), 8: lambda: wgroup(True, 1)})
    stamp(a)
    a("s_waitcnt lgkmcnt(0)")
    a("s_barrier")
    wgroup(True, 2); wgroup(True, 3)
    a(f"s_cmp_lg_u32 s{S_WAVE}, 0")
    a("s_cbranch_scc1 K4_pd")
    a(f"s_lshl_b32 s{S_T}, s{S_E}, 2")
    a(f"v_mov_b32 v{t+4}, s{S_T}")
    a(f"s_mov_b32 s{S_T+1}, 0")
    a.label("K4_poll")
    a(f"buffer_load_dword v{t+5}, v{t+4}, s[{S_DBG}:{S_DBG+3}], 0 offen sc1")
    a("s_waitcnt vmcnt(0)")
    a(f"v_readfirstlane_b32 s{S_T}, v{t+5}")
    a("s_nop 3")
    a(f"s_cmp_ge_u32 s{S_T}, 32")
    a("s_cbranch_scc1 K4_pd")
    a(f"s_add_u32 s{S_T+1}, s{S_T+1}, 1")
    a(f"s_cmp_ge_u32 s{S_T+1}, 0x40000")
    a("s_cbranch_scc1 K4_pd")
    a("s_sleep 2")
    a("s_branch K4_poll")
    a.label("K4_pd")
    a("s_barrier")
    stamp(a)
    o_loads(V_OAF, WS_OA, "OA", " sc1")
    a("s_waitcnt vmcnt(0)")
    vm.q = []
    a("s_barrier")
    stamp(a)
    gemm(True, {})
    stamp(a)
    a("s_waitcnt lgkmcnt(0)")
    a("s_barrier")
    nop(a, 8)
    a(f"v_lshlrev_b32 v{t}, 4, v{V_LANE}")
    a(f"s_mul_i32 s{S_T}, s{S_WAVE}, 20480")
    a(f"v_add_u32 v{t+1}, s{S_T}, v{t}")
    for u in range(20):
        a(f"ds_write_b128 v{t+1}, {v(V_ACCB+u*4,4)} offset:{u*1024}")
    a("s_waitcnt lgkmcnt(0)")
    a("s_barrier")
    X = 48
    for y in range(3):
        if y == 2:
            a(f"s_cmp_ge_u32 s{S_KQ}, 2")
            a("s_cbranch_scc1 K4_fin")
        a(f"s_add_u32 s{S_T}, s{S_KQ}, {4*y}")
        a(f"s_cmp_ge_u32 s{S_T}, 5")
        a(f"s_cselect_b32 s{S_T+1}, 1, 0")
        a(f"s_mul_i32 s{S_T+2}, s{S_T+1}, 5")
        a(f"s_sub_u32 s{S_T+2}, s{S_T}, s{S_T+2}")
        a(f"s_lshl_b32 s{S_T+3}, s{S_T}, 10")
        a(f"s_mul_i32 s{S_T+4}, s{S_RH}, 20480")
        a(f"s_add_u32 s{S_T+3}, s{S_T+3}, s{S_T+4}")
        a(f"v_add_u32 v{t+2}, s{S_T+3}, v{t}")
        a(f"v_add_u32 v{t+7}, {2*40960}, v{t+2}")
        for q in range(4):
            ra = t + 2 if q < 2 else t + 7
            a(f"ds_read_b128 {v(X+q*4,4)}, v{ra} offset:{(q%2)*40960 + 10240}")
            a(f"ds_read_b128 {v(X+16+q*4,4)}, v{ra} offset:{(q%2)*40960}")
        a(f"s_lshl_b32 s{S_T+3}, s{S_I}, 6")
        a(f"s_lshl_b32 s{S_T+4}, s{S_RH}, 5")
        a(f"s_add_u32 s{S_T+3}, s{S_T+3}, s{S_T+4}")
        a(f"s_lshl_b32 s{S_T+4}, s{S_T+1}, 4")
        a(f"s_add_u32 s{S_T+3}, s{S_T+3}, s{S_T+4}")
        a(f"v_and_b32 v{t+3}, 15, v{V_LANE}")
        a(f"v_add_u32 v{t+3}, s{S_T+3}, v{t+3}")
        a(f"s_cmp_eq_u32 s{S_T+1}, 1")
        a(f"s_cselect_b64 vcc, -1, 0")
        a(f"v_cndmask_b32 v{t+6}, v{V_G}, v{V_G+1}, vcc")
        a(f"v_mul_u32_u24 v{t+3}, 1280, v{t+3}")
        a(f"v_lshl_add_u32 v{t+3}, v{V_GRP}, 3, v{t+3}")
        a(f"s_mul_i32 s{S_T+3}, s{S_JC}, 160")
        a(f"s_lshl_b32 s{S_T+4}, s{S_T+2}, 5")
        a(f"s_add_u32 s{S_T+3}, s{S_T+3}, s{S_T+4}")
        a(f"v_add_u32 v{t+3}, s{S_T+3}, v{t+3}")
        a("s_waitcnt lgkmcnt(0)")
        for k in range(4):
            a(f"v_add_f32 v{X+k}, v{X+k}, v{X+4+k}")
            a(f"v_add_f32 v{X+8+k}, v{X+8+k}, v{X+12+k}")
            a(f"v_add_f32 v{X+16+k}, v{X+16+k}, v{X+20+k}")
            a(f"v_add_f32 v{X+24+k}, v{X+24+k}, v{X+28+k}")
        for k in range(4):
            a(f"v_add_f32 v{X+k}, v{X+k}, v{X+8+k}")
            a(f"v_add_f32 v{X+8+k}, v{X+16+k}, v{X+24+k}")
        a(f"v_cvt_pk_bf16_f32 v{X+4}, v{X}, v{X+1}")
        a(f"v_cvt_pk_bf16_f32 v{X+5}, v{X+2}, v{X+3}")
        a(f"v_cvt_pk_bf16_f32 v{X+6}, v{X+8}, v{X+9}")
        a(f"v_cvt_pk_bf16_f32 v{X+7}, v{X+10}, v{X+11}")
        for k in range(2):
            a(f"v_lshlrev_b32 v{X+2*k}, 16, v{X+4+k}")
            a(f"v_and_b32 v{X+2*k+1}, 0xffff0000, v{X+4+k}")
            a(f"v_lshlrev_b32 v{X+8+2*k}, 16, v{X+6+k}")
            a(f"v_and_b32 v{X+8+2*k+1}, 0xffff0000, v{X+6+k}")
        a(f"v_sub_f32 v{t+5}, 1.0, v{t+6}")
        a(f"v_cvt_pk_bf16_f32 v{t+5}, v{t+5}, v{t+5}")
        a(f"v_lshlrev_b32 v{t+5}, 16, v{t+5}")
        for k in range(4):
            a(f"v_mul_f32 v{X+k}, v{X+k}, v{t+6}")
            a(f"v_mul_f32 v{X+8+k}, v{X+8+k}, v{t+5}")
        a(f"v_cvt_pk_bf16_f32 v{X+4}, v{X}, v{X+1}")
        a(f"v_cvt_pk_bf16_f32 v{X+5}, v{X+2}, v{X+3}")
        a(f"v_cvt_pk_bf16_f32 v{X+6}, v{X+8}, v{X+9}")
        a(f"v_cvt_pk_bf16_f32 v{X+7}, v{X+10}, v{X+11}")
        for k in range(2):
            a(f"v_lshlrev_b32 v{X+2*k}, 16, v{X+4+k}")
            a(f"v_and_b32 v{X+2*k+1}, 0xffff0000, v{X+4+k}")
            a(f"v_lshlrev_b32 v{X+8+2*k}, 16, v{X+6+k}")
            a(f"v_and_b32 v{X+8+2*k+1}, 0xffff0000, v{X+6+k}")
        for k in range(4):
            a(f"v_add_f32 v{X+k}, v{X+k}, v{X+8+k}")
        a(f"v_cvt_pk_bf16_f32 v{X+4}, v{X}, v{X+1}")
        a(f"v_cvt_pk_bf16_f32 v{X+5}, v{X+2}, v{X+3}")
        a(f"buffer_store_dwordx2 {v(X+4,2)}, v{t+3}, s[{S_OUT}:{S_OUT+3}], 0 offen")
        nop(a, 2)
    a.label("K4_fin")
    stamp_flush(a)
    if standalone:
        a.label("K4_done")
        a("s_endpgm")
    return name
```

```python
import sys
from common import *
import k1v2 as k1, k4
def build(path, stamps=False):
    k1.STAMPS = stamps
    k4.STAMPS = stamps
    k1.PREFETCH = False
    a = Asm()
    hdr = open("cdna_kernels/" + KNAME + ".s.ref").read().split("; Override launch")[0]
    a.raw(hdr.rstrip("\n"))
    a.raw(f"; @launch kernel=k1_kernel grid=(256,1,1) block=(512,1,1) lds={k1.K1_LDS}")
    a.raw(f"; @launch kernel=k4_kernel grid=(256,1,1) block=(512,1,1) lds={k4.K4_LDS}")
    a.raw('.amdgcn_target "amdgcn-amd-amdhsa--gfx950"')
    a.raw(".text")
    k1.gen_k1(a)
    k4.gen_k4(a)
    a.raw('.section .rodata,"a"')
    a.raw(".p2align 6")
    kernel_desc(a, "k1_kernel", 240, 102)
    a.raw(".p2align 6")
    kernel_desc(a, "k4_kernel", 208, 96)
    open(path, "w").write(a.text())
if __name__ == "__main__":
    build(sys.argv[1], stamps=("stamps" in sys.argv))
```

```python
from common import *

V_LANE = 1; V_T0 = 2
V_GRP = 10
V_WA = 11; V_WB = 12
V_X0 = 13; V_X1 = 14
V_XH0 = 15; V_XH1 = 16
V_H0 = 17; V_H1 = 18
V_DMA = 20
V_WR = 28
V_X = 52
V_ACC = 76
V_HACC = 140
V_E = 148

S_X = 4; S_W = 8; S_WS = 12; S_AUX = 16
S_I = 20; S_J = 21; S_BR = 22; S_WAVE = 23; S_RG = 24; S_CG = 25
S_T = 26
S_SOFF = 34; S_STEP = 35
S_L = 36; S_NL = 37; S_ROT = 38
S_LD = 40
S_PTR = 44
S_MASK = 56
S_M2 = 72
S_ST = 80

STG = 49152
XOFF = 30720
LDS_WPHI = 3 * STG
LDS_ZERO = LDS_WPHI + 3200
K1_LDS = LDS_ZERO + 1024

D = 5
RING = 6
STAMPS = False
NST = [0]

def nop(a, n):
    while n > 0:
        k = min(n, 16)
        a(f"s_nop {k-1}")
        n -= k

def stamp(a):
    if STAMPS:
        k = NST[0]; NST[0] += 1
        if k == 0:
            a(f"s_memrealtime s[98:99]")
        a(f"s_memtime s[{S_ST+2*k}:{S_ST+2*k+1}]")
def stamp_flush(a):
    if STAMPS:
        n = NST[0]
        a("s_waitcnt lgkmcnt(0) vmcnt(0)")
        a(f"s_memtime s[{S_ST+2*n}:{S_ST+2*n+1}]")
        a(f"s_memrealtime s[100:101]")
        a("s_waitcnt lgkmcnt(0)")
        a(f"s_lshl_b32 s{S_T}, s2, 3")
        a(f"s_add_u32 s{S_T}, s{S_T}, s{S_WAVE}")
        a(f"s_lshl_b32 s{S_T}, s{S_T}, 6")
        a(f"s_add_u32 s{S_T}, s{S_T}, {WS_DBG}")
        a(f"v_mov_b32 v2, s{S_T}")
        a("s_mov_b64 exec, 1")
        for k in range(n + 1):
            a(f"v_mov_b32 v3, s{S_ST+2*k}")
            a(f"buffer_store_dword v3, v2, s[{S_WS}:{S_WS+3}], 0 offen offset:{4*k}")
            a("s_nop 1")
        for k, sr in enumerate((98, 100)):
            a(f"v_mov_b32 v3, s{sr}")
            a(f"buffer_store_dword v3, v2, s[{S_WS}:{S_WS+3}], 0 offen offset:{48+4*k}")
            a("s_nop 1")
        a("s_mov_b64 exec, -1")

class Cnt:
    def __init__(self, a, kind, mx):
        self.a = a; self.q = []; self.kind = kind; self.mx = mx
    def issue(self, tag):
        self.q.append(tag)
        assert len(self.q) <= self.mx, f"too many outstanding {self.kind}"
    def wait(self, *tags):
        idx = -1
        for i, t in enumerate(self.q):
            if t in tags: idx = i
        if idx < 0: return
        n = len(self.q) - 1 - idx
        self.a(f"s_waitcnt {self.kind}({n})")
        self.q = self.q[idx+1:]
    def clear(self):
        self.q = []

def xreg(buf, r):
    return V_X + (buf * 3 + r) * 4
def acc(rt, sl):
    return V_ACC + (rt * 8 + sl) * 4

def gen_prologue(a):
    t = V_T0
    a("s_cmp_ge_u32 s2, 256")
    a("s_cbranch_scc1 K1_done")
    a(f"s_load_dwordx4 s[{S_PTR}:{S_PTR+3}], s[0:1], 0")
    a(f"s_load_dwordx2 s[{S_PTR+4}:{S_PTR+5}], s[0:1], 16")
    a(f"s_load_dwordx2 s[{S_PTR+6}:{S_PTR+7}], s[0:1], 40")
    a(f"s_load_dwordx2 s[{S_PTR+8}:{S_PTR+9}], s[0:1], 56")
    a(f"s_load_dwordx2 s[{S_PTR+10}:{S_PTR+11}], s[0:1], 80")
    a(f"s_and_b32 s{S_T}, s2, 7")
    a(f"s_lshr_b32 s{S_T+1}, s2, 3")
    a(f"s_and_b32 s{S_I}, s{S_T}, 1")
    a(f"s_lshl_b32 s{S_I}, s{S_I}, 3")
    a(f"s_and_b32 s{S_T+2}, s{S_T+1}, 7")
    a(f"s_add_u32 s{S_I}, s{S_I}, s{S_T+2}")
    a(f"s_lshr_b32 s{S_J}, s{S_T}, 1")
    a(f"s_lshl_b32 s{S_J}, s{S_J}, 1")
    a(f"s_lshr_b32 s{S_T+2}, s{S_T+1}, 3")
    a(f"s_and_b32 s{S_T+2}, s{S_T+2}, 1")
    a(f"s_add_u32 s{S_J}, s{S_J}, s{S_T+2}")
    a(f"s_lshr_b32 s{S_BR}, s{S_T+1}, 4")
    a(f"s_mul_i32 s{S_ROT}, s{S_T+1}, 3")
    a(f"s_mul_i32 s{S_T+2}, s{S_ROT}, 6554")
    a(f"s_lshr_b32 s{S_T+2}, s{S_T+2}, 16")
    a(f"s_mul_i32 s{S_T+2}, s{S_T+2}, 10")
    a(f"s_sub_u32 s{S_ROT}, s{S_ROT}, s{S_T+2}")
    a(f"v_lshrrev_b32 v{t}, 6, v0")
    a(f"v_and_b32 v{V_LANE}, 63, v0")
    a(f"v_readfirstlane_b32 s{S_WAVE}, v{t}")
    a(f"v_lshrrev_b32 v{V_GRP}, 4, v{V_LANE}")
    a(f"s_mov_b32 s{S_L}, 0x3fb8aa3b")
    a(f"s_mov_b32 s{S_NL}, 0xbfb8aa3b")
    a(f"s_and_b32 s{S_RG}, s{S_WAVE}, 3")
    a(f"s_lshr_b32 s{S_CG}, s{S_WAVE}, 2")
    a(f"s_mul_i32 s{S_T}, s{S_WAVE}, 384")
    a(f"s_mul_i32 s{S_T+1}, s{S_J}, 160")
    a(f"s_mov_b32 s{S_T+2}, 2185")
    a(f"s_lshl_b32 s{S_T+3}, s{S_I}, 7")
    a(f"s_sub_u32 s{S_T+3}, s{S_T+3}, {16 + 5*48}")
    a(f"s_mov_b32 s{S_T+4}, 1280")
    a(f"s_cmp_ge_u32 s{S_WAVE}, 5")
    a(f"s_cbranch_scc1 K1_xoff")
    for n in range(6):
        d = V_DMA + n
        a(f"v_add_u32 v{t}, s{S_T}, v{V_LANE}")
        if n:
            a(f"v_add_u32 v{t}, {n*64}, v{t}")
        a(f"v_mul_u32_u24 v{t+1}, s{S_T+2}, v{t}")
        a(f"v_lshrrev_b32 v{t+1}, 16, v{t+1}")
        a(f"v_mul_u32_u24 v{t+2}, 30, v{t+1}")
        a(f"v_sub_u32 v{t+2}, v{t}, v{t+2}")
        a(f"v_and_b32 v{t+3}, 0x23, v{t+1}")
        a(f"v_bfe_u32 v{t+4}, v{t+1}, 2, 2")
        a(f"v_lshl_add_u32 v{t+3}, v{t+4}, 3, v{t+3}")
        a(f"v_bfe_u32 v{t+4}, v{t+1}, 4, 1")
        a(f"v_lshl_add_u32 v{t+3}, v{t+4}, 2, v{t+3}")
        a(f"v_mul_u32_u24 v{t+3}, 3840, v{t+3}")
        a(f"v_mul_u32_u24 v{t+4}, 26, v{t+2}")
        a(f"v_lshrrev_b32 v{t+4}, 8, v{t+4}")
        a(f"v_mul_u32_u24 v{t+5}, 1120, v{t+4}")
        a(f"v_add_u32 v{t+3}, v{t+3}, v{t+5}")
        a(f"v_lshl_add_u32 v{t+3}, v{t+2}, 4, v{t+3}")
        a(f"v_add_u32 v{d}, s{S_T+1}, v{t+3}")
    a("s_branch K1_offdone")
    a.label("K1_xoff")
    a(f"v_lshrrev_b32 v{t}, 3, v{V_LANE}")
    a(f"v_and_b32 v{t+1}, 7, v{V_LANE}")
    a(f"v_xor_b32 v{t+1}, v{t+1}, v{t}")
    a(f"v_lshlrev_b32 v{t+1}, 4, v{t+1}")
    a(f"s_mul_i32 s{S_T}, s{S_WAVE}, 48")
    a(f"s_add_u32 s{S_T}, s{S_T}, s{S_T+3}")
    for n in range(6):
        a(f"v_add_u32 v{t+2}, s{S_T}, v{t}")
        if n:
            a(f"v_add_u32 v{t+2}, {8*n}, v{t+2}")
        a(f"v_mul_lo_u32 v{t+2}, v{t+2}, s{S_T+4}")
        a(f"v_add_u32 v{V_DMA+n}, v{t+2}, v{t+1}")
    a.label("K1_offdone")
    a("s_waitcnt lgkmcnt(0)")
    srd(a, S_X, S_PTR, 2048 * 1280)
    srd(a, S_WS, S_PTR + 10, WS_SIZE)
    a(f"s_cmp_eq_u32 s{S_BR}, 0")
    a(f"s_cselect_b32 s{S_T}, s{S_PTR+2}, s{S_PTR+6}")
    a(f"s_cselect_b32 s{S_T+1}, s{S_PTR+3}, s{S_PTR+7}")
    a(f"s_cselect_b32 s{S_T+2}, s{S_PTR+4}, s{S_PTR+8}")
    a(f"s_cselect_b32 s{S_T+3}, s{S_PTR+5}, s{S_PTR+9}")
    a(f"s_mov_b32 s{S_T+5}, 1280")
    a(f"s_cselect_b32 s{S_T+4}, 25600, s{S_T+5}")
    srd(a, S_W, S_T, 640 * 3840)
    a(f"s_mov_b32 s{S_AUX}, s{S_T+2}")
    a(f"s_and_b32 s{S_AUX+1}, s{S_T+3}, 0xffff")
    a(f"s_mov_b32 s{S_AUX+2}, s{S_T+4}")
    a(f"s_mov_b32 s{S_AUX+3}, 0x00020000")
    a(f"s_cmp_ge_u32 s{S_WAVE}, 5")
    for k in range(4):
        a(f"s_cselect_b32 s{S_LD+k}, s{S_X+k}, s{S_W+k}")
    a(f"s_mov_b32 s{S_T}, {64*3840}")
    a(f"s_cselect_b32 s{S_STEP}, 128, s{S_T}")

NO_LOADS = False
TOVGPR = False
MEGA = False
def SC():
    return ' sc1' if MEGA else ''
def dma(a, c, n):
    if NO_LOADS and c >= 3: return
    b = c % 3
    a(f"s_mul_i32 s{S_T}, s{S_WAVE}, 6144")
    a(f"s_add_u32 m0, s{S_T}, {b*STG + n*1024}")
    if n == 0 or True:
        a(f"s_add_u32 s{S_SOFF}, s{S_ROT}, {c}")
        a(f"s_sub_u32 s{S_T+1}, s{S_SOFF}, 10")
        a(f"s_cmp_ge_u32 s{S_SOFF}, 10")
        a(f"s_cselect_b32 s{S_SOFF}, s{S_T+1}, s{S_SOFF}")
        a(f"s_mul_i32 s{S_SOFF}, s{S_STEP}, s{S_SOFF}")
    if TOVGPR and c >= 3:
        a(f"buffer_load_dwordx4 v[{200+4*n}:{203+4*n}], v{V_DMA+n}, s[{S_LD}:{S_LD+3}], s{S_SOFF} offen")
    else:
        a(f"buffer_load_dwordx4 v{V_DMA+n}, s[{S_LD}:{S_LD+3}], s{S_SOFF} offen lds")

def gen_bases(a):
    t = V_T0
    a(f"v_lshrrev_b32 v{t}, 2, v{V_LANE}")
    a(f"v_mul_u32_u24 v{t}, 480, v{t}")
    a(f"v_and_b32 v{t+1}, 3, v{V_LANE}")
    a(f"v_mul_u32_u24 v{t+1}, 40, v{t+1}")
    a(f"v_add_u32 v{t}, v{t}, v{t+1}")
    a(f"s_mul_i32 s{S_T}, s{S_CG}, 160")
    a(f"v_add_u32 v{V_WA}, s{S_T}, v{t}")
    a(f"s_mul_i32 s{S_T}, s{S_CG}, 24")
    a(f"s_add_u32 s{S_T}, s{S_T}, 320")
    a(f"v_add_u32 v{V_WB}, s{S_T}, v{t}")
    for h in range(2):
        a(f"s_add_u32 s{S_T}, s{S_WAVE}, {8*h}")
        a(f"s_cmp_ge_u32 s{S_T}, 10")
        a(f"s_cselect_b32 s{S_T}, s{S_WAVE}, s{S_T}")
        a(f"s_add_u32 s{S_T}, s{S_T}, 5")
        a(f"s_cmp_ge_u32 s{S_T}, 10")
        a(f"s_mov_b32 s{S_T+2}, 120")
        a(f"s_cselect_b32 s{S_T+1}, 240, s{S_T+2}")
        a(f"s_lshl_b32 s{S_T}, s{S_T}, 3")
        a(f"s_add_u32 s{S_T}, s{S_T}, s{S_T+1}")
        a(f"v_add_u32 v{V_H0+h}, s{S_T}, v{t}")
    a(f"v_and_b32 v{t}, 15, v{V_LANE}")
    a(f"v_and_b32 v{t+1}, 7, v{V_LANE}")
    a(f"v_xor_b32 v{t+1}, v{t+1}, v{V_GRP}")
    a(f"v_lshlrev_b32 v{t+1}, 4, v{t+1}")
    a(f"v_lshl_add_u32 v{t+1}, v{t}, 7, v{t+1}")
    a(f"v_add_u32 v{V_XH0}, {XOFF}, v{t+1}")
    a(f"v_xor_b32 v{V_XH1}, 64, v{V_XH0}")
    a(f"s_lshl_b32 s{S_T}, s{S_RG}, 12")
    a(f"s_add_u32 s{S_T}, s{S_T}, 2048")
    a(f"v_add_u32 v{V_X0}, s{S_T}, v{V_XH0}")
    a(f"v_add_u32 v{V_X1}, s{S_T}, v{V_XH1}")

PREFETCH = True
def gen_prefetch(a):
    if not PREFETCH: return
    t = V_E + 16
    a(f"s_lshr_b32 s{S_T}, s2, 3")
    a(f"s_lshl_b32 s{S_T+1}, s{S_T}, 3")
    a(f"s_add_u32 s{S_T+1}, s{S_T+1}, s{S_WAVE}")
    a(f"s_lshl_b32 s{S_T+1}, s{S_T+1}, 6")
    a(f"v_add_u32 v{t}, s{S_T+1}, v{V_LANE}")
    a(f"s_and_b32 s{S_T+2}, s2, 1")
    a(f"s_mul_i32 s{S_T+2}, s{S_T+2}, {1024*1280}")
    a(f"v_lshlrev_b32 v{t+1}, 7, v{t}")
    a(f"v_add_u32 v{t+1}, s{S_T+2}, v{t+1}")
    a(f"v_mov_b32 v{t+2}, 0x7ff00000")
    a(f"v_cmp_le_u32 vcc, 10240, v{t}")
    a(f"v_and_b32 v{t+3}, 0x1fff, v{t}")
    a(f"v_cndmask_b32 v{t+1}, v{t+1}, v{t+2}, vcc")
    a(f"buffer_load_dword v{t+8}, v{t+1}, s[{S_X}:{S_X+3}], 0 offen")
    a(f"v_mul_u32_u24 v{t+4}, 5462, v{t+3}")
    a(f"v_lshrrev_b32 v{t+4}, 16, v{t+4}")
    a(f"v_mul_u32_u24 v{t+5}, 12, v{t+4}")
    a(f"v_sub_u32 v{t+5}, v{t+3}, v{t+5}")
    a(f"v_lshrrev_b32 v{t+6}, 2, v{t+5}")
    a(f"v_and_b32 v{t+5}, 3, v{t+5}")
    a(f"v_mul_u32_u24 v{t+4}, 3840, v{t+4}")
    a(f"v_mul_u32_u24 v{t+6}, 1280, v{t+6}")
    a(f"v_add_u32 v{t+4}, v{t+4}, v{t+6}")
    a(f"v_lshl_add_u32 v{t+4}, v{t+5}, 7, v{t+4}")
    a(f"s_and_b32 s{S_T+2}, s2, 7")
    a(f"s_lshr_b32 s{S_T+2}, s{S_T+2}, 1")
    a(f"s_mul_i32 s{S_T+2}, s{S_T+2}, 320")
    a(f"s_and_b32 s{S_T+2}, s{S_T+2}, 0xffffff80")
    a(f"v_add_u32 v{t+4}, s{S_T+2}, v{t+4}")
    a(f"v_cmp_le_u32 vcc, 7680, v{t+3}")
    a("s_nop 1")
    a(f"v_cndmask_b32 v{t+4}, v{t+4}, v{t+2}, vcc")
    a(f"buffer_load_dword v{t+9}, v{t+4}, s[{S_W}:{S_W+3}], 0 offen")

def gen_mainloop(a, halo, pre_hook=None):
    lg = Cnt(a, "lgkmcnt", 15)
    nxr = 3 if halo else 2
    items = []
    for c in range(10):
        for m in range(2):
            for sl in range(8):
                items.append((c, m, "m", sl))
                if halo and sl in (3, 7):
                    items.append((c, m, "h", sl // 4))
    per_k = len(items) // 20
    per_chunk = 2 * per_k
    total = len(items)
    base_regs = [V_WA, V_WB, V_X0, V_X1, V_XH0, V_XH1, V_H0, V_H1]
    cur_stage = [0]
    def set_stage(c):
        b = c % 3
        if b != cur_stage[0]:
            delta = (b - cur_stage[0]) * STG
            for r in base_regs:
                if not halo and r in (V_XH0, V_XH1, V_H0, V_H1): continue
                if delta > 0:
                    a(f"v_add_u32 v{r}, {delta}, v{r}")
                else:
                    a(f"v_subrev_u32 v{r}, {-delta}, v{r}")
            cur_stage[0] = b
    def x_reads(c, m):
        set_stage(c)
        buf = (2 * c + m) % 2
        for r in range(nxr):
            if r < 2:
                a(f"ds_read_b128 {v(xreg(buf,r),4)}, v{V_X0+m} offset:{r*2048}")
            else:
                a(f"ds_read_b128 {v(xreg(buf,r),4)}, v{V_XH0+m}")
            lg.issue(f"x{c}_{m}")
    def w_reads(N):
        c, m, kind, idx = items[N]
        set_stage(c)
        slot = V_WR + (N % RING) * 4
        for qq in range(2):
            imm = (2 * m + qq) * 16 * 480
            if kind == "m":
                base = V_WA if idx < 5 else V_WB
                imm += 8 * (idx if idx < 5 else idx - 5)
            else:
                base = V_H0 + idx
            a(f"ds_read_b64_tr_b16 {v(slot+2*qq,2)}, v{base} offset:{imm}")
            lg.issue(f"w{N}")
    for n in range(6):
        dma(a, 0, n)
    for n in range(6):
        dma(a, 1, n)
    gen_bases(a)
    if pre_hook: pre_hook()
    stamp(a)
    a(f"s_waitcnt vmcnt(6)")
    a("s_barrier")
    stamp(a)
    x_reads(0, 0)
    for N in range(D):
        w_reads(N)
    nxt = D
    DL = 2
    for N in range(total):
        c, m, kind, idx = items[N]
        n = N - c * per_chunk
        if n == 0:
            a.comment(f"---- chunk {c}")
        bar_here = (n == per_chunk - D + DL and c + 1 <= 9)
        if bar_here:
            a(f"s_waitcnt vmcnt({(8 if (c == 0 and PREFETCH) else 6) if c + 2 <= 9 else 0}) lgkmcnt(0)")
            lg.clear()
            a("s_barrier")
        lim = N + D
        if c + 1 <= 9 and n < per_chunk - D + DL:
            lim = min(lim, (c + 1) * per_chunk - 1)
        lim = min(lim, total - 1)
        while nxt <= lim:
            cc, mm, _, _ = items[nxt]
            if nxt == (cc * 2 + mm) * per_k:
                x_reads(cc, mm)
            w_reads(nxt)
            nxt += 1
        lg.wait(f"w{N}", f"x{c}_{m}")
        slot = V_WR + (N % RING) * 4
        buf = (2 * c + m) % 2
        first = (c == 0 and m == 0)
        if kind == "m":
            for rt in range(2):
                src = "0" if first else v(acc(rt, idx), 4)
                a(f"v_mfma_f32_16x16x32_bf16 {v(acc(rt,idx),4)}, {v(slot,4)}, {v(xreg(buf,rt),4)}, {src}")
        else:
            src = "0" if first else v(V_HACC + idx * 4, 4)
            a(f"v_mfma_f32_16x16x32_bf16 {v(V_HACC+idx*4,4)}, {v(slot,4)}, {v(xreg(buf,2),4)}, {src}")
        if c == 0 and n < 6:
            dma(a, 2, n)
        if c == 0 and n == 6:
            gen_prefetch(a)
        k = N - (c * per_chunk + per_chunk - D + DL)
        for cc in (c, c - 1):
            if cc < 0 or cc + 3 > 9: continue
            k = N - (cc * per_chunk + per_chunk - D + DL)
            if 0 <= k < 6:
                dma(a, cc + 3, k)

def softmax_dual(a, P, T, OUT, X4):
    for i in range(10):
        a(f"v_cvt_pk_bf16_f32 v{T+i}, v{P+2*i}, v{P+2*i+1}")
    for i in range(10):
        a(f"v_lshlrev_b32 v{P+2*i}, 16, v{T+i}")
        a(f"v_and_b32 v{P+2*i+1}, 0xffff0000, v{T+i}")
    mx, mn, nmx, pmn = X4, X4 + 1, X4 + 2, X4 + 3
    a(f"v_max3_f32 v{mx}, v{P}, v{P+1}, v{P+2}")
    a(f"v_min3_f32 v{mn}, v{P}, v{P+1}, v{P+2}")
    for i in range(3, 19, 2):
        a(f"v_max3_f32 v{mx}, v{mx}, v{P+i}, v{P+i+1}")
        a(f"v_min3_f32 v{mn}, v{mn}, v{P+i}, v{P+i+1}")
    a(f"v_max_f32 v{mx}, v{mx}, v{P+19}")
    a(f"v_min_f32 v{mn}, v{mn}, v{P+19}")
    a(f"v_mul_f32 v{nmx}, s{S_NL}, v{mx}")
    a(f"v_mul_f32 v{pmn}, s{S_L}, v{mn}")
    for i in range(20):
        a(f"v_fma_f32 v{T+i}, v{P+i}, s{S_L}, v{nmx}")
        a(f"v_fma_f32 v{P+i}, v{P+i}, s{S_NL}, v{pmn}")
    for i in range(20):
        a(f"v_exp_f32 v{T+i}, v{T+i}")
        a(f"v_exp_f32 v{P+i}, v{P+i}")
    a("s_nop 0")
    s1, s2 = mx, mn
    a(f"v_add_f32 v{s1}, v{T}, v{T+1}")
    a(f"v_add_f32 v{s2}, v{P}, v{P+1}")
    a(f"v_add_f32 v{nmx}, v{T+2}, v{T+3}")
    a(f"v_add_f32 v{pmn}, v{P+2}, v{P+3}")
    for i in range(4, 20, 2):
        a(f"v_add_f32 v{s1}, v{s1}, v{T+i}")
        a(f"v_add_f32 v{s2}, v{s2}, v{P+i}")
        a(f"v_add_f32 v{nmx}, v{nmx}, v{T+i+1}")
        a(f"v_add_f32 v{pmn}, v{pmn}, v{P+i+1}")
    a(f"v_add_f32 v{s1}, v{s1}, v{nmx}")
    a(f"v_add_f32 v{s2}, v{s2}, v{pmn}")
    a(f"v_rcp_f32 v{s1}, v{s1}")
    a(f"v_rcp_f32 v{s2}, v{s2}")
    a("s_nop 0")
    for i in range(20):
        a(f"v_mul_f32 v{T+i}, v{T+i}, v{s1}")
        a(f"v_mul_f32 v{P+i}, v{P+i}, v{s2}")
    for i in range(10):
        a(f"v_cvt_pk_bf16_f32 v{OUT+i}, v{T+2*i}, v{T+2*i+1}")
    for i in range(10):
        a(f"v_cvt_pk_bf16_f32 v{OUT+10+i}, v{P+2*i}, v{P+2*i+1}")

def gen_wphi_issue(a):
    t = V_E
    a(f"v_lshlrev_b32 v{t}, 4, v0")
    a(f"s_mul_i32 s{S_T}, s{S_J}, 3200")
    a(f"v_cmp_gt_u32 vcc, 200, v0")
    a(f"s_and_saveexec_b64 s[{S_T+2}:{S_T+3}], vcc")
    a(f"s_cbranch_execz K1_wp0")
    a(f"buffer_load_dwordx4 {v(t+4,4)}, v{t}, s[{S_AUX}:{S_AUX+3}], s{S_T} offen")
    a.label("K1_wp0")
    a(f"s_mov_b64 exec, s[{S_T+2}:{S_T+3}]")

def gen_wphi_stage(a):
    t = V_E
    a(f"v_cmp_gt_u32 vcc, 200, v0")
    a(f"s_and_saveexec_b64 s[{S_T+2}:{S_T+3}], vcc")
    a(f"s_cbranch_execz K1_wp1")
    a(f"v_add_u32 v{t+1}, {LDS_WPHI}, v{t}")
    a(f"s_waitcnt vmcnt(12)")
    a(f"ds_write_b128 v{t+1}, {v(t+4,4)}")
    a.label("K1_wp1")
    a(f"s_mov_b64 exec, s[{S_T+2}:{S_T+3}]")
    a(f"v_cmp_gt_u32 vcc, 64, v0")
    a(f"s_and_saveexec_b64 s[{S_T+2}:{S_T+3}], vcc")
    a(f"s_cbranch_execz K1_wp2")
    for r in range(4):
        a(f"v_mov_b32 v{t+8+r}, 0")
    a(f"v_add_u32 v{t+1}, {LDS_ZERO}, v{t}")
    a(f"ds_write_b128 v{t+1}, {v(t+8,4)}")
    a.label("K1_wp2")
    a(f"s_mov_b64 exec, s[{S_T+2}:{S_T+3}]")
    a("s_waitcnt lgkmcnt(0)")

PKO = 0
VO = 40960

def gen_epilogue_A(a):
    t = V_T0
    a("s_barrier")
    WF = 148
    QB = 208
    P = 220
    OUT = 28
    a(f"v_and_b32 v{t}, 3, v{V_LANE}")
    a(f"v_bfe_u32 v{t+1}, v{V_LANE}, 2, 2")
    a(f"v_mul_u32_u24 v{t+1}, 40, v{t+1}")
    a(f"v_mul_u32_u24 v{t+2}, 800, v{V_GRP}")
    a(f"v_add_u32 v{t+1}, v{t+1}, v{t+2}")
    a(f"v_add_u32 v{t+1}, {LDS_WPHI}, v{t+1}")
    a(f"v_mov_b32 v{t+2}, {LDS_ZERO}")
    a(f"v_cmp_eq_u32 vcc, v{t}, v{V_GRP}")
    a("s_nop 1")
    a(f"v_cndmask_b32 v{t+1}, v{t+2}, v{t+1}, vcc")
    for tt in range(5):
        for c in range(3):
            r = WF + (tt * 3 + c) * 4
            for qq in range(2):
                if c == 2 and qq == 1:
                    a(f"v_mov_b32 v{r+2}, 0")
                    a(f"v_mov_b32 v{r+3}, 0")
                else:
                    a(f"ds_read_b64_tr_b16 {v(r+2*qq,2)}, v{t+1} offset:{(8*c+4*qq)*40 + 8*tt}")
    a(f"v_mov_b32 v{QB+10}, 0")
    a(f"v_mov_b32 v{QB+11}, 0")
    a(f"s_lshl_b32 s{S_T}, s{S_I}, 3")
    a(f"s_lshl_b32 s{S_T+1}, s{S_RG}, 1")
    a(f"s_add_u32 s{S_T}, s{S_T}, s{S_T+1}")
    a(f"s_lshl_b32 s{S_T}, s{S_T}, 5")
    a(f"s_lshl_b32 s{S_T+1}, s{S_J}, 2")
    a(f"s_add_u32 s{S_T}, s{S_T}, s{S_T+1}")
    a(f"s_mul_i32 s{S_T}, s{S_T}, 1280")
    a(f"s_add_u32 s{S_T}, s{S_T}, {WS_PHIQ}")
    a(f"v_and_b32 v{t}, 15, v{V_LANE}")
    a(f"v_mul_u32_u24 v{t+2}, 1280, v{V_GRP}")
    a(f"v_lshl_add_u32 v{t+2}, v{t}, 4, v{t+2}")
    a(f"v_add_u32 v{t+2}, s{S_T}, v{t+2}")
    a(f"v_add_u32 v{t+7}, {32*1280}, v{t+2}")
    a(f"s_mul_i32 s{S_T}, s{S_RG}, {32*80}")
    a(f"v_mul_u32_u24 v{t+3}, 80, v{t}")
    a(f"v_mul_u32_u24 v{t+4}, 10240, v{V_GRP}")
    a(f"v_add_u32 v{t+3}, v{t+3}, v{t+4}")
    a(f"v_add_u32 v{t+3}, s{S_T}, v{t+3}")
    a(f"s_mul_i32 s{S_T}, s{S_RG}, {32*48}")
    a(f"s_mul_i32 s{S_T+1}, s{S_CG}, 24")
    a(f"s_add_u32 s{S_T}, s{S_T}, s{S_T+1}")
    a(f"v_mul_u32_u24 v{t+4}, 48, v{t}")
    a(f"v_mul_u32_u24 v{t+5}, 6144, v{V_GRP}")
    a(f"v_add_u32 v{t+4}, v{t+4}, v{t+5}")
    a(f"v_add_u32 v{t+4}, s{S_T}, v{t+4}")
    a(f"s_cmp_eq_u32 s{S_CG}, 1")
    a(f"s_cselect_b64 s[{S_T+2}:{S_T+3}], -1, 0")
    a(f"v_mov_b32 v{P+6}, 0x3f80")
    a(f"v_mov_b32 v{P+7}, 0")
    for rt in range(2):
        base = acc(rt, 5)
        for i in range(6):
            a(f"v_cvt_pk_bf16_f32 v{P+i}, v{base+2*i}, v{base+2*i+1}")
        a(f"v_cndmask_b32 v{P+4}, v{P+4}, v{P+6}, s[{S_T+2}:{S_T+3}]")
        a(f"v_cndmask_b32 v{P+5}, v{P+5}, v{P+7}, s[{S_T+2}:{S_T+3}]")
        for k in range(3):
            a(f"ds_write_b64 v{t+4}, {v(P+2*k,2)} offset:{VO + rt*768 + 8*k}")
        nop(a, 1)
    a("s_waitcnt lgkmcnt(0)")
    stamp(a)
    for rt in range(2):
        base = acc(rt, 0)
        for i in range(10):
            a(f"v_cvt_pk_bf16_f32 v{QB+i}, v{base+2*i}, v{base+2*i+1}")
        nop(a, 2)
        for c in range(3):
            for tt in range(5):
                src = "0" if c == 0 else v(P + tt * 4, 4)
                a(f"v_mfma_f32_16x16x32_bf16 {v(P+tt*4,4)}, {v(WF+(tt*3+c)*4,4)}, {v(QB+c*4,4)}, {src}")
        nop(a, 8)
        softmax_dual(a, P, base, OUT, QB)
        l1 = a.newlabel("K1_ak"); l2 = a.newlabel("K1_ae")
        a(f"s_cmp_eq_u32 s{S_CG}, 0")
        a(f"s_cbranch_scc0 {l1}")
        for k in range(5):
            a(f"buffer_store_dwordx4 {v(OUT+4*k,4)}, v{t+2 if rt == 0 else t+7}, s[{S_WS}:{S_WS+3}], 0 offen offset:{256*k}{SC()}")
        a(f"s_branch {l2}")
        a.label(l1)
        for k in range(5):
            a(f"ds_write_b128 v{t+3}, {v(OUT+4*k,4)} offset:{PKO + rt*1280 + 16*k}")
        a.label(l2)
        nop(a, 2)
        stamp(a)
    a("s_waitcnt lgkmcnt(0)")
    a("s_barrier")
    a(f"v_and_b32 v{t}, 3, v{V_LANE}")
    a(f"v_bfe_u32 v{t+1}, v{V_LANE}, 2, 2")
    a(f"v_lshl_add_u32 v{t+1}, v{V_GRP}, 3, v{t+1}")
    a(f"v_mul_u32_u24 v{t+2}, 80, v{t+1}")
    a(f"v_lshl_add_u32 v{t+2}, v{t}, 3, v{t+2}")
    a(f"s_mul_i32 s{S_T}, s{S_RG}, 10240")
    a(f"v_add_u32 v{t+2}, s{S_T}, v{t+2}")
    a(f"v_mul_u32_u24 v{t+3}, 48, v{t+1}")
    a(f"v_lshl_add_u32 v{t+3}, v{t}, 3, v{t+3}")
    a(f"s_mul_i32 s{S_T}, s{S_RG}, 6144")
    a(f"s_add_u32 s{S_T}, s{S_T}, {VO}")
    a(f"v_add_u32 v{t+3}, s{S_T}, v{t+3}")
    a(f"s_lshl_b32 s{S_T}, s{S_I}, 5")
    a(f"s_lshl_b32 s{S_T+1}, s{S_J}, 2")
    a(f"s_add_u32 s{S_T}, s{S_T}, s{S_T+1}")
    a(f"s_add_u32 s{S_T}, s{S_T}, s{S_RG}")
    a(f"s_mul_i32 s{S_T}, s{S_T}, 6144")
    a(f"s_add_u32 s{S_T}, s{S_T}, {WS_PART}")
    a(f"v_and_b32 v{t}, 15, v{V_LANE}")
    a(f"v_mul_u32_u24 v{t}, 192, v{t}")
    a(f"v_lshl_add_u32 v{t}, v{V_GRP}, 4, v{t}")
    a(f"v_add_u32 v{t}, s{S_T}, v{t}")
    AF = 76; BF = 124; KV = 172; AD = 184
    for y in range(3):
        a(f"s_mul_i32 s{S_T}, s{S_CG}, 3")
        a(f"s_add_u32 s{S_T}, s{S_T}, {y}")
        a(f"s_lshr_b32 s{S_T+1}, s{S_T}, 1")
        a(f"s_and_b32 s{S_T+2}, s{S_T}, 1")
        a(f"s_lshl_b32 s{S_T+3}, s{S_T+1}, 5")
        a(f"v_add_u32 v{AD+y}, s{S_T+3}, v{t+2}")
        a(f"s_lshl_b32 s{S_T+3}, s{S_T+2}, 5")
        a(f"v_add_u32 v{AD+3+y}, s{S_T+3}, v{t+3}")
        a(f"s_lshl_b32 s{S_T+3}, s{S_T+1}, 6")
        a(f"s_mul_i32 s{S_T+4}, s{S_T+2}, {16*192}")
        a(f"s_add_u32 s{S_T+3}, s{S_T+3}, s{S_T+4}")
        a(f"v_add_u32 v{AD+6+y}, s{S_T+3}, v{t}")
    for ks in range(4):
        for y in range(3):
            for qq in range(2):
                a(f"ds_read_b64_tr_b16 {v(AF+(y*4+ks)*4+2*qq,2)}, v{AD+y} offset:{(32*ks+4*qq)*80}")
                a(f"ds_read_b64_tr_b16 {v(BF+(y*4+ks)*4+2*qq,2)}, v{AD+3+y} offset:{(32*ks+4*qq)*48}")
        a("s_waitcnt lgkmcnt(0)")
    for ks in range(4):
        for y in range(3):
            d = KV + y * 4
            src = "0" if ks == 0 else v(d, 4)
            a(f"v_mfma_f32_16x16x32_bf16 {v(d,4)}, {v(AF+(y*4+ks)*4,4)}, {v(BF+(y*4+ks)*4,4)}, {src}")
    nop(a, 8)
    for y in range(3):
        a(f"buffer_store_dwordx4 {v(KV+y*4,4)}, v{AD+6+y}, s[{S_WS}:{S_WS+3}], 0 offen{SC()}")

QROW = 272
LQ = 0
LK = 128 * QROW
LV = LK + 144 * QROW

def gen_epilogue_B(a):
    t = V_T0
    a("s_barrier")
    a(f"v_and_b32 v{t}, 15, v{V_LANE}")
    a(f"v_mul_u32_u24 v{t+1}, {QROW}, v{t}")
    a(f"v_lshl_add_u32 v{t+1}, v{V_GRP}, 6, v{t+1}")
    a(f"s_mul_i32 s{S_T}, s{S_RG}, {32*QROW}")
    a(f"s_mul_i32 s{S_T+1}, s{S_CG}, {LK + 16*QROW}")
    a(f"s_add_u32 s{S_T+1}, s{S_T+1}, s{S_T}")
    a(f"v_add_u32 v{t+2}, s{S_T+1}, v{t+1}")
    a(f"s_mul_i32 s{S_T+1}, s{S_CG}, 24")
    a(f"s_add_u32 s{S_T+1}, s{S_T+1}, s{S_T}")
    a(f"s_add_u32 s{S_T+1}, s{S_T+1}, {LV + 16*QROW}")
    a(f"v_add_u32 v{t+3}, s{S_T+1}, v{t+1}")
    PB = 28
    for i in range(10, 16):
        a(f"v_mov_b32 v{PB+i}, 0")
    for rt in range(2):
        base = acc(rt, 0)
        for i in range(10):
            a(f"v_cvt_pk_bf16_f32 v{PB+i}, v{base+2*i}, v{base+2*i+1}")
        for k in range(4):
            a(f"ds_write_b128 v{t+2}, {v(PB+4*k,4)} offset:{rt*16*QROW+16*k}")
        base = acc(rt, 5)
        for i in range(6):
            a(f"v_cvt_pk_bf16_f32 v{PB+16+i}, v{base+2*i}, v{base+2*i+1}")
        for k in range(3):
            a(f"ds_write_b64 v{t+3}, {v(PB+16+2*k,2)} offset:{rt*16*QROW+8*k}")
        nop(a, 2)
    for k in range(3):
        a(f"ds_write_b64 v{t+1}, {v(PB+10,2)} offset:{LK + 40 + 8*k}")
    for h in range(2):
        a(f"s_add_u32 s{S_T}, s{S_WAVE}, {8*h}")
        a(f"s_cmp_ge_u32 s{S_T}, 10")
        a(f"s_cselect_b32 s{S_T}, s{S_WAVE}, s{S_T}")
        a(f"s_cmp_ge_u32 s{S_T}, 5")
        a(f"s_mov_b32 s{S_T+2}, {LK}")
        a(f"s_cselect_b32 s{S_T+1}, {LV-40}, s{S_T+2}")
        a(f"s_lshl_b32 s{S_T}, s{S_T}, 3")
        a(f"s_add_u32 s{S_T}, s{S_T}, s{S_T+1}")
        a(f"v_add_u32 v{t+4}, s{S_T}, v{t+1}")
        a(f"v_cvt_pk_bf16_f32 v{PB}, v{V_HACC+4*h}, v{V_HACC+4*h+1}")
        a(f"v_cvt_pk_bf16_f32 v{PB+1}, v{V_HACC+4*h+2}, v{V_HACC+4*h+3}")
        a(f"ds_write_b64 v{t+4}, {v(PB,2)}")
        nop(a, 2)
    a(f"v_lshlrev_b32 v{t+3}, 2, v{V_GRP}")
    a(f"v_sub_u32 v{t+3}, v{t}, v{t+3}")
    for r in range(4):
        a(f"v_sub_u32 v{t+4}, {r-2}, v{t+3}")
        a(f"v_and_b32 v{t+4}, 0x80000001, v{t+4}")
        a(f"v_cmp_eq_u32 s[{S_MASK+2*r}:{S_MASK+2*r+1}], 0, v{t+4}")
        a(f"v_subrev_u32 v{t+4}, {r}, v{t+3}")
        a(f"v_and_b32 v{t+4}, 0x80000001, v{t+4}")
        a(f"v_cmp_eq_u32 s[{S_MASK+8+2*r}:{S_MASK+8+2*r+1}], 0, v{t+4}")
    a(f"s_or_b32 s{S_T}, s{S_I}, s{S_WAVE}")
    a(f"s_cmp_eq_u32 s{S_T}, 0")
    for r in range(4):
        a(f"s_cselect_b64 s[{S_MASK+2*r}:{S_MASK+2*r+1}], 0, s[{S_MASK+2*r}:{S_MASK+2*r+1}]")
    a(f"v_mul_u32_u24 v{t+1}, {QROW}, v{t}")
    a(f"v_lshl_add_u32 v{t+1}, v{V_GRP}, 4, v{t+1}")
    a(f"s_mul_i32 s{S_T}, s{S_WAVE}, {16*QROW}")
    a(f"v_add_u32 v{t+1}, s{S_T}, v{t+1}")
    a(f"v_add_u32 v{t+2}, {LK}, v{t+1}")
    a(f"v_lshrrev_b32 v{t+3}, 2, v{V_LANE}")
    a(f"v_mul_u32_u24 v{t+3}, {QROW}, v{t+3}")
    a(f"v_and_b32 v{t+4}, 3, v{V_LANE}")
    a(f"v_lshl_add_u32 v{t+3}, v{t+4}, 3, v{t+3}")
    a(f"v_add_u32 v{t+3}, s{S_T}, v{t+3}")
    a(f"v_add_u32 v{t+3}, {LV}, v{t+3}")
    a(f"s_mov_b32 s{S_T+4}, 0x3e64f92e")
    a(f"s_mov_b32 s{S_T+5}, 0xff000000")
    OA = 232
    a(f"s_lshl_b32 s{S_T}, s{S_I}, 3")
    a(f"s_add_u32 s{S_T}, s{S_T}, s{S_WAVE}")
    a(f"s_mul_i32 s{S_T}, s{S_T}, 20480")
    a(f"s_add_u32 s{S_T}, s{S_T}, {WS_OB}")
    a(f"s_mul_i32 s{S_T+1}, s{S_J}, 80")
    a(f"v_lshlrev_b32 v{t+4}, 2, v{V_GRP}")
    a(f"v_add_u32 v{t+4}, s{S_T+1}, v{t+4}")
    a(f"v_lshlrev_b32 v{t+5}, 4, v{t}")
    a(f"v_add_u32 v{t+5}, s{S_T}, v{t+5}")
    for h in range(4):
        for td in range(2):
            o = OA + h * 2 + td
            a(f"v_add_u32 v{t+6}, {20*h+16*td}, v{t+4}")
            a(f"v_lshrrev_b32 v{t+7}, 5, v{t+6}")
            a(f"v_lshl_add_u32 v{o}, v{t+7}, 10, v{t+5}")
            a(f"v_bfe_u32 v{t+7}, v{t+6}, 3, 2")
            a(f"v_lshl_add_u32 v{o}, v{t+7}, 8, v{o}")
            a(f"v_bfe_u32 v{t+7}, v{t+6}, 2, 1")
            a(f"v_lshl_add_u32 v{o}, v{t+7}, 3, v{o}")
    a("s_waitcnt lgkmcnt(0)")
    stamp(a)
    a("s_barrier")
    RB = 76
    for h in range(4):
        R = RB + h * 28
        QF, KA, KB_, VF = R, R + 4, R + 8, R + 12
        a(f"ds_read_b128 {v(QF,4)}, v{t+1} offset:{LQ + h*64}")
        a(f"ds_read_b128 {v(KA,4)}, v{t+2} offset:{h*64}")
        a(f"ds_read_b128 {v(KB_,4)}, v{t+2} offset:{16*QROW + h*64}")
        for td in range(2):
            a(f"ds_read_b64_tr_b16 {v(VF+4*td,2)}, v{t+3} offset:{h*64 + 32*td}")
            a(f"ds_read_b64_tr_b16 {v(VF+4*td+2,2)}, v{t+3} offset:{16*QROW + h*64 + 32*td}")
        if h == 1:
            a("s_waitcnt lgkmcnt(0)")
    a("s_waitcnt lgkmcnt(0)")
    for h in range(4):
        R = RB + h * 28
        QF, KA, KB_, VF = R, R + 4, R + 8, R + 12
        SA, SB = R + 20, R + 24
        a(f"v_mfma_f32_16x16x32_bf16 {v(SA,4)}, {v(KA,4)}, {v(QF,4)}, 0")
        a(f"v_mfma_f32_16x16x32_bf16 {v(SB,4)}, {v(KB_,4)}, {v(QF,4)}, 0")
    nop(a, 8)
    stamp(a)
    TT = 28
    for h in range(4):
        R = RB + h * 28
        QF, KA, KB_, VF = R, R + 4, R + 8, R + 12
        S = R + 20
        T8 = TT
        for i in range(4):
            a(f"v_cvt_pk_bf16_f32 v{T8+i}, v{S+2*i}, v{S+2*i+1}")
        for i in range(4):
            a(f"v_lshlrev_b32 v{S+2*i}, 16, v{T8+i}")
            a(f"v_and_b32 v{S+2*i+1}, 0xffff0000, v{T8+i}")
        for i in range(8):
            a(f"v_mul_f32 v{S+i}, s{S_T+4}, v{S+i}")
        for i in range(4):
            a(f"v_cvt_pk_bf16_f32 v{T8+i}, v{S+2*i}, v{S+2*i+1}")
        for i in range(4):
            a(f"v_lshlrev_b32 v{S+2*i}, 16, v{T8+i}")
            a(f"v_and_b32 v{S+2*i+1}, 0xffff0000, v{T8+i}")
        a(f"v_mov_b32 v{T8+4}, s{S_T+5}")
        for i in range(8):
            mk = S_MASK + 2 * i
            a(f"v_cndmask_b32 v{S+i}, v{T8+4}, v{S+i}, s[{mk}:{mk+1}]")
        m = T8 + 5
        a(f"v_max3_f32 v{m}, v{S}, v{S+1}, v{S+2}")
        a(f"v_max3_f32 v{m}, v{m}, v{S+3}, v{S+4}")
        a(f"v_max3_f32 v{m}, v{m}, v{S+5}, v{S+6}")
        a(f"v_max_f32 v{m}, v{m}, v{S+7}")
        a(f"v_mov_b32 v{m+1}, v{m}")
        nop(a, 2)
        a(f"v_permlane16_swap_b32 v{m}, v{m+1}")
        nop(a, 2)
        a(f"v_max_f32 v{m}, v{m}, v{m+1}")
        a(f"v_mov_b32 v{m+1}, v{m}")
        nop(a, 2)
        a(f"v_permlane32_swap_b32 v{m}, v{m+1}")
        nop(a, 2)
        a(f"v_max_f32 v{m}, v{m}, v{m+1}")
        a(f"v_mul_f32 v{m}, s{S_NL}, v{m}")
        for i in range(8):
            a(f"v_fma_f32 v{S+i}, v{S+i}, s{S_L}, v{m}")
        for i in range(8):
            a(f"v_exp_f32 v{S+i}, v{S+i}")
        a("s_nop 0")
        sm = T8 + 5
        a(f"v_add_f32 v{sm}, v{S}, v{S+1}")
        a(f"v_add_f32 v{sm+1}, v{S+2}, v{S+3}")
        a(f"v_add_f32 v{sm}, v{sm}, v{S+4}")
        a(f"v_add_f32 v{sm+1}, v{sm+1}, v{S+5}")
        a(f"v_add_f32 v{sm}, v{sm}, v{S+6}")
        a(f"v_add_f32 v{sm+1}, v{sm+1}, v{S+7}")
        a(f"v_add_f32 v{sm}, v{sm}, v{sm+1}")
        a(f"v_mov_b32 v{sm+1}, v{sm}")
        nop(a, 2)
        a(f"v_permlane16_swap_b32 v{sm}, v{sm+1}")
        nop(a, 2)
        a(f"v_add_f32 v{sm}, v{sm}, v{sm+1}")
        a(f"v_mov_b32 v{sm+1}, v{sm}")
        nop(a, 2)
        a(f"v_permlane32_swap_b32 v{sm}, v{sm+1}")
        nop(a, 2)
        a(f"v_add_f32 v{sm}, v{sm}, v{sm+1}")
        a(f"v_rcp_f32 v{sm}, v{sm}")
        a("s_nop 0")
        for i in range(8):
            a(f"v_mul_f32 v{S+i}, v{S+i}, v{sm}")
        for i in range(4):
            a(f"v_cvt_pk_bf16_f32 v{QF+i}, v{S+2*i}, v{S+2*i+1}")
        nop(a, 2)
        for td in range(2):
            a(f"v_mfma_f32_16x16x32_bf16 {v(S+4*td,4)}, {v(VF+4*td,4)}, {v(QF,4)}, 0")
    nop(a, 8)
    for h in range(4):
        R = RB + h * 28
        S = R + 20
        for i in range(4):
            a(f"v_cvt_pk_bf16_f32 v{R+i}, v{S+2*i}, v{S+2*i+1}")
        a(f"buffer_store_dwordx2 {v(R,2)}, v{OA+2*h}, s[{S_WS}:{S_WS+3}], 0 offen{SC()}")
    a("s_mov_b64 exec, 0xffff")
    for h in range(4):
        R = RB + h * 28
        a(f"buffer_store_dwordx2 {v(R+2,2)}, v{OA+2*h+1}, s[{S_WS}:{S_WS+3}], 0 offen{SC()}")
    a("s_mov_b64 exec, -1")
    stamp(a)
    a(f"s_cmp_ge_u32 s{S_WAVE}, 4")
    a("s_cbranch_scc1 K1_gdone")
    a(f"s_lshl_b32 s{S_T}, s{S_I}, 7")
    a(f"s_lshl_b32 s{S_T+1}, s{S_J}, 4")
    a(f"s_add_u32 s{S_T}, s{S_T}, s{S_T+1}")
    a(f"s_lshl_b32 s{S_T+1}, s{S_WAVE}, 2")
    a(f"s_add_u32 s{S_T}, s{S_T}, s{S_T+1}")
    a(f"v_add_u32 v{t}, s{S_T}, v{V_GRP}")
    a(f"v_and_b32 v{t+1}, 15, v{V_LANE}")
    a(f"v_mul_u32_u24 v{t+1}, 80, v{t+1}")
    a(f"v_mul_u32_u24 v{t+2}, 1280, v{t}")
    a(f"v_add_u32 v{t+2}, v{t+2}, v{t+1}")
    GX, GW = 188, 208
    for k in range(5):
        a(f"buffer_load_dwordx4 {v(GX+4*k,4)}, v{t+2}, s[{S_X}:{S_X+3}], 0 offen offset:{16*k}")
        a(f"buffer_load_dwordx4 {v(GW+4*k,4)}, v{t+1}, s[{S_AUX}:{S_AUX+3}], 0 offen offset:{16*k}")
    a("s_waitcnt vmcnt(0)")
    G0 = 28
    a(f"v_mov_b32 v{G0}, 0")
    a(f"v_mov_b32 v{G0+1}, 0")
    for i in range(20):
        a(f"v_lshlrev_b32 v{G0+2}, 16, v{GX+i}")
        a(f"v_and_b32 v{G0+3}, 0xffff0000, v{GX+i}")
        a(f"v_lshlrev_b32 v{G0+4}, 16, v{GW+i}")
        a(f"v_and_b32 v{G0+5}, 0xffff0000, v{GW+i}")
        a(f"v_mul_f32 v{G0+2}, v{G0+2}, v{G0+4}")
        a(f"v_mul_f32 v{G0+3}, v{G0+3}, v{G0+5}")
        a(f"v_cvt_pk_bf16_f32 v{G0+2}, v{G0+2}, v{G0+3}")
        a(f"v_lshlrev_b32 v{G0+3}, 16, v{G0+2}")
        a(f"v_and_b32 v{G0+2}, 0xffff0000, v{G0+2}")
        a(f"v_add_f32 v{G0}, v{G0}, v{G0+3}")
        a(f"v_add_f32 v{G0+1}, v{G0+1}, v{G0+2}")
    a(f"v_add_f32 v{G0}, v{G0}, v{G0+1}")
    for x in (1, 2, 4, 8):
        a(f"ds_swizzle_b32 v{G0+1}, v{G0} offset:{(x << 10) | 0x1f}")
        a("s_waitcnt lgkmcnt(0)")
        a(f"v_add_f32 v{G0}, v{G0}, v{G0+1}")
    a(f"v_cvt_pk_bf16_f32 v{G0}, v{G0}, v{G0}")
    a(f"v_lshlrev_b32 v{G0}, 16, v{G0}")
    a(f"v_mul_f32 v{G0}, s{S_NL}, v{G0}")
    a(f"v_exp_f32 v{G0}, v{G0}")
    a("s_nop 0")
    a(f"v_add_f32 v{G0}, 1.0, v{G0}")
    a(f"v_rcp_f32 v{G0}, v{G0}")
    a("s_nop 0")
    a(f"v_cvt_pk_bf16_f32 v{G0}, v{G0}, v{G0}")
    a(f"v_lshlrev_b32 v{G0}, 16, v{G0}")
    a(f"v_lshlrev_b32 v{t}, 2, v{t}")
    a(f"v_add_u32 v{t}, {WS_G}, v{t}")
    a(f"v_and_b32 v{t+1}, 15, v{V_LANE}")
    a(f"v_cmp_eq_u32 vcc, 0, v{t+1}")
    a(f"s_and_saveexec_b64 s[{S_T+2}:{S_T+3}], vcc")
    a(f"buffer_store_dword v{G0}, v{t}, s[{S_WS}:{S_WS+3}], 0 offen{SC()}")
    a(f"s_mov_b64 exec, s[{S_T+2}:{S_T+3}]")
    a.label("K1_gdone")

def gen_signal(a, idx_sreg, base, lab):
    a("s_waitcnt vmcnt(0) lgkmcnt(0)")
    a("s_barrier")
    a(f"s_cmp_lg_u32 s{S_WAVE}, 0")
    a(f"s_cbranch_scc1 {lab}")
    a(f"s_load_dwordx2 s[{S_PTR}:{S_PTR+1}], s[0:1], 72")
    a("s_waitcnt lgkmcnt(0)")
    srd(a, S_AUX, S_PTR, 256)
    a(f"s_add_u32 s{S_T}, s{idx_sreg}, {base}")
    a(f"s_lshl_b32 s{S_T}, s{S_T}, 2")
    a(f"v_mov_b32 v2, s{S_T}")
    a(f"v_mov_b32 v3, 1")
    a("s_mov_b64 exec, 1")
    a(f"buffer_atomic_add v3, v2, s[{S_AUX}:{S_AUX+3}], 0 offen sc1")
    a("s_mov_b64 exec, -1")
    a.label(lab)

def gen_k1(a, name="k1_kernel", tail=None):
    kernel_header(a, name)
    NST[0] = 0
    stamp(a)
    gen_prologue(a)
    a(f"s_cmp_eq_u32 s{S_BR}, 0")
    a("s_cbranch_scc0 K1_B")
    gen_wphi_issue(a)
    gen_mainloop(a, halo=False, pre_hook=lambda: gen_wphi_stage(a))
    stamp(a)
    gen_epilogue_A(a)
    stamp_flush(a)
    if MEGA:
        gen_signal(a, S_J, 8, "K1_sA")
        a("s_branch K1_tail")
    else:
        a("s_endpgm")
    a.label("K1_B")
    NST[0] = 1
    gen_mainloop(a, halo=True)
    stamp(a)
    gen_epilogue_B(a)
    stamp_flush(a)
    if MEGA:
        gen_signal(a, S_I, 16, "K1_sB")
        a.label("K1_tail")
        tail(a)
    a.label("K1_done")
    a("s_endpgm")
    return name
```

```python
from common import *
from k2 import VM, nop

WS_OA = 0x1800000

V_LANE = 1; V_T = 2; V_GRP = 10; V_WB = 11; V_OB0 = 12; V_OB1 = 13; V_G = 14
V_OA0 = 16; V_OA1 = 17
V_DMA = 18
V_RING = 24
V_OBF = 48
V_OAF = 88
V_ACCB = 128
V_ACCA = 168
V_P = 88
S_W = 4; S_WS = 12; S_OUT = 16; S_DBG = 20
S_I = 24; S_JC = 25; S_WAVE = 26; S_RH = 27; S_KQ = 28; S_ROT = 29; S_T = 30; S_SOFF = 38; S_PTR = 40
S_WA = 52; S_WB_ = 56; S_H = 60; S_RB = 61; S_E = 62
K4_LDS = 163840
LKV = 31 * 5120
RING = 6; D = 5
STAMPS = False
S_ST = 64
NST = [0]
def stamp(a):
    if STAMPS:
        k = NST[0]; NST[0] += 1
        a(f"s_memtime s[{S_ST+2*k}:{S_ST+2*k+1}]")
def stamp_flush(a):
    if STAMPS:
        n = NST[0]
        a("s_waitcnt lgkmcnt(0) vmcnt(0)")
        a(f"s_memtime s[{S_ST+2*n}:{S_ST+2*n+1}]")
        a("s_waitcnt lgkmcnt(0)")
        a(f"s_lshl_b32 s{S_T}, s2, 3")
        a(f"s_add_u32 s{S_T}, s{S_T}, s{S_WAVE}")
        a(f"s_lshl_b32 s{S_T}, s{S_T}, 6")
        a(f"s_add_u32 s{S_T}, s{S_T}, {WS_DBG + 0x100000}")
        a(f"v_mov_b32 v2, s{S_T}")
        a("s_mov_b64 exec, 1")
        for k in range(n + 1):
            a(f"v_mov_b32 v3, s{S_ST+2*k}")
            a(f"buffer_store_dword v3, v2, s[{S_WS}:{S_WS+3}], 0 offen offset:{4*k}")
            a("s_nop 1")
        a("s_mov_b64 exec, -1")

def slotA(ks):
    return 20 + ks if ks < 11 else ks - 11

def gen_k4(a, standalone=True):
    name = "k4_kernel"
    if standalone:
        kernel_header(a, name)
    vm = VM(a)
    t = V_T
    NST[0] = 0
    stamp(a)
    if standalone:
        a("s_cmp_ge_u32 s2, 256")
        a("s_cbranch_scc1 K4_done")
    a(f"s_load_dwordx2 s[{S_PTR}:{S_PTR+1}], s[0:1], 24")
    a(f"s_load_dwordx2 s[{S_PTR+2}:{S_PTR+3}], s[0:1], 48")
    a(f"s_load_dwordx4 s[{S_PTR+4}:{S_PTR+7}], s[0:1], 64")
    a(f"s_load_dwordx2 s[{S_PTR+8}:{S_PTR+9}], s[0:1], 80")
    a(f"s_and_b32 s{S_E}, s2, 7")
    a(f"s_lshr_b32 s{S_T+1}, s2, 3")
    a(f"s_lshl_b32 s{S_I}, s{S_E}, 2")
    a(f"s_and_b32 s{S_ROT}, s{S_T+1}, 3")
    a(f"s_add_u32 s{S_I}, s{S_I}, s{S_ROT}")
    a(f"s_lshr_b32 s{S_JC}, s{S_T+1}, 2")
    a(f"s_and_b32 s{S_H}, s2, 31")
    a(f"s_lshr_b32 s{S_RB}, s2, 5")
    a(f"v_lshrrev_b32 v{t}, 6, v0")
    a(f"v_and_b32 v{V_LANE}, 63, v0")
    a(f"v_readfirstlane_b32 s{S_WAVE}, v{t}")
    a(f"v_lshrrev_b32 v{V_GRP}, 4, v{V_LANE}")
    a(f"v_mul_u32_u24 v{t}, 6554, v0")
    a(f"v_lshrrev_b32 v{t}, 16, v{t}")
    a(f"v_mul_u32_u24 v{t+1}, 10, v{t}")
    a(f"v_sub_u32 v{t+1}, v0, v{t+1}")
    a(f"v_mul_u32_u24 v{t+2}, 192, v{t}")
    a(f"v_lshl_add_u32 v{t+2}, v{t+1}, 4, v{t+2}")
    a(f"v_mul_u32_u24 v{t+3}, 80, v{t}")
    a(f"v_lshl_add_u32 v{t+3}, v{t+1}, 3, v{t+3}")
    a(f"v_add_u32 v{t+3}, {LKV}, v{t+3}")
    a(f"s_mul_i32 s{S_T}, s{S_H}, 6144")
    a(f"s_add_u32 s{S_T}, s{S_T}, {WS_PART}")
    a(f"v_add_u32 v{t+2}, s{S_T}, v{t+2}")
    a(f"s_and_b32 s{S_RH}, s{S_WAVE}, 1")
    a(f"s_lshr_b32 s{S_KQ}, s{S_WAVE}, 1")
    a("s_waitcnt lgkmcnt(0)")
    srd(a, S_WS, S_PTR + 8, WS_SIZE)
    SC = " sc1" if not standalone else ""
    a(f"s_mul_i32 s{S_T+1}, s{S_JC}, 160")
    a(f"s_mov_b32 s{S_T+2}, 6554")
    R0 = V_RING
    for n in range(5):
        a(f"v_add_u32 v{R0}, {n*64}, v{V_LANE}")
        a(f"v_mul_u32_u24 v{R0+1}, s{S_T+2}, v{R0}")
        a(f"v_lshrrev_b32 v{R0+1}, 16, v{R0+1}")
        a(f"v_mul_u32_u24 v{R0+2}, 10, v{R0+1}")
        a(f"v_sub_u32 v{R0+2}, v{R0}, v{R0+2}")
        a(f"v_lshlrev_b32 v{R0+2}, 4, v{R0+2}")
        a(f"v_add_u32 v{R0+2}, s{S_T+1}, v{R0+2}")
        a(f"v_bfe_u32 v{R0+3}, v{R0+1}, 4, 1")
        a(f"v_bfe_u32 v{R0+4}, v{R0+1}, 2, 2")
        a(f"v_and_b32 v{R0+5}, 3, v{R0+1}")
        a(f"v_lshl_add_u32 v{R0+5}, v{R0+3}, 2, v{R0+5}")
        a(f"v_lshl_add_u32 v{R0+6}, v{R0+4}, 3, v{R0+5}")
        a(f"v_mul_u32_u24 v{R0+6}, 1280, v{R0+6}")
        a(f"v_add_u32 v{V_DMA+n}, v{R0+6}, v{R0+2}")
    srd(a, S_WA, S_PTR, 640 * 1280)
    srd(a, S_WB_, S_PTR + 2, 640 * 1280)
    srd(a, S_OUT, S_PTR + 4, 2048 * 1280)
    srd(a, S_DBG, S_PTR + 6, 256)
    lbl = [0]
    def wgroup(isA, gi, count=True):
        sr = S_WA if isA else S_WB_
        if isA:
            lo, hi = {0: (0, 8), 1: (8, 11), 2: (11, 19), 3: (19, 20)}[gi]
        else:
            lo, hi = {0: (0, 8), 1: (8, 16), 2: (16, 20)}[gi]
        nb = hi - lo
        lab = None
        if nb < 8:
            lbl[0] += 1; lab = f"K4_w{lbl[0]}"
            a(f"s_cmp_ge_u32 s{S_WAVE}, {nb}")
            a(f"s_cbranch_scc1 {lab}")
        a(f"s_add_u32 s{S_T}, s{S_WAVE}, {lo}")
        a(f"s_mul_i32 s{S_SOFF}, s{S_T}, {32*1280}")
        base_slot = (slotA(lo) if isA else lo) - lo
        a(f"s_add_u32 s{S_T}, s{S_T}, {base_slot}" if base_slot >= 0 else f"s_sub_u32 s{S_T}, s{S_T}, {-base_slot}")
        a(f"s_mul_i32 s{S_T+1}, s{S_T}, 5120")
        for n in range(5):
            a(f"s_add_u32 m0, s{S_T+1}, {n*1024}")
            a("s_nop 0")
            a(f"buffer_load_dwordx4 v{V_DMA+n}, s[{sr}:{sr+3}], s{S_SOFF} offen lds")
            if nb == 8:
                vm.issue("WA" if isA else "WB")
        if lab:
            a.label(lab)
    wgroup(False, 0); wgroup(False, 1); wgroup(False, 2)
    if not standalone:
        a(f"s_cmp_lg_u32 s{S_WAVE}, 0")
        a("s_cbranch_scc1 K4_pp")
        a(f"s_lshr_b32 s{S_T}, s{S_H}, 2")
        a(f"s_add_u32 s{S_T}, s{S_T}, 8")
        a(f"s_lshl_b32 s{S_T}, s{S_T}, 2")
        a(f"v_mov_b32 v{V_RING}, s{S_T}")
        a(f"s_lshr_b32 s{S_T}, s{S_I}, 1")
        a(f"s_add_u32 s{S_T}, s{S_T}, 16")
        a(f"s_lshl_b32 s{S_T}, s{S_T}, 2")
        a(f"v_mov_b32 v{V_RING+1}, s{S_T}")
        a(f"s_mov_b32 s{S_T+2}, 0")
        a.label("K4_pl")
        a(f"buffer_load_dword v{V_RING+2}, v{V_RING}, s[{S_DBG}:{S_DBG+3}], 0 offen sc1")
        a(f"buffer_load_dword v{V_RING+3}, v{V_RING+1}, s[{S_DBG}:{S_DBG+3}], 0 offen sc1")
        a("s_waitcnt vmcnt(0)")
        a(f"v_readfirstlane_b32 s{S_T}, v{V_RING+2}")
        a(f"v_readfirstlane_b32 s{S_T+1}, v{V_RING+3}")
        a("s_nop 3")
        a(f"s_cmp_ge_u32 s{S_T}, 16")
        a(f"s_cselect_b32 s{S_T}, 1, 0")
        a(f"s_cmp_ge_u32 s{S_T+1}, 8")
        a(f"s_cselect_b32 s{S_T+1}, 1, 0")
        a(f"s_and_b32 s{S_T}, s{S_T}, s{S_T+1}")
        a(f"s_cmp_eq_u32 s{S_T}, 1")
        a("s_cbranch_scc1 K4_pp")
        a(f"s_add_u32 s{S_T+2}, s{S_T+2}, 1")
        a(f"s_cmp_ge_u32 s{S_T+2}, 0x40000")
        a("s_cbranch_scc1 K4_pp")
        a("s_sleep 2")
        a("s_branch K4_pl")
        a.label("K4_pp")
        a("s_barrier")
    PB = V_P
    PQ = V_P + 64
    N = V_P + 80
    a("v_cmp_gt_u32 vcc, 210, v0")
    a(f"s_and_saveexec_b64 s[{S_T+2}:{S_T+3}], vcc")
    a("s_cbranch_execz K4_a")
    for rt in range(16):
        a(f"s_mov_b32 s{S_T+4}, {rt*32*6144}")
        a(f"buffer_load_dwordx4 {v(PB+4*rt,4)}, v{t+2}, s[{S_WS}:{S_WS+3}], s{S_T+4} offen{SC}")
    a.label("K4_a")
    a(f"s_mov_b64 exec, s[{S_T+2}:{S_T+3}]")
    for i in range(2):
        for k in range(4):
            a(f"v_mov_b32 v{PQ+(i*2+1)*4+k}, 0")
    a(f"s_lshl_b32 s{S_T}, s{S_RB}, 4")
    a(f"s_lshl_b32 s{S_T+1}, s{S_WAVE}, 1")
    a(f"s_add_u32 s{S_T}, s{S_T}, s{S_T+1}")
    a(f"s_lshl_b32 s{S_T+1}, s{S_T}, 5")
    a(f"s_add_u32 s{S_T+1}, s{S_T+1}, s{S_H}")
    a(f"s_mul_i32 s{S_T+1}, s{S_T+1}, 1280")
    a(f"s_add_u32 s{S_T+1}, s{S_T+1}, {WS_PHIQ}")
    a(f"v_lshlrev_b32 v{t+4}, 4, v{V_LANE}")
    a(f"v_add_u32 v{t+5}, s{S_T+1}, v{t+4}")
    for i in range(2):
        a(f"s_mov_b32 s{S_T+4}, {i*32*1280}")
        a(f"buffer_load_dwordx4 {v(PQ+(i*2)*4,4)}, v{t+5}, s[{S_WS}:{S_WS+3}], s{S_T+4} offen{SC}")
        vm.issue("PQ")
    a("s_mov_b64 exec, 0xffff")
    for i in range(2):
        a(f"s_mov_b32 s{S_T+4}, {i*32*1280}")
        a(f"buffer_load_dwordx4 {v(PQ+(i*2+1)*4,4)}, v{t+5}, s[{S_WS}:{S_WS+3}], s{S_T+4} offen offset:1024{SC}")
        vm.issue("PQ")
    a("s_mov_b64 exec, -1")
    a(f"s_mul_i32 s{S_T+1}, s{S_T}, 20480")
    a(f"s_add_u32 s{S_T+1}, s{S_T+1}, {WS_OA}")
    a(f"s_mul_i32 s{S_T+4}, s{S_H}, 20")
    a(f"v_and_b32 v{t+5}, 15, v{V_LANE}")
    a(f"v_lshlrev_b32 v{t+5}, 4, v{t+5}")
    a(f"v_add_u32 v{t+5}, s{S_T+1}, v{t+5}")
    a(f"v_lshlrev_b32 v{t+6}, 2, v{V_GRP}")
    a(f"v_add_u32 v{t+6}, s{S_T+4}, v{t+6}")
    for td in range(2):
        o = V_OA0 + td
        a(f"v_add_u32 v{t+7}, {16*td}, v{t+6}")
        a(f"v_lshrrev_b32 v{t}, 5, v{t+7}")
        a(f"v_lshl_add_u32 v{o}, v{t}, 10, v{t+5}")
        a(f"v_bfe_u32 v{t}, v{t+7}, 3, 2")
        a(f"v_lshl_add_u32 v{o}, v{t}, 8, v{o}")
        a(f"v_bfe_u32 v{t}, v{t+7}, 2, 1")
        a(f"v_lshl_add_u32 v{o}, v{t}, 3, v{o}")
    a(f"s_lshl_b32 s{S_T}, s{S_I}, 2")
    a(f"s_lshl_b32 s{S_T+1}, s{S_RH}, 1")
    a(f"s_add_u32 s{S_T}, s{S_T}, s{S_T+1}")
    a(f"s_mul_i32 s{S_T+1}, s{S_T}, 20")
    a(f"s_mul_i32 s{S_T+2}, s{S_KQ}, 5")
    a(f"s_add_u32 s{S_T+1}, s{S_T+1}, s{S_T+2}")
    a(f"s_lshl_b32 s{S_T+1}, s{S_T+1}, 10")
    a(f"v_add_u32 v{V_OB0}, s{S_T+1}, v{t+4}")
    a(f"v_add_u32 v{V_OB1}, {20*1024}, v{V_OB0}")
    def o_loads(dst, base, tag, sc):
        for ks in range(5):
            a(f"s_mov_b32 s{S_SOFF+1}, {base + ks*1024}")
            for rt in range(2):
                a(f"buffer_load_dwordx4 {v(dst+(ks*2+rt)*4,4)}, v{V_OB0+rt}, s[{S_WS}:{S_WS+3}], s{S_SOFF+1} offen{sc}")
                vm.issue(tag)
    o_loads(V_OBF, WS_OB, "OB", SC)
    a(f"s_lshl_b32 s{S_T}, s{S_I}, 6")
    a(f"s_lshl_b32 s{S_T+1}, s{S_RH}, 5")
    a(f"s_add_u32 s{S_T}, s{S_T}, s{S_T+1}")
    a(f"v_and_b32 v{t}, 15, v{V_LANE}")
    a(f"v_add_u32 v{t}, s{S_T}, v{t}")
    a(f"v_lshlrev_b32 v{t}, 2, v{t}")
    a(f"v_add_u32 v{t}, {WS_G}, v{t}")
    a(f"buffer_load_dword v{V_G}, v{t}, s[{S_WS}:{S_WS+3}], 0 offen{SC}")
    vm.issue("OB")
    a(f"buffer_load_dword v{V_G+1}, v{t}, s[{S_WS}:{S_WS+3}], 0 offen offset:64{SC}")
    vm.issue("OB")
    a(f"v_mov_b32 v{t}, 0")
    a(f"v_mov_b32 v{t+1}, 0")
    a(f"v_lshlrev_b32 v{t+7}, 3, v{V_LANE}")
    a(f"v_add_u32 v{t+7}, {LKV + 1680}, v{t+7}")
    a(f"ds_write_b64 v{t+7}, {v(t,2)}")
    a(f"v_and_b32 v{t+5}, 15, v{V_LANE}")
    a(f"v_mul_u32_u24 v{t+6}, 80, v{t+5}")
    a(f"v_lshl_add_u32 v{t}, v{V_GRP}, 4, v{t+6}")
    a(f"v_add_u32 v{t}, {LKV}, v{t}")
    a(f"v_add_u32 v{t+6}, 16, v{t+5}")
    a(f"v_min_u32 v{t+6}, 20, v{t+6}")
    a(f"v_mul_u32_u24 v{t+6}, 80, v{t+6}")
    a(f"v_lshl_add_u32 v{t+1}, v{V_GRP}, 4, v{t+6}")
    a(f"v_add_u32 v{t+1}, {LKV}, v{t+1}")
    stamp(a)
    a("v_cmp_gt_u32 vcc, 210, v0")
    a(f"s_and_saveexec_b64 s[{S_T+2}:{S_T+3}], vcc")
    a("s_cbranch_execz K4_b")
    a(f"s_waitcnt vmcnt({len([x for x in vm.q if x != 'WB'])})")
    for rt in range(1, 16):
        for k in range(4):
            a(f"v_add_f32 v{PB+k}, v{PB+k}, v{PB+4*rt+k}")
    a(f"v_cvt_pk_bf16_f32 v{PB}, v{PB}, v{PB+1}")
    a(f"v_cvt_pk_bf16_f32 v{PB+1}, v{PB+2}, v{PB+3}")
    a(f"ds_write_b64 v{t+3}, {v(PB,2)}")
    a.label("K4_b")
    a(f"s_mov_b64 exec, s[{S_T+2}:{S_T+3}]")
    a("s_waitcnt lgkmcnt(0)")
    a("s_barrier")
    KF = PB
    for tl in range(2):
        for ks in range(2):
            a(f"ds_read_b128 {v(KF+(tl*2+ks)*4,4)}, v{t+tl} offset:{ks*64}")
    a(f"s_mov_b32 s{S_T+7}, 0x358637bd")
    vm.wait("PQ")
    a("s_waitcnt lgkmcnt(0)")
    for i in range(2):
        for tl in range(2):
            a(f"v_mfma_f32_16x16x32_bf16 {v(N+i*8+tl*4,4)}, {v(KF+(tl*2)*4,4)}, {v(PQ+(i*2)*4,4)}, 0")
    for i in range(2):
        for tl in range(2):
            d = N + i * 8 + tl * 4
            a(f"v_mfma_f32_16x16x32_bf16 {v(d,4)}, {v(KF+(tl*2+1)*4,4)}, {v(PQ+(i*2+1)*4,4)}, {v(d,4)}")
    nop(a, 8)
    a(f"v_cmp_gt_u32 vcc, 16, v{V_LANE}")
    T2 = PB + 16
    for i in range(2):
        n0 = N + i * 8
        a(f"v_mov_b32 v{T2+2*i}, v{n0+4}")
        a(f"v_mov_b32 v{T2+2*i+1}, v{n0+4}")
    nop(a, 2)
    for i in range(2):
        a(f"v_permlane16_swap_b32 v{T2+2*i}, v{T2+2*i+1}")
    nop(a, 2)
    for i in range(2):
        n0 = N + i * 8
        dn = T2 + 2 * i
        a(f"v_cndmask_b32 v{dn}, v{n0+4}, v{dn+1}, vcc")
        a(f"v_cvt_pk_bf16_f32 v{dn}, v{dn}, v{dn}")
        a(f"v_lshlrev_b32 v{dn}, 16, v{dn}")
        a(f"v_add_f32 v{dn}, s{S_T+7}, v{dn}")
        a(f"v_cvt_pk_bf16_f32 v{dn}, v{dn}, v{dn}")
        a(f"v_lshlrev_b32 v{dn}, 16, v{dn}")
        a(f"v_rcp_f32 v{dn}, v{dn}")
        for k in range(4):
            a(f"v_cvt_pk_bf16_f32 v{PQ+k}, v{n0+2*k}, v{n0+2*k+1}")
        for k in range(4):
            a(f"v_lshlrev_b32 v{n0+2*k}, 16, v{PQ+k}")
            a(f"v_and_b32 v{n0+2*k+1}, 0xffff0000, v{PQ+k}")
        for k in range(8):
            a(f"v_mul_f32 v{n0+k}, v{n0+k}, v{dn}")
        for k in range(4):
            a(f"v_cvt_pk_bf16_f32 v{n0+k}, v{n0+2*k}, v{n0+2*k+1}")
        a(f"s_mov_b32 s{S_T+4}, {i*20480}")
        a(f"buffer_store_dwordx2 {v(n0,2)}, v{V_OA0}, s[{S_WS}:{S_WS+3}], s{S_T+4} offen sc1")
    a("s_mov_b64 exec, 0xffff")
    for i in range(2):
        n0 = N + i * 8
        a(f"s_mov_b32 s{S_T+4}, {i*20480}")
        a(f"buffer_store_dwordx2 {v(n0+2,2)}, v{V_OA1}, s[{S_WS}:{S_WS+3}], s{S_T+4} offen sc1")
    a("s_mov_b64 exec, -1")
    a("s_waitcnt vmcnt(0)")
    vm.q = []
    a("s_barrier")
    a(f"s_cmp_lg_u32 s{S_WAVE}, 0")
    a("s_cbranch_scc1 K4_sig")
    a(f"s_lshl_b32 s{S_T}, s{S_RB}, 2")
    a(f"v_mov_b32 v{t}, s{S_T}")
    a(f"v_mov_b32 v{t+1}, 1")
    a("s_mov_b64 exec, 1")
    a(f"buffer_atomic_add v{t+1}, v{t}, s[{S_DBG}:{S_DBG+3}], 0 offen sc1")
    a("s_mov_b64 exec, -1")
    a.label("K4_sig")
    stamp(a)
    a(f"v_and_b32 v{t}, 3, v{V_LANE}")
    a(f"v_lshrrev_b32 v{t+2}, 2, v{V_LANE}")
    a(f"v_mul_u32_u24 v{t+2}, 160, v{t+2}")
    a(f"v_lshl_add_u32 v{V_WB}, v{t}, 3, v{t+2}")
    def gemm(isA, hooks):
        items = [(b, T) for b in range(5) for T in range(5)]
        n_it = 25
        def reads(Nn):
            b, T = items[Nn]
            slot = V_RING + (Nn % RING) * 4
            if T == 0:
                a(f"s_mul_i32 s{S_T}, s{S_KQ}, 5")
                a(f"s_add_u32 s{S_T}, s{S_T}, {b}")
                if isA:
                    a(f"s_add_u32 s{S_T+1}, s{S_T}, 20")
                    a(f"s_sub_u32 s{S_T+2}, s{S_T}, 11")
                    a(f"s_cmp_lt_u32 s{S_T}, 11")
                    a(f"s_cselect_b32 s{S_T}, s{S_T+1}, s{S_T+2}")
                a(f"s_mul_i32 s{S_T}, s{S_T}, 5120")
                a(f"v_add_u32 v{t+(b%2)}, s{S_T}, v{V_WB}")
            for qq in range(2):
                a(f"ds_read_b64_tr_b16 {v(slot+2*qq,2)}, v{t+(b%2)} offset:{qq*2560 + T*32}")
        for Nn in range(D):
            reads(Nn)
        for Nn in range(n_it):
            if Nn + D < n_it:
                reads(Nn + D)
                a(f"s_waitcnt lgkmcnt({2*D})")
            else:
                a(f"s_waitcnt lgkmcnt({2*(n_it-1-Nn)})")
            b, T = items[Nn]
            slot = V_RING + (Nn % RING) * 4
            for rt in range(2):
                acc = (V_ACCA if isA else V_ACCB) + (rt * 5 + T) * 4
                bb = v((V_OAF if isA else V_OBF) + (b * 2 + rt) * 4, 4)
                src = "0" if b == 0 else v(acc, 4)
                a(f"v_mfma_f32_16x16x32_bf16 {v(acc,4)}, {v(slot,4)}, {bb}, {src}")
            if Nn in hooks:
                hooks[Nn]()
    gemm(False, {1: lambda: wgroup(True, 0), 8: lambda: wgroup(True, 1)})
    stamp(a)
    a("s_waitcnt lgkmcnt(0)")
    a("s_barrier")
    wgroup(True, 2); wgroup(True, 3)
    a(f"s_cmp_lg_u32 s{S_WAVE}, 0")
    a("s_cbranch_scc1 K4_pd")
    a(f"s_lshl_b32 s{S_T}, s{S_E}, 2")
    a(f"v_mov_b32 v{t+4}, s{S_T}")
    a(f"s_mov_b32 s{S_T+1}, 0")
    a.label("K4_poll")
    a(f"buffer_load_dword v{t+5}, v{t+4}, s[{S_DBG}:{S_DBG+3}], 0 offen sc1")
    a("s_waitcnt vmcnt(0)")
    a(f"v_readfirstlane_b32 s{S_T}, v{t+5}")
    a("s_nop 3")
    a(f"s_cmp_ge_u32 s{S_T}, 32")
    a("s_cbranch_scc1 K4_pd")
    a(f"s_add_u32 s{S_T+1}, s{S_T+1}, 1")
    a(f"s_cmp_ge_u32 s{S_T+1}, 0x40000")
    a("s_cbranch_scc1 K4_pd")
    a("s_sleep 2")
    a("s_branch K4_poll")
    a.label("K4_pd")
    a("s_barrier")
    stamp(a)
    o_loads(V_OAF, WS_OA, "OA", " sc1")
    a("s_waitcnt vmcnt(0)")
    vm.q = []
    a("s_barrier")
    stamp(a)
    gemm(True, {})
    stamp(a)
    a("s_waitcnt lgkmcnt(0)")
    a("s_barrier")
    nop(a, 8)
    a(f"v_lshlrev_b32 v{t}, 4, v{V_LANE}")
    a(f"s_mul_i32 s{S_T}, s{S_WAVE}, 20480")
    a(f"v_add_u32 v{t+1}, s{S_T}, v{t}")
    for u in range(20):
        a(f"ds_write_b128 v{t+1}, {v(V_ACCB+u*4,4)} offset:{u*1024}")
    a("s_waitcnt lgkmcnt(0)")
    a("s_barrier")
    X = 48
    for y in range(3):
        if y == 2:
            a(f"s_cmp_ge_u32 s{S_KQ}, 2")
            a("s_cbranch_scc1 K4_fin")
        a(f"s_add_u32 s{S_T}, s{S_KQ}, {4*y}")
        a(f"s_cmp_ge_u32 s{S_T}, 5")
        a(f"s_cselect_b32 s{S_T+1}, 1, 0")
        a(f"s_mul_i32 s{S_T+2}, s{S_T+1}, 5")
        a(f"s_sub_u32 s{S_T+2}, s{S_T}, s{S_T+2}")
        a(f"s_lshl_b32 s{S_T+3}, s{S_T}, 10")
        a(f"s_mul_i32 s{S_T+4}, s{S_RH}, 20480")
        a(f"s_add_u32 s{S_T+3}, s{S_T+3}, s{S_T+4}")
        a(f"v_add_u32 v{t+2}, s{S_T+3}, v{t}")
        a(f"v_add_u32 v{t+7}, {2*40960}, v{t+2}")
        for q in range(4):
            ra = t + 2 if q < 2 else t + 7
            a(f"ds_read_b128 {v(X+q*4,4)}, v{ra} offset:{(q%2)*40960 + 10240}")
            a(f"ds_read_b128 {v(X+16+q*4,4)}, v{ra} offset:{(q%2)*40960}")
        a(f"s_lshl_b32 s{S_T+3}, s{S_I}, 6")
        a(f"s_lshl_b32 s{S_T+4}, s{S_RH}, 5")
        a(f"s_add_u32 s{S_T+3}, s{S_T+3}, s{S_T+4}")
        a(f"s_lshl_b32 s{S_T+4}, s{S_T+1}, 4")
        a(f"s_add_u32 s{S_T+3}, s{S_T+3}, s{S_T+4}")
        a(f"v_and_b32 v{t+3}, 15, v{V_LANE}")
        a(f"v_add_u32 v{t+3}, s{S_T+3}, v{t+3}")
        a(f"s_cmp_eq_u32 s{S_T+1}, 1")
        a(f"s_cselect_b64 vcc, -1, 0")
        a(f"v_cndmask_b32 v{t+6}, v{V_G}, v{V_G+1}, vcc")
        a(f"v_mul_u32_u24 v{t+3}, 1280, v{t+3}")
        a(f"v_lshl_add_u32 v{t+3}, v{V_GRP}, 3, v{t+3}")
        a(f"s_mul_i32 s{S_T+3}, s{S_JC}, 160")
        a(f"s_lshl_b32 s{S_T+4}, s{S_T+2}, 5")
        a(f"s_add_u32 s{S_T+3}, s{S_T+3}, s{S_T+4}")
        a(f"v_add_u32 v{t+3}, s{S_T+3}, v{t+3}")
        a("s_waitcnt lgkmcnt(0)")
        for k in range(4):
            a(f"v_add_f32 v{X+k}, v{X+k}, v{X+4+k}")
            a(f"v_add_f32 v{X+8+k}, v{X+8+k}, v{X+12+k}")
            a(f"v_add_f32 v{X+16+k}, v{X+16+k}, v{X+20+k}")
            a(f"v_add_f32 v{X+24+k}, v{X+24+k}, v{X+28+k}")
        for k in range(4):
            a(f"v_add_f32 v{X+k}, v{X+k}, v{X+8+k}")
            a(f"v_add_f32 v{X+8+k}, v{X+16+k}, v{X+24+k}")
        a(f"v_cvt_pk_bf16_f32 v{X+4}, v{X}, v{X+1}")
        a(f"v_cvt_pk_bf16_f32 v{X+5}, v{X+2}, v{X+3}")
        a(f"v_cvt_pk_bf16_f32 v{X+6}, v{X+8}, v{X+9}")
        a(f"v_cvt_pk_bf16_f32 v{X+7}, v{X+10}, v{X+11}")
        for k in range(2):
            a(f"v_lshlrev_b32 v{X+2*k}, 16, v{X+4+k}")
            a(f"v_and_b32 v{X+2*k+1}, 0xffff0000, v{X+4+k}")
            a(f"v_lshlrev_b32 v{X+8+2*k}, 16, v{X+6+k}")
            a(f"v_and_b32 v{X+8+2*k+1}, 0xffff0000, v{X+6+k}")
        a(f"v_sub_f32 v{t+5}, 1.0, v{t+6}")
        a(f"v_cvt_pk_bf16_f32 v{t+5}, v{t+5}, v{t+5}")
        a(f"v_lshlrev_b32 v{t+5}, 16, v{t+5}")
        for k in range(4):
            a(f"v_mul_f32 v{X+k}, v{X+k}, v{t+6}")
            a(f"v_mul_f32 v{X+8+k}, v{X+8+k}, v{t+5}")
        a(f"v_cvt_pk_bf16_f32 v{X+4}, v{X}, v{X+1}")
        a(f"v_cvt_pk_bf16_f32 v{X+5}, v{X+2}, v{X+3}")
        a(f"v_cvt_pk_bf16_f32 v{X+6}, v{X+8}, v{X+9}")
        a(f"v_cvt_pk_bf16_f32 v{X+7}, v{X+10}, v{X+11}")
        for k in range(2):
            a(f"v_lshlrev_b32 v{X+2*k}, 16, v{X+4+k}")
            a(f"v_and_b32 v{X+2*k+1}, 0xffff0000, v{X+4+k}")
            a(f"v_lshlrev_b32 v{X+8+2*k}, 16, v{X+6+k}")
            a(f"v_and_b32 v{X+8+2*k+1}, 0xffff0000, v{X+6+k}")
        for k in range(4):
            a(f"v_add_f32 v{X+k}, v{X+k}, v{X+8+k}")
        a(f"v_cvt_pk_bf16_f32 v{X+4}, v{X}, v{X+1}")
        a(f"v_cvt_pk_bf16_f32 v{X+5}, v{X+2}, v{X+3}")
        a(f"buffer_store_dwordx2 {v(X+4,2)}, v{t+3}, s[{S_OUT}:{S_OUT+3}], 0 offen")
        nop(a, 2)
    a.label("K4_fin")
    stamp_flush(a)
    if standalone:
        a.label("K4_done")
        a("s_endpgm")
    return name
```

```python
import sys
from common import *
import k1v2 as k1, k4
def build(path, stamps=False):
    k1.STAMPS = False
    k4.STAMPS = stamps
    k1.PREFETCH = False
    k1.MEGA = True
    a = Asm()
    hdr = open("cdna_kernels/" + KNAME + ".s.ref").read().split("; Override launch")[0]
    a.raw(hdr.rstrip("\n"))
    a.raw(f"; @launch grid=(256,1,1) block=(512,1,1) lds={k4.K4_LDS}")
    a.raw('.amdgcn_target "amdgcn-amd-amdhsa--gfx950"')
    a.raw(".text")
    k1.gen_k1(a, name=KNAME + "_kernel", tail=lambda a: k4.gen_k4(a, standalone=False))
    a.raw('.section .rodata,"a"')
    a.raw(".p2align 6")
    kernel_desc(a, KNAME + "_kernel", 240, 102)
    open(path, "w").write(a.text())
if __name__ == "__main__":
    build(sys.argv[1], stamps=("stamps" in sys.argv))
```

```python
from common import *

V_LANE = 1; V_T0 = 2
V_GRP = 10
V_WA = 11; V_WB = 12
V_X0 = 13; V_X1 = 14
V_XH0 = 15; V_XH1 = 16
V_H0 = 17; V_H1 = 18
V_DMA = 20
V_WR = 28
V_X = 52
V_ACC = 76
V_HACC = 140
V_E = 148

S_X = 4; S_W = 8; S_WS = 12; S_AUX = 16
S_I = 20; S_J = 21; S_BR = 22; S_WAVE = 23; S_RG = 24; S_CG = 25
S_T = 26
S_SOFF = 34; S_STEP = 35
S_L = 36; S_NL = 37; S_ROT = 38
S_LD = 40
S_PTR = 44
S_MASK = 56
S_M2 = 72
S_ST = 80

STG = 49152
XOFF = 30720
LDS_WPHI = 3 * STG
LDS_ZERO = LDS_WPHI + 3200
K1_LDS = LDS_ZERO + 1024

D = 5
RING = 6
STAMPS = False
NST = [0]

def nop(a, n):
    while n > 0:
        k = min(n, 16)
        a(f"s_nop {k-1}")
        n -= k

def stamp(a):
    if STAMPS:
        k = NST[0]; NST[0] += 1
        if k == 0:
            a(f"s_memrealtime s[98:99]")
        a(f"s_memtime s[{S_ST+2*k}:{S_ST+2*k+1}]")
def stamp_flush(a):
    if STAMPS:
        n = NST[0]
        a("s_waitcnt lgkmcnt(0) vmcnt(0)")
        a(f"s_memtime s[{S_ST+2*n}:{S_ST+2*n+1}]")
        a(f"s_memrealtime s[100:101]")
        a("s_waitcnt lgkmcnt(0)")
        a(f"s_lshl_b32 s{S_T}, s2, 3")
        a(f"s_add_u32 s{S_T}, s{S_T}, s{S_WAVE}")
        a(f"s_lshl_b32 s{S_T}, s{S_T}, 6")
        a(f"s_add_u32 s{S_T}, s{S_T}, {WS_DBG}")
        a(f"v_mov_b32 v2, s{S_T}")
        a("s_mov_b64 exec, 1")
        for k in range(n + 1):
            a(f"v_mov_b32 v3, s{S_ST+2*k}")
            a(f"buffer_store_dword v3, v2, s[{S_WS}:{S_WS+3}], 0 offen offset:{4*k}")
            a("s_nop 1")
        for k, sr in enumerate((98, 100)):
            a(f"v_mov_b32 v3, s{sr}")
            a(f"buffer_store_dword v3, v2, s[{S_WS}:{S_WS+3}], 0 offen offset:{48+4*k}")
            a("s_nop 1")
        a("s_mov_b64 exec, -1")

class Cnt:
    def __init__(self, a, kind, mx):
        self.a = a; self.q = []; self.kind = kind; self.mx = mx
    def issue(self, tag):
        self.q.append(tag)
        assert len(self.q) <= self.mx, f"too many outstanding {self.kind}"
    def wait(self, *tags):
        idx = -1
        for i, t in enumerate(self.q):
            if t in tags: idx = i
        if idx < 0: return
        n = len(self.q) - 1 - idx
        self.a(f"s_waitcnt {self.kind}({n})")
        self.q = self.q[idx+1:]
    def clear(self):
        self.q = []

def xreg(buf, r):
    return V_X + (buf * 3 + r) * 4
def acc(rt, sl):
    return V_ACC + (rt * 8 + sl) * 4

def gen_prologue(a):
    t = V_T0
    a("s_cmp_ge_u32 s2, 256")
    a("s_cbranch_scc1 K1_done")
    a(f"s_load_dwordx4 s[{S_PTR}:{S_PTR+3}], s[0:1], 0")
    a(f"s_load_dwordx2 s[{S_PTR+4}:{S_PTR+5}], s[0:1], 16")
    a(f"s_load_dwordx2 s[{S_PTR+6}:{S_PTR+7}], s[0:1], 40")
    a(f"s_load_dwordx2 s[{S_PTR+8}:{S_PTR+9}], s[0:1], 56")
    a(f"s_load_dwordx2 s[{S_PTR+10}:{S_PTR+11}], s[0:1], 80")
    a(f"s_and_b32 s{S_T}, s2, 7")
    a(f"s_lshr_b32 s{S_T+1}, s2, 3")
    a(f"s_and_b32 s{S_I}, s{S_T}, 1")
    a(f"s_lshl_b32 s{S_I}, s{S_I}, 3")
    a(f"s_and_b32 s{S_T+2}, s{S_T+1}, 7")
    a(f"s_add_u32 s{S_I}, s{S_I}, s{S_T+2}")
    a(f"s_lshr_b32 s{S_J}, s{S_T}, 1")
    a(f"s_lshl_b32 s{S_J}, s{S_J}, 1")
    a(f"s_lshr_b32 s{S_T+2}, s{S_T+1}, 3")
    a(f"s_and_b32 s{S_T+2}, s{S_T+2}, 1")
    a(f"s_add_u32 s{S_J}, s{S_J}, s{S_T+2}")
    a(f"s_lshr_b32 s{S_BR}, s{S_T+1}, 4")
    a(f"s_mul_i32 s{S_ROT}, s{S_T+1}, 3")
    a(f"s_mul_i32 s{S_T+2}, s{S_ROT}, 6554")
    a(f"s_lshr_b32 s{S_T+2}, s{S_T+2}, 16")
    a(f"s_mul_i32 s{S_T+2}, s{S_T+2}, 10")
    a(f"s_sub_u32 s{S_ROT}, s{S_ROT}, s{S_T+2}")
    a(f"v_lshrrev_b32 v{t}, 6, v0")
    a(f"v_and_b32 v{V_LANE}, 63, v0")
    a(f"v_readfirstlane_b32 s{S_WAVE}, v{t}")
    a(f"v_lshrrev_b32 v{V_GRP}, 4, v{V_LANE}")
    a(f"s_mov_b32 s{S_L}, 0x3fb8aa3b")
    a(f"s_mov_b32 s{S_NL}, 0xbfb8aa3b")
    a(f"s_and_b32 s{S_RG}, s{S_WAVE}, 3")
    a(f"s_lshr_b32 s{S_CG}, s{S_WAVE}, 2")
    a(f"s_mul_i32 s{S_T}, s{S_WAVE}, 384")
    a(f"s_mul_i32 s{S_T+1}, s{S_J}, 160")
    a(f"s_mov_b32 s{S_T+2}, 2185")
    a(f"s_lshl_b32 s{S_T+3}, s{S_I}, 7")
    a(f"s_sub_u32 s{S_T+3}, s{S_T+3}, {16 + 5*48}")
    a(f"s_mov_b32 s{S_T+4}, 1280")
    a(f"s_cmp_ge_u32 s{S_WAVE}, 5")
    a(f"s_cbranch_scc1 K1_xoff")
    for n in range(6):
        d = V_DMA + n
        a(f"v_add_u32 v{t}, s{S_T}, v{V_LANE}")
        if n:
            a(f"v_add_u32 v{t}, {n*64}, v{t}")
        a(f"v_mul_u32_u24 v{t+1}, s{S_T+2}, v{t}")
        a(f"v_lshrrev_b32 v{t+1}, 16, v{t+1}")
        a(f"v_mul_u32_u24 v{t+2}, 30, v{t+1}")
        a(f"v_sub_u32 v{t+2}, v{t}, v{t+2}")
        a(f"v_and_b32 v{t+3}, 0x23, v{t+1}")
        a(f"v_bfe_u32 v{t+4}, v{t+1}, 2, 2")
        a(f"v_lshl_add_u32 v{t+3}, v{t+4}, 3, v{t+3}")
        a(f"v_bfe_u32 v{t+4}, v{t+1}, 4, 1")
        a(f"v_lshl_add_u32 v{t+3}, v{t+4}, 2, v{t+3}")
        a(f"v_mul_u32_u24 v{t+3}, 3840, v{t+3}")
        a(f"v_mul_u32_u24 v{t+4}, 26, v{t+2}")
        a(f"v_lshrrev_b32 v{t+4}, 8, v{t+4}")
        a(f"v_mul_u32_u24 v{t+5}, 1120, v{t+4}")
        a(f"v_add_u32 v{t+3}, v{t+3}, v{t+5}")
        a(f"v_lshl_add_u32 v{t+3}, v{t+2}, 4, v{t+3}")
        a(f"v_add_u32 v{d}, s{S_T+1}, v{t+3}")
    a("s_branch K1_offdone")
    a.label("K1_xoff")
    a(f"v_lshrrev_b32 v{t}, 3, v{V_LANE}")
    a(f"v_and_b32 v{t+1}, 7, v{V_LANE}")
    a(f"v_xor_b32 v{t+1}, v{t+1}, v{t}")
    a(f"v_lshlrev_b32 v{t+1}, 4, v{t+1}")
    a(f"s_mul_i32 s{S_T}, s{S_WAVE}, 48")
    a(f"s_add_u32 s{S_T}, s{S_T}, s{S_T+3}")
    for n in range(6):
        a(f"v_add_u32 v{t+2}, s{S_T}, v{t}")
        if n:
            a(f"v_add_u32 v{t+2}, {8*n}, v{t+2}")
        a(f"v_mul_lo_u32 v{t+2}, v{t+2}, s{S_T+4}")
        a(f"v_add_u32 v{V_DMA+n}, v{t+2}, v{t+1}")
    a.label("K1_offdone")
    a("s_waitcnt lgkmcnt(0)")
    srd(a, S_X, S_PTR, 2048 * 1280)
    srd(a, S_WS, S_PTR + 10, WS_SIZE)
    a(f"s_cmp_eq_u32 s{S_BR}, 0")
    a(f"s_cselect_b32 s{S_T}, s{S_PTR+2}, s{S_PTR+6}")
    a(f"s_cselect_b32 s{S_T+1}, s{S_PTR+3}, s{S_PTR+7}")
    a(f"s_cselect_b32 s{S_T+2}, s{S_PTR+4}, s{S_PTR+8}")
    a(f"s_cselect_b32 s{S_T+3}, s{S_PTR+5}, s{S_PTR+9}")
    a(f"s_mov_b32 s{S_T+5}, 1280")
    a(f"s_cselect_b32 s{S_T+4}, 25600, s{S_T+5}")
    srd(a, S_W, S_T, 640 * 3840)
    a(f"s_mov_b32 s{S_AUX}, s{S_T+2}")
    a(f"s_and_b32 s{S_AUX+1}, s{S_T+3}, 0xffff")
    a(f"s_mov_b32 s{S_AUX+2}, s{S_T+4}")
    a(f"s_mov_b32 s{S_AUX+3}, 0x00020000")
    a(f"s_cmp_ge_u32 s{S_WAVE}, 5")
    for k in range(4):
        a(f"s_cselect_b32 s{S_LD+k}, s{S_X+k}, s{S_W+k}")
    a(f"s_mov_b32 s{S_T}, {64*3840}")
    a(f"s_cselect_b32 s{S_STEP}, 128, s{S_T}")

NO_LOADS = False
TOVGPR = False
MEGA = False
WS_FL = 0xE00000
GATE_IN_A = False
START_RT = False
def SC():
    return ' sc1' if MEGA else ''
def dma(a, c, n):
    if NO_LOADS and c >= 3: return
    b = c % 3
    a(f"s_mul_i32 s{S_T}, s{S_WAVE}, 6144")
    a(f"s_add_u32 m0, s{S_T}, {b*STG + n*1024}")
    if n == 0 or True:
        a(f"s_add_u32 s{S_SOFF}, s{S_ROT}, {c}")
        a(f"s_sub_u32 s{S_T+1}, s{S_SOFF}, 10")
        a(f"s_cmp_ge_u32 s{S_SOFF}, 10")
        a(f"s_cselect_b32 s{S_SOFF}, s{S_T+1}, s{S_SOFF}")
        a(f"s_mul_i32 s{S_SOFF}, s{S_STEP}, s{S_SOFF}")
    if TOVGPR and c >= 3:
        a(f"buffer_load_dwordx4 v[{200+4*n}:{203+4*n}], v{V_DMA+n}, s[{S_LD}:{S_LD+3}], s{S_SOFF} offen")
    else:
        a(f"buffer_load_dwordx4 v{V_DMA+n}, s[{S_LD}:{S_LD+3}], s{S_SOFF} offen lds")

def gen_bases(a):
    t = V_T0
    a(f"v_lshrrev_b32 v{t}, 2, v{V_LANE}")
    a(f"v_mul_u32_u24 v{t}, 480, v{t}")
    a(f"v_and_b32 v{t+1}, 3, v{V_LANE}")
    a(f"v_mul_u32_u24 v{t+1}, 40, v{t+1}")
    a(f"v_add_u32 v{t}, v{t}, v{t+1}")
    a(f"s_mul_i32 s{S_T}, s{S_CG}, 160")
    a(f"v_add_u32 v{V_WA}, s{S_T}, v{t}")
    a(f"s_mul_i32 s{S_T}, s{S_CG}, 24")
    a(f"s_add_u32 s{S_T}, s{S_T}, 320")
    a(f"v_add_u32 v{V_WB}, s{S_T}, v{t}")
    for h in range(2):
        a(f"s_add_u32 s{S_T}, s{S_WAVE}, {8*h}")
        a(f"s_cmp_ge_u32 s{S_T}, 10")
        a(f"s_cselect_b32 s{S_T}, s{S_WAVE}, s{S_T}")
        a(f"s_add_u32 s{S_T}, s{S_T}, 5")
        a(f"s_cmp_ge_u32 s{S_T}, 10")
        a(f"s_mov_b32 s{S_T+2}, 120")
        a(f"s_cselect_b32 s{S_T+1}, 240, s{S_T+2}")
        a(f"s_lshl_b32 s{S_T}, s{S_T}, 3")
        a(f"s_add_u32 s{S_T}, s{S_T}, s{S_T+1}")
        a(f"v_add_u32 v{V_H0+h}, s{S_T}, v{t}")
    a(f"v_and_b32 v{t}, 15, v{V_LANE}")
    a(f"v_and_b32 v{t+1}, 7, v{V_LANE}")
    a(f"v_xor_b32 v{t+1}, v{t+1}, v{V_GRP}")
    a(f"v_lshlrev_b32 v{t+1}, 4, v{t+1}")
    a(f"v_lshl_add_u32 v{t+1}, v{t}, 7, v{t+1}")
    a(f"v_add_u32 v{V_XH0}, {XOFF}, v{t+1}")
    a(f"v_xor_b32 v{V_XH1}, 64, v{V_XH0}")
    a(f"s_lshl_b32 s{S_T}, s{S_RG}, 12")
    a(f"s_add_u32 s{S_T}, s{S_T}, 2048")
    a(f"v_add_u32 v{V_X0}, s{S_T}, v{V_XH0}")
    a(f"v_add_u32 v{V_X1}, s{S_T}, v{V_XH1}")

PREFETCH = True
def gen_prefetch(a):
    if not PREFETCH: return
    t = V_E + 16
    a(f"s_lshr_b32 s{S_T}, s2, 3")
    a(f"s_lshl_b32 s{S_T+1}, s{S_T}, 3")
    a(f"s_add_u32 s{S_T+1}, s{S_T+1}, s{S_WAVE}")
    a(f"s_lshl_b32 s{S_T+1}, s{S_T+1}, 6")
    a(f"v_add_u32 v{t}, s{S_T+1}, v{V_LANE}")
    a(f"s_and_b32 s{S_T+2}, s2, 1")
    a(f"s_mul_i32 s{S_T+2}, s{S_T+2}, {1024*1280}")
    a(f"v_lshlrev_b32 v{t+1}, 7, v{t}")
    a(f"v_add_u32 v{t+1}, s{S_T+2}, v{t+1}")
    a(f"v_mov_b32 v{t+2}, 0x7ff00000")
    a(f"v_cmp_le_u32 vcc, 10240, v{t}")
    a(f"v_and_b32 v{t+3}, 0x1fff, v{t}")
    a(f"v_cndmask_b32 v{t+1}, v{t+1}, v{t+2}, vcc")
    a(f"buffer_load_dword v{t+8}, v{t+1}, s[{S_X}:{S_X+3}], 0 offen")
    a(f"v_mul_u32_u24 v{t+4}, 5462, v{t+3}")
    a(f"v_lshrrev_b32 v{t+4}, 16, v{t+4}")
    a(f"v_mul_u32_u24 v{t+5}, 12, v{t+4}")
    a(f"v_sub_u32 v{t+5}, v{t+3}, v{t+5}")
    a(f"v_lshrrev_b32 v{t+6}, 2, v{t+5}")
    a(f"v_and_b32 v{t+5}, 3, v{t+5}")
    a(f"v_mul_u32_u24 v{t+4}, 3840, v{t+4}")
    a(f"v_mul_u32_u24 v{t+6}, 1280, v{t+6}")
    a(f"v_add_u32 v{t+4}, v{t+4}, v{t+6}")
    a(f"v_lshl_add_u32 v{t+4}, v{t+5}, 7, v{t+4}")
    a(f"s_and_b32 s{S_T+2}, s2, 7")
    a(f"s_lshr_b32 s{S_T+2}, s{S_T+2}, 1")
    a(f"s_mul_i32 s{S_T+2}, s{S_T+2}, 320")
    a(f"s_and_b32 s{S_T+2}, s{S_T+2}, 0xffffff80")
    a(f"v_add_u32 v{t+4}, s{S_T+2}, v{t+4}")
    a(f"v_cmp_le_u32 vcc, 7680, v{t+3}")
    a("s_nop 1")
    a(f"v_cndmask_b32 v{t+4}, v{t+4}, v{t+2}, vcc")
    a(f"buffer_load_dword v{t+9}, v{t+4}, s[{S_W}:{S_W+3}], 0 offen")

def gen_mainloop(a, halo, pre_hook=None):
    lg = Cnt(a, "lgkmcnt", 15)
    nxr = 3 if halo else 2
    items = []
    for c in range(10):
        for m in range(2):
            for sl in range(8):
                items.append((c, m, "m", sl))
                if halo and sl in (3, 7):
                    items.append((c, m, "h", sl // 4))
    per_k = len(items) // 20
    per_chunk = 2 * per_k
    total = len(items)
    base_regs = [V_WA, V_WB, V_X0, V_X1, V_XH0, V_XH1, V_H0, V_H1]
    cur_stage = [0]
    def set_stage(c):
        b = c % 3
        if b != cur_stage[0]:
            delta = (b - cur_stage[0]) * STG
            for r in base_regs:
                if not halo and r in (V_XH0, V_XH1, V_H0, V_H1): continue
                if delta > 0:
                    a(f"v_add_u32 v{r}, {delta}, v{r}")
                else:
                    a(f"v_subrev_u32 v{r}, {-delta}, v{r}")
            cur_stage[0] = b
    def x_reads(c, m):
        set_stage(c)
        buf = (2 * c + m) % 2
        for r in range(nxr):
            if r < 2:
                a(f"ds_read_b128 {v(xreg(buf,r),4)}, v{V_X0+m} offset:{r*2048}")
            else:
                a(f"ds_read_b128 {v(xreg(buf,r),4)}, v{V_XH0+m}")
            lg.issue(f"x{c}_{m}")
    def w_reads(N):
        c, m, kind, idx = items[N]
        set_stage(c)
        slot = V_WR + (N % RING) * 4
        for qq in range(2):
            imm = (2 * m + qq) * 16 * 480
            if kind == "m":
                base = V_WA if idx < 5 else V_WB
                imm += 8 * (idx if idx < 5 else idx - 5)
            else:
                base = V_H0 + idx
            a(f"ds_read_b64_tr_b16 {v(slot+2*qq,2)}, v{base} offset:{imm}")
            lg.issue(f"w{N}")
    for n in range(6):
        dma(a, 0, n)
    for n in range(6):
        dma(a, 1, n)
    gen_bases(a)
    if pre_hook: pre_hook()
    stamp(a)
    a(f"s_waitcnt vmcnt(6)")
    a("s_barrier")
    stamp(a)
    x_reads(0, 0)
    for N in range(D):
        w_reads(N)
    nxt = D
    DL = 2
    for N in range(total):
        c, m, kind, idx = items[N]
        n = N - c * per_chunk
        if n == 0:
            a.comment(f"---- chunk {c}")
        bar_here = (n == per_chunk - D + DL and c + 1 <= 9)
        if bar_here:
            a(f"s_waitcnt vmcnt({(8 if (c == 0 and PREFETCH) else 6) if c + 2 <= 9 else 0}) lgkmcnt(0)")
            lg.clear()
            a("s_barrier")
        lim = N + D
        if c + 1 <= 9 and n < per_chunk - D + DL:
            lim = min(lim, (c + 1) * per_chunk - 1)
        lim = min(lim, total - 1)
        while nxt <= lim:
            cc, mm, _, _ = items[nxt]
            if nxt == (cc * 2 + mm) * per_k:
                x_reads(cc, mm)
            w_reads(nxt)
            nxt += 1
        lg.wait(f"w{N}", f"x{c}_{m}")
        slot = V_WR + (N % RING) * 4
        buf = (2 * c + m) % 2
        first = (c == 0 and m == 0)
        if kind == "m":
            for rt in range(2):
                src = "0" if first else v(acc(rt, idx), 4)
                a(f"v_mfma_f32_16x16x32_bf16 {v(acc(rt,idx),4)}, {v(slot,4)}, {v(xreg(buf,rt),4)}, {src}")
        else:
            src = "0" if first else v(V_HACC + idx * 4, 4)
            a(f"v_mfma_f32_16x16x32_bf16 {v(V_HACC+idx*4,4)}, {v(slot,4)}, {v(xreg(buf,2),4)}, {src}")
        if c == 0 and n < 6:
            dma(a, 2, n)
        if c == 0 and n == 6:
            gen_prefetch(a)
        k = N - (c * per_chunk + per_chunk - D + DL)
        for cc in (c, c - 1):
            if cc < 0 or cc + 3 > 9: continue
            k = N - (cc * per_chunk + per_chunk - D + DL)
            if 0 <= k < 6:
                dma(a, cc + 3, k)

def softmax_dual(a, P, T, OUT, X4):
    for i in range(10):
        a(f"v_cvt_pk_bf16_f32 v{T+i}, v{P+2*i}, v{P+2*i+1}")
    for i in range(10):
        a(f"v_lshlrev_b32 v{P+2*i}, 16, v{T+i}")
        a(f"v_and_b32 v{P+2*i+1}, 0xffff0000, v{T+i}")
    mx, mn, nmx, pmn = X4, X4 + 1, X4 + 2, X4 + 3
    a(f"v_max3_f32 v{mx}, v{P}, v{P+1}, v{P+2}")
    a(f"v_min3_f32 v{mn}, v{P}, v{P+1}, v{P+2}")
    for i in range(3, 19, 2):
        a(f"v_max3_f32 v{mx}, v{mx}, v{P+i}, v{P+i+1}")
        a(f"v_min3_f32 v{mn}, v{mn}, v{P+i}, v{P+i+1}")
    a(f"v_max_f32 v{mx}, v{mx}, v{P+19}")
    a(f"v_min_f32 v{mn}, v{mn}, v{P+19}")
    a(f"v_mul_f32 v{nmx}, s{S_NL}, v{mx}")
    a(f"v_mul_f32 v{pmn}, s{S_L}, v{mn}")
    for i in range(20):
        a(f"v_fma_f32 v{T+i}, v{P+i}, s{S_L}, v{nmx}")
        a(f"v_fma_f32 v{P+i}, v{P+i}, s{S_NL}, v{pmn}")
    for i in range(20):
        a(f"v_exp_f32 v{T+i}, v{T+i}")
        a(f"v_exp_f32 v{P+i}, v{P+i}")
    a("s_nop 0")
    s1, s2 = mx, mn
    a(f"v_add_f32 v{s1}, v{T}, v{T+1}")
    a(f"v_add_f32 v{s2}, v{P}, v{P+1}")
    a(f"v_add_f32 v{nmx}, v{T+2}, v{T+3}")
    a(f"v_add_f32 v{pmn}, v{P+2}, v{P+3}")
    for i in range(4, 20, 2):
        a(f"v_add_f32 v{s1}, v{s1}, v{T+i}")
        a(f"v_add_f32 v{s2}, v{s2}, v{P+i}")
        a(f"v_add_f32 v{nmx}, v{nmx}, v{T+i+1}")
        a(f"v_add_f32 v{pmn}, v{pmn}, v{P+i+1}")
    a(f"v_add_f32 v{s1}, v{s1}, v{nmx}")
    a(f"v_add_f32 v{s2}, v{s2}, v{pmn}")
    a(f"v_rcp_f32 v{s1}, v{s1}")
    a(f"v_rcp_f32 v{s2}, v{s2}")
    a("s_nop 0")
    for i in range(20):
        a(f"v_mul_f32 v{T+i}, v{T+i}, v{s1}")
        a(f"v_mul_f32 v{P+i}, v{P+i}, v{s2}")
    for i in range(10):
        a(f"v_cvt_pk_bf16_f32 v{OUT+i}, v{T+2*i}, v{T+2*i+1}")
    for i in range(10):
        a(f"v_cvt_pk_bf16_f32 v{OUT+10+i}, v{P+2*i}, v{P+2*i+1}")

def gen_wphi_issue(a):
    t = V_E
    a(f"v_lshlrev_b32 v{t}, 4, v0")
    a(f"s_mul_i32 s{S_T}, s{S_J}, 3200")
    a(f"v_cmp_gt_u32 vcc, 200, v0")
    a(f"s_and_saveexec_b64 s[{S_T+2}:{S_T+3}], vcc")
    a(f"s_cbranch_execz K1_wp0")
    a(f"buffer_load_dwordx4 {v(t+4,4)}, v{t}, s[{S_AUX}:{S_AUX+3}], s{S_T} offen")
    a.label("K1_wp0")
    a(f"s_mov_b64 exec, s[{S_T+2}:{S_T+3}]")

def gen_wphi_stage(a):
    t = V_E
    a(f"v_cmp_gt_u32 vcc, 200, v0")
    a(f"s_and_saveexec_b64 s[{S_T+2}:{S_T+3}], vcc")
    a(f"s_cbranch_execz K1_wp1")
    a(f"v_add_u32 v{t+1}, {LDS_WPHI}, v{t}")
    a(f"s_waitcnt vmcnt(12)")
    a(f"ds_write_b128 v{t+1}, {v(t+4,4)}")
    a.label("K1_wp1")
    a(f"s_mov_b64 exec, s[{S_T+2}:{S_T+3}]")
    a(f"v_cmp_gt_u32 vcc, 64, v0")
    a(f"s_and_saveexec_b64 s[{S_T+2}:{S_T+3}], vcc")
    a(f"s_cbranch_execz K1_wp2")
    for r in range(4):
        a(f"v_mov_b32 v{t+8+r}, 0")
    a(f"v_add_u32 v{t+1}, {LDS_ZERO}, v{t}")
    a(f"ds_write_b128 v{t+1}, {v(t+8,4)}")
    a.label("K1_wp2")
    a(f"s_mov_b64 exec, s[{S_T+2}:{S_T+3}]")
    a("s_waitcnt lgkmcnt(0)")

PKO = 0
VO = 40960

def gen_epilogue_A(a):
    t = V_T0
    a("s_barrier")
    WF = 148
    QB = 208
    P = 220
    OUT = 28
    a(f"v_and_b32 v{t}, 3, v{V_LANE}")
    a(f"v_bfe_u32 v{t+1}, v{V_LANE}, 2, 2")
    a(f"v_mul_u32_u24 v{t+1}, 40, v{t+1}")
    a(f"v_mul_u32_u24 v{t+2}, 800, v{V_GRP}")
    a(f"v_add_u32 v{t+1}, v{t+1}, v{t+2}")
    a(f"v_add_u32 v{t+1}, {LDS_WPHI}, v{t+1}")
    a(f"v_mov_b32 v{t+2}, {LDS_ZERO}")
    a(f"v_cmp_eq_u32 vcc, v{t}, v{V_GRP}")
    a("s_nop 1")
    a(f"v_cndmask_b32 v{t+1}, v{t+2}, v{t+1}, vcc")
    for tt in range(5):
        for c in range(3):
            r = WF + (tt * 3 + c) * 4
            for qq in range(2):
                if c == 2 and qq == 1:
                    a(f"v_mov_b32 v{r+2}, 0")
                    a(f"v_mov_b32 v{r+3}, 0")
                else:
                    a(f"ds_read_b64_tr_b16 {v(r+2*qq,2)}, v{t+1} offset:{(8*c+4*qq)*40 + 8*tt}")
    a(f"v_mov_b32 v{QB+10}, 0")
    a(f"v_mov_b32 v{QB+11}, 0")
    a(f"s_lshl_b32 s{S_T}, s{S_I}, 3")
    a(f"s_lshl_b32 s{S_T+1}, s{S_RG}, 1")
    a(f"s_add_u32 s{S_T}, s{S_T}, s{S_T+1}")
    a(f"s_lshl_b32 s{S_T}, s{S_T}, 5")
    a(f"s_lshl_b32 s{S_T+1}, s{S_J}, 2")
    a(f"s_add_u32 s{S_T}, s{S_T}, s{S_T+1}")
    a(f"s_mul_i32 s{S_T}, s{S_T}, 1280")
    a(f"s_add_u32 s{S_T}, s{S_T}, {WS_PHIQ}")
    a(f"v_and_b32 v{t}, 15, v{V_LANE}")
    a(f"v_mul_u32_u24 v{t+2}, 1280, v{V_GRP}")
    a(f"v_lshl_add_u32 v{t+2}, v{t}, 4, v{t+2}")
    a(f"v_add_u32 v{t+2}, s{S_T}, v{t+2}")
    a(f"v_add_u32 v{t+7}, {32*1280}, v{t+2}")
    a(f"s_mul_i32 s{S_T}, s{S_RG}, {32*80}")
    a(f"v_mul_u32_u24 v{t+3}, 80, v{t}")
    a(f"v_mul_u32_u24 v{t+4}, 10240, v{V_GRP}")
    a(f"v_add_u32 v{t+3}, v{t+3}, v{t+4}")
    a(f"v_add_u32 v{t+3}, s{S_T}, v{t+3}")
    a(f"s_mul_i32 s{S_T}, s{S_RG}, {32*48}")
    a(f"s_mul_i32 s{S_T+1}, s{S_CG}, 24")
    a(f"s_add_u32 s{S_T}, s{S_T}, s{S_T+1}")
    a(f"v_mul_u32_u24 v{t+4}, 48, v{t}")
    a(f"v_mul_u32_u24 v{t+5}, 6144, v{V_GRP}")
    a(f"v_add_u32 v{t+4}, v{t+4}, v{t+5}")
    a(f"v_add_u32 v{t+4}, s{S_T}, v{t+4}")
    a(f"s_cmp_eq_u32 s{S_CG}, 1")
    a(f"s_cselect_b64 s[{S_T+2}:{S_T+3}], -1, 0")
    a(f"v_mov_b32 v{P+6}, 0x3f80")
    a(f"v_mov_b32 v{P+7}, 0")
    for rt in range(2):
        base = acc(rt, 5)
        for i in range(6):
            a(f"v_cvt_pk_bf16_f32 v{P+i}, v{base+2*i}, v{base+2*i+1}")
        a(f"v_cndmask_b32 v{P+4}, v{P+4}, v{P+6}, s[{S_T+2}:{S_T+3}]")
        a(f"v_cndmask_b32 v{P+5}, v{P+5}, v{P+7}, s[{S_T+2}:{S_T+3}]")
        for k in range(3):
            a(f"ds_write_b64 v{t+4}, {v(P+2*k,2)} offset:{VO + rt*768 + 8*k}")
        nop(a, 1)
    a("s_waitcnt lgkmcnt(0)")
    stamp(a)
    for rt in range(2):
        base = acc(rt, 0)
        for i in range(10):
            a(f"v_cvt_pk_bf16_f32 v{QB+i}, v{base+2*i}, v{base+2*i+1}")
        nop(a, 2)
        for c in range(3):
            for tt in range(5):
                src = "0" if c == 0 else v(P + tt * 4, 4)
                a(f"v_mfma_f32_16x16x32_bf16 {v(P+tt*4,4)}, {v(WF+(tt*3+c)*4,4)}, {v(QB+c*4,4)}, {src}")
        nop(a, 8)
        softmax_dual(a, P, base, OUT, QB)
        l1 = a.newlabel("K1_ak"); l2 = a.newlabel("K1_ae")
        a(f"s_cmp_eq_u32 s{S_CG}, 0")
        a(f"s_cbranch_scc0 {l1}")
        for k in range(5):
            a(f"buffer_store_dwordx4 {v(OUT+4*k,4)}, v{t+2 if rt == 0 else t+7}, s[{S_WS}:{S_WS+3}], 0 offen offset:{256*k}{SC()}")
        a(f"s_branch {l2}")
        a.label(l1)
        for k in range(5):
            a(f"ds_write_b128 v{t+3}, {v(OUT+4*k,4)} offset:{PKO + rt*1280 + 16*k}")
        a.label(l2)
        nop(a, 2)
        stamp(a)
    a("s_waitcnt lgkmcnt(0)")
    a("s_barrier")
    a(f"v_and_b32 v{t}, 3, v{V_LANE}")
    a(f"v_bfe_u32 v{t+1}, v{V_LANE}, 2, 2")
    a(f"v_lshl_add_u32 v{t+1}, v{V_GRP}, 3, v{t+1}")
    a(f"v_mul_u32_u24 v{t+2}, 80, v{t+1}")
    a(f"v_lshl_add_u32 v{t+2}, v{t}, 3, v{t+2}")
    a(f"s_mul_i32 s{S_T}, s{S_RG}, 10240")
    a(f"v_add_u32 v{t+2}, s{S_T}, v{t+2}")
    a(f"v_mul_u32_u24 v{t+3}, 48, v{t+1}")
    a(f"v_lshl_add_u32 v{t+3}, v{t}, 3, v{t+3}")
    a(f"s_mul_i32 s{S_T}, s{S_RG}, 6144")
    a(f"s_add_u32 s{S_T}, s{S_T}, {VO}")
    a(f"v_add_u32 v{t+3}, s{S_T}, v{t+3}")
    a(f"s_lshl_b32 s{S_T}, s{S_I}, 5")
    a(f"s_lshl_b32 s{S_T+1}, s{S_J}, 2")
    a(f"s_add_u32 s{S_T}, s{S_T}, s{S_T+1}")
    a(f"s_add_u32 s{S_T}, s{S_T}, s{S_RG}")
    a(f"s_mul_i32 s{S_T}, s{S_T}, 6144")
    a(f"s_add_u32 s{S_T}, s{S_T}, {WS_PART}")
    a(f"v_and_b32 v{t}, 15, v{V_LANE}")
    a(f"v_mul_u32_u24 v{t}, 192, v{t}")
    a(f"v_lshl_add_u32 v{t}, v{V_GRP}, 4, v{t}")
    a(f"v_add_u32 v{t}, s{S_T}, v{t}")
    AF = 76; BF = 124; KV = 172; AD = 184
    for y in range(3):
        a(f"s_mul_i32 s{S_T}, s{S_CG}, 3")
        a(f"s_add_u32 s{S_T}, s{S_T}, {y}")
        a(f"s_lshr_b32 s{S_T+1}, s{S_T}, 1")
        a(f"s_and_b32 s{S_T+2}, s{S_T}, 1")
        a(f"s_lshl_b32 s{S_T+3}, s{S_T+1}, 5")
        a(f"v_add_u32 v{AD+y}, s{S_T+3}, v{t+2}")
        a(f"s_lshl_b32 s{S_T+3}, s{S_T+2}, 5")
        a(f"v_add_u32 v{AD+3+y}, s{S_T+3}, v{t+3}")
        a(f"s_lshl_b32 s{S_T+3}, s{S_T+1}, 6")
        a(f"s_mul_i32 s{S_T+4}, s{S_T+2}, {16*192}")
        a(f"s_add_u32 s{S_T+3}, s{S_T+3}, s{S_T+4}")
        a(f"v_add_u32 v{AD+6+y}, s{S_T+3}, v{t}")
    for ks in range(4):
        for y in range(3):
            for qq in range(2):
                a(f"ds_read_b64_tr_b16 {v(AF+(y*4+ks)*4+2*qq,2)}, v{AD+y} offset:{(32*ks+4*qq)*80}")
                a(f"ds_read_b64_tr_b16 {v(BF+(y*4+ks)*4+2*qq,2)}, v{AD+3+y} offset:{(32*ks+4*qq)*48}")
        a("s_waitcnt lgkmcnt(0)")
    for ks in range(4):
        for y in range(3):
            d = KV + y * 4
            src = "0" if ks == 0 else v(d, 4)
            a(f"v_mfma_f32_16x16x32_bf16 {v(d,4)}, {v(AF+(y*4+ks)*4,4)}, {v(BF+(y*4+ks)*4,4)}, {src}")
    nop(a, 8)
    for y in range(3):
        a(f"buffer_store_dwordx4 {v(KV+y*4,4)}, v{AD+6+y}, s[{S_WS}:{S_WS+3}], 0 offen{SC()}")

QROW = 272
LQ = 0
LK = 128 * QROW
LV = LK + 144 * QROW

def gen_gate(a):
    t = V_T0
    a(f"s_cmp_ge_u32 s{S_WAVE}, 4")
    a("s_cbranch_scc1 K1_gdone")
    if GATE_IN_A:
        a(f"s_load_dwordx2 s[{S_PTR}:{S_PTR+1}], s[0:1], 56")
        a("s_waitcnt lgkmcnt(0)")
        srd(a, S_AUX, S_PTR, 1280)
    a(f"s_lshl_b32 s{S_T}, s{S_I}, 7")
    a(f"s_lshl_b32 s{S_T+1}, s{S_J}, 4")
    a(f"s_add_u32 s{S_T}, s{S_T}, s{S_T+1}")
    a(f"s_lshl_b32 s{S_T+1}, s{S_WAVE}, 2")
    a(f"s_add_u32 s{S_T}, s{S_T}, s{S_T+1}")
    a(f"v_add_u32 v{t}, s{S_T}, v{V_GRP}")
    a(f"v_and_b32 v{t+1}, 15, v{V_LANE}")
    a(f"v_mul_u32_u24 v{t+1}, 80, v{t+1}")
    a(f"v_mul_u32_u24 v{t+2}, 1280, v{t}")
    a(f"v_add_u32 v{t+2}, v{t+2}, v{t+1}")
    GX, GW = 188, 208
    for k in range(5):
        a(f"buffer_load_dwordx4 {v(GX+4*k,4)}, v{t+2}, s[{S_X}:{S_X+3}], 0 offen offset:{16*k}")
        a(f"buffer_load_dwordx4 {v(GW+4*k,4)}, v{t+1}, s[{S_AUX}:{S_AUX+3}], 0 offen offset:{16*k}")
    a("s_waitcnt vmcnt(0)")
    G0 = 28
    a(f"v_mov_b32 v{G0}, 0")
    a(f"v_mov_b32 v{G0+1}, 0")
    for i in range(20):
        a(f"v_lshlrev_b32 v{G0+2}, 16, v{GX+i}")
        a(f"v_and_b32 v{G0+3}, 0xffff0000, v{GX+i}")
        a(f"v_lshlrev_b32 v{G0+4}, 16, v{GW+i}")
        a(f"v_and_b32 v{G0+5}, 0xffff0000, v{GW+i}")
        a(f"v_mul_f32 v{G0+2}, v{G0+2}, v{G0+4}")
        a(f"v_mul_f32 v{G0+3}, v{G0+3}, v{G0+5}")
        a(f"v_cvt_pk_bf16_f32 v{G0+2}, v{G0+2}, v{G0+3}")
        a(f"v_lshlrev_b32 v{G0+3}, 16, v{G0+2}")
        a(f"v_and_b32 v{G0+2}, 0xffff0000, v{G0+2}")
        a(f"v_add_f32 v{G0}, v{G0}, v{G0+3}")
        a(f"v_add_f32 v{G0+1}, v{G0+1}, v{G0+2}")
    a(f"v_add_f32 v{G0}, v{G0}, v{G0+1}")
    for x in (1, 2, 4, 8):
        a(f"ds_swizzle_b32 v{G0+1}, v{G0} offset:{(x << 10) | 0x1f}")
        a("s_waitcnt lgkmcnt(0)")
        a(f"v_add_f32 v{G0}, v{G0}, v{G0+1}")
    a(f"v_cvt_pk_bf16_f32 v{G0}, v{G0}, v{G0}")
    a(f"v_lshlrev_b32 v{G0}, 16, v{G0}")
    a(f"v_mul_f32 v{G0}, s{S_NL}, v{G0}")
    a(f"v_exp_f32 v{G0}, v{G0}")
    a("s_nop 0")
    a(f"v_add_f32 v{G0}, 1.0, v{G0}")
    a(f"v_rcp_f32 v{G0}, v{G0}")
    a("s_nop 0")
    a(f"v_cvt_pk_bf16_f32 v{G0}, v{G0}, v{G0}")
    a(f"v_lshlrev_b32 v{G0}, 16, v{G0}")
    a(f"v_lshlrev_b32 v{t}, 2, v{t}")
    a(f"v_add_u32 v{t}, {WS_G}, v{t}")
    a(f"v_and_b32 v{t+1}, 15, v{V_LANE}")
    a(f"v_cmp_eq_u32 vcc, 0, v{t+1}")
    a(f"s_and_saveexec_b64 s[{S_T+2}:{S_T+3}], vcc")
    a(f"buffer_store_dword v{G0}, v{t}, s[{S_WS}:{S_WS+3}], 0 offen{SC()}")
    a(f"s_mov_b64 exec, s[{S_T+2}:{S_T+3}]")
    a.label("K1_gdone")

def gen_epilogue_B(a):
    t = V_T0
    a("s_barrier")
    a(f"v_and_b32 v{t}, 15, v{V_LANE}")
    a(f"v_mul_u32_u24 v{t+1}, {QROW}, v{t}")
    a(f"v_lshl_add_u32 v{t+1}, v{V_GRP}, 6, v{t+1}")
    a(f"s_mul_i32 s{S_T}, s{S_RG}, {32*QROW}")
    a(f"s_mul_i32 s{S_T+1}, s{S_CG}, {LK + 16*QROW}")
    a(f"s_add_u32 s{S_T+1}, s{S_T+1}, s{S_T}")
    a(f"v_add_u32 v{t+2}, s{S_T+1}, v{t+1}")
    a(f"s_mul_i32 s{S_T+1}, s{S_CG}, 24")
    a(f"s_add_u32 s{S_T+1}, s{S_T+1}, s{S_T}")
    a(f"s_add_u32 s{S_T+1}, s{S_T+1}, {LV + 16*QROW}")
    a(f"v_add_u32 v{t+3}, s{S_T+1}, v{t+1}")
    PB = 28
    for i in range(10, 16):
        a(f"v_mov_b32 v{PB+i}, 0")
    for rt in range(2):
        base = acc(rt, 0)
        for i in range(10):
            a(f"v_cvt_pk_bf16_f32 v{PB+i}, v{base+2*i}, v{base+2*i+1}")
        for k in range(4):
            a(f"ds_write_b128 v{t+2}, {v(PB+4*k,4)} offset:{rt*16*QROW+16*k}")
        base = acc(rt, 5)
        for i in range(6):
            a(f"v_cvt_pk_bf16_f32 v{PB+16+i}, v{base+2*i}, v{base+2*i+1}")
        for k in range(3):
            a(f"ds_write_b64 v{t+3}, {v(PB+16+2*k,2)} offset:{rt*16*QROW+8*k}")
        nop(a, 2)
    for k in range(3):
        a(f"ds_write_b64 v{t+1}, {v(PB+10,2)} offset:{LK + 40 + 8*k}")
    for h in range(2):
        a(f"s_add_u32 s{S_T}, s{S_WAVE}, {8*h}")
        a(f"s_cmp_ge_u32 s{S_T}, 10")
        a(f"s_cselect_b32 s{S_T}, s{S_WAVE}, s{S_T}")
        a(f"s_cmp_ge_u32 s{S_T}, 5")
        a(f"s_mov_b32 s{S_T+2}, {LK}")
        a(f"s_cselect_b32 s{S_T+1}, {LV-40}, s{S_T+2}")
        a(f"s_lshl_b32 s{S_T}, s{S_T}, 3")
        a(f"s_add_u32 s{S_T}, s{S_T}, s{S_T+1}")
        a(f"v_add_u32 v{t+4}, s{S_T}, v{t+1}")
        a(f"v_cvt_pk_bf16_f32 v{PB}, v{V_HACC+4*h}, v{V_HACC+4*h+1}")
        a(f"v_cvt_pk_bf16_f32 v{PB+1}, v{V_HACC+4*h+2}, v{V_HACC+4*h+3}")
        a(f"ds_write_b64 v{t+4}, {v(PB,2)}")
        nop(a, 2)
    a(f"v_lshlrev_b32 v{t+3}, 2, v{V_GRP}")
    a(f"v_sub_u32 v{t+3}, v{t}, v{t+3}")
    for r in range(4):
        a(f"v_sub_u32 v{t+4}, {r-2}, v{t+3}")
        a(f"v_and_b32 v{t+4}, 0x80000001, v{t+4}")
        a(f"v_cmp_eq_u32 s[{S_MASK+2*r}:{S_MASK+2*r+1}], 0, v{t+4}")
        a(f"v_subrev_u32 v{t+4}, {r}, v{t+3}")
        a(f"v_and_b32 v{t+4}, 0x80000001, v{t+4}")
        a(f"v_cmp_eq_u32 s[{S_MASK+8+2*r}:{S_MASK+8+2*r+1}], 0, v{t+4}")
    a(f"s_or_b32 s{S_T}, s{S_I}, s{S_WAVE}")
    a(f"s_cmp_eq_u32 s{S_T}, 0")
    for r in range(4):
        a(f"s_cselect_b64 s[{S_MASK+2*r}:{S_MASK+2*r+1}], 0, s[{S_MASK+2*r}:{S_MASK+2*r+1}]")
    a(f"v_mul_u32_u24 v{t+1}, {QROW}, v{t}")
    a(f"v_lshl_add_u32 v{t+1}, v{V_GRP}, 4, v{t+1}")
    a(f"s_mul_i32 s{S_T}, s{S_WAVE}, {16*QROW}")
    a(f"v_add_u32 v{t+1}, s{S_T}, v{t+1}")
    a(f"v_add_u32 v{t+2}, {LK}, v{t+1}")
    a(f"v_lshrrev_b32 v{t+3}, 2, v{V_LANE}")
    a(f"v_mul_u32_u24 v{t+3}, {QROW}, v{t+3}")
    a(f"v_and_b32 v{t+4}, 3, v{V_LANE}")
    a(f"v_lshl_add_u32 v{t+3}, v{t+4}, 3, v{t+3}")
    a(f"v_add_u32 v{t+3}, s{S_T}, v{t+3}")
    a(f"v_add_u32 v{t+3}, {LV}, v{t+3}")
    a(f"s_mov_b32 s{S_T+4}, 0x3e64f92e")
    a(f"s_mov_b32 s{S_T+5}, 0xff000000")
    OA = 232
    a(f"s_lshl_b32 s{S_T}, s{S_I}, 3")
    a(f"s_add_u32 s{S_T}, s{S_T}, s{S_WAVE}")
    a(f"s_mul_i32 s{S_T}, s{S_T}, 20480")
    a(f"s_add_u32 s{S_T}, s{S_T}, {WS_OB}")
    a(f"s_mul_i32 s{S_T+1}, s{S_J}, 80")
    a(f"v_lshlrev_b32 v{t+4}, 2, v{V_GRP}")
    a(f"v_add_u32 v{t+4}, s{S_T+1}, v{t+4}")
    a(f"v_lshlrev_b32 v{t+5}, 4, v{t}")
    a(f"v_add_u32 v{t+5}, s{S_T}, v{t+5}")
    for h in range(4):
        for td in range(2):
            o = OA + h * 2 + td
            a(f"v_add_u32 v{t+6}, {20*h+16*td}, v{t+4}")
            a(f"v_lshrrev_b32 v{t+7}, 5, v{t+6}")
            a(f"v_lshl_add_u32 v{o}, v{t+7}, 10, v{t+5}")
            a(f"v_bfe_u32 v{t+7}, v{t+6}, 3, 2")
            a(f"v_lshl_add_u32 v{o}, v{t+7}, 8, v{o}")
            a(f"v_bfe_u32 v{t+7}, v{t+6}, 2, 1")
            a(f"v_lshl_add_u32 v{o}, v{t+7}, 3, v{o}")
    a("s_waitcnt lgkmcnt(0)")
    stamp(a)
    a("s_barrier")
    RB = 76
    for h in range(4):
        R = RB + h * 28
        QF, KA, KB_, VF = R, R + 4, R + 8, R + 12
        a(f"ds_read_b128 {v(QF,4)}, v{t+1} offset:{LQ + h*64}")
        a(f"ds_read_b128 {v(KA,4)}, v{t+2} offset:{h*64}")
        a(f"ds_read_b128 {v(KB_,4)}, v{t+2} offset:{16*QROW + h*64}")
        for td in range(2):
            a(f"ds_read_b64_tr_b16 {v(VF+4*td,2)}, v{t+3} offset:{h*64 + 32*td}")
            a(f"ds_read_b64_tr_b16 {v(VF+4*td+2,2)}, v{t+3} offset:{16*QROW + h*64 + 32*td}")
        if h == 1:
            a("s_waitcnt lgkmcnt(0)")
    a("s_waitcnt lgkmcnt(0)")
    for h in range(4):
        R = RB + h * 28
        QF, KA, KB_, VF = R, R + 4, R + 8, R + 12
        SA, SB = R + 20, R + 24
        a(f"v_mfma_f32_16x16x32_bf16 {v(SA,4)}, {v(KA,4)}, {v(QF,4)}, 0")
        a(f"v_mfma_f32_16x16x32_bf16 {v(SB,4)}, {v(KB_,4)}, {v(QF,4)}, 0")
    nop(a, 8)
    stamp(a)
    TT = 28
    for h in range(4):
        R = RB + h * 28
        QF, KA, KB_, VF = R, R + 4, R + 8, R + 12
        S = R + 20
        T8 = TT
        for i in range(4):
            a(f"v_cvt_pk_bf16_f32 v{T8+i}, v{S+2*i}, v{S+2*i+1}")
        for i in range(4):
            a(f"v_lshlrev_b32 v{S+2*i}, 16, v{T8+i}")
            a(f"v_and_b32 v{S+2*i+1}, 0xffff0000, v{T8+i}")
        for i in range(8):
            a(f"v_mul_f32 v{S+i}, s{S_T+4}, v{S+i}")
        for i in range(4):
            a(f"v_cvt_pk_bf16_f32 v{T8+i}, v{S+2*i}, v{S+2*i+1}")
        for i in range(4):
            a(f"v_lshlrev_b32 v{S+2*i}, 16, v{T8+i}")
            a(f"v_and_b32 v{S+2*i+1}, 0xffff0000, v{T8+i}")
        a(f"v_mov_b32 v{T8+4}, s{S_T+5}")
        for i in range(8):
            mk = S_MASK + 2 * i
            a(f"v_cndmask_b32 v{S+i}, v{T8+4}, v{S+i}, s[{mk}:{mk+1}]")
        m = T8 + 5
        a(f"v_max3_f32 v{m}, v{S}, v{S+1}, v{S+2}")
        a(f"v_max3_f32 v{m}, v{m}, v{S+3}, v{S+4}")
        a(f"v_max3_f32 v{m}, v{m}, v{S+5}, v{S+6}")
        a(f"v_max_f32 v{m}, v{m}, v{S+7}")
        a(f"v_mov_b32 v{m+1}, v{m}")
        nop(a, 2)
        a(f"v_permlane16_swap_b32 v{m}, v{m+1}")
        nop(a, 2)
        a(f"v_max_f32 v{m}, v{m}, v{m+1}")
        a(f"v_mov_b32 v{m+1}, v{m}")
        nop(a, 2)
        a(f"v_permlane32_swap_b32 v{m}, v{m+1}")
        nop(a, 2)
        a(f"v_max_f32 v{m}, v{m}, v{m+1}")
        a(f"v_mul_f32 v{m}, s{S_NL}, v{m}")
        for i in range(8):
            a(f"v_fma_f32 v{S+i}, v{S+i}, s{S_L}, v{m}")
        for i in range(8):
            a(f"v_exp_f32 v{S+i}, v{S+i}")
        a("s_nop 0")
        sm = T8 + 5
        a(f"v_add_f32 v{sm}, v{S}, v{S+1}")
        a(f"v_add_f32 v{sm+1}, v{S+2}, v{S+3}")
        a(f"v_add_f32 v{sm}, v{sm}, v{S+4}")
        a(f"v_add_f32 v{sm+1}, v{sm+1}, v{S+5}")
        a(f"v_add_f32 v{sm}, v{sm}, v{S+6}")
        a(f"v_add_f32 v{sm+1}, v{sm+1}, v{S+7}")
        a(f"v_add_f32 v{sm}, v{sm}, v{sm+1}")
        a(f"v_mov_b32 v{sm+1}, v{sm}")
        nop(a, 2)
        a(f"v_permlane16_swap_b32 v{sm}, v{sm+1}")
        nop(a, 2)
        a(f"v_add_f32 v{sm}, v{sm}, v{sm+1}")
        a(f"v_mov_b32 v{sm+1}, v{sm}")
        nop(a, 2)
        a(f"v_permlane32_swap_b32 v{sm}, v{sm+1}")
        nop(a, 2)
        a(f"v_add_f32 v{sm}, v{sm}, v{sm+1}")
        a(f"v_rcp_f32 v{sm}, v{sm}")
        a("s_nop 0")
        for i in range(8):
            a(f"v_mul_f32 v{S+i}, v{S+i}, v{sm}")
        for i in range(4):
            a(f"v_cvt_pk_bf16_f32 v{QF+i}, v{S+2*i}, v{S+2*i+1}")
        nop(a, 2)
        for td in range(2):
            a(f"v_mfma_f32_16x16x32_bf16 {v(S+4*td,4)}, {v(VF+4*td,4)}, {v(QF,4)}, 0")
    nop(a, 8)
    for h in range(4):
        R = RB + h * 28
        S = R + 20
        for i in range(4):
            a(f"v_cvt_pk_bf16_f32 v{R+i}, v{S+2*i}, v{S+2*i+1}")
        a(f"buffer_store_dwordx2 {v(R,2)}, v{OA+2*h}, s[{S_WS}:{S_WS+3}], 0 offen{SC()}")
    a("s_mov_b64 exec, 0xffff")
    for h in range(4):
        R = RB + h * 28
        a(f"buffer_store_dwordx2 {v(R+2,2)}, v{OA+2*h+1}, s[{S_WS}:{S_WS+3}], 0 offen{SC()}")
    a("s_mov_b64 exec, -1")
    if not GATE_IN_A:
        gen_gate(a)

def gen_wo_prefetch(a, lab):
    if not MEGA: return
    t = V_X + 8
    a(f"s_cmp_ge_u32 s{S_WAVE}, 5")
    a(f"s_cbranch_scc1 {lab}")
    a(f"s_load_dwordx2 s[{S_PTR}:{S_PTR+1}], s[0:1], 24")
    a(f"s_load_dwordx2 s[{S_PTR+2}:{S_PTR+3}], s[0:1], 48")
    a(f"s_lshr_b32 s{S_T}, s2, 3")
    a(f"s_and_b32 s{S_T+1}, s{S_T}, 3")
    a(f"s_lshr_b32 s{S_T}, s{S_T}, 2")
    a(f"s_mul_i32 s{S_T}, s{S_T}, 160")
    a(f"s_and_b32 s{S_T}, s{S_T}, 0xffffff80")
    a(f"s_mul_i32 s{S_T+1}, s{S_T+1}, 160")
    a(f"s_lshl_b32 s{S_T+2}, s{S_WAVE}, 5")
    a(f"s_add_u32 s{S_T+1}, s{S_T+1}, s{S_T+2}")
    a(f"s_mul_i32 s{S_T+1}, s{S_T+1}, 1280")
    a(f"s_add_u32 s{S_T}, s{S_T}, s{S_T+1}")
    a(f"v_lshrrev_b32 v{t}, 1, v{V_LANE}")
    a(f"v_mul_u32_u24 v{t}, 1280, v{t}")
    a(f"v_and_b32 v{t+1}, 1, v{V_LANE}")
    a(f"v_lshl_add_u32 v{t}, v{t+1}, 7, v{t}")
    a(f"v_add_u32 v{t}, s{S_T}, v{t}")
    a("s_waitcnt lgkmcnt(0)")
    srd(a, S_MASK, S_PTR, 640 * 1280)
    srd(a, S_MASK + 4, S_PTR + 2, 640 * 1280)
    a(f"buffer_load_dword v{V_X}, v{t}, s[{S_MASK}:{S_MASK+3}], 0 offen")
    a(f"buffer_load_dword v{V_X+1}, v{t}, s[{S_MASK+4}:{S_MASK+7}], 0 offen")
    a(f"buffer_load_dword v{V_X+2}, v{t}, s[{S_MASK}:{S_MASK+3}], 0 offen offset:640")
    a(f"buffer_load_dword v{V_X+3}, v{t}, s[{S_MASK+4}:{S_MASK+7}], 0 offen offset:640")
    a.label(lab)

def fl1_addr(a):
    a(f"s_add_u32 s{S_T+1}, s{S_I}, 8")
    a(f"s_cmp_eq_u32 s{S_BR}, 0")
    a(f"s_cselect_b32 s{S_T}, s{S_J}, s{S_T+1}")
    a(f"s_cselect_b32 s{S_T+1}, s{S_I}, s{S_J}")
    a(f"s_lshl_b32 s{S_T}, s{S_T}, 7")
    a(f"s_lshl_b32 s{S_T+1}, s{S_T+1}, 2")
    a(f"s_add_u32 s{S_T}, s{S_T}, s{S_T+1}")
    a(f"s_add_u32 s{S_T}, s{S_T}, {WS_FL + 0x1000}")

def gen_started(a, lab):
    if not MEGA: return
    a(f"s_cmp_lg_u32 s{S_WAVE}, 7")
    a(f"s_cbranch_scc1 {lab}")
    a(f"s_load_dwordx2 s[{S_PTR}:{S_PTR+1}], s[0:1], 72")
    a("s_waitcnt lgkmcnt(0)")
    srd(a, S_PTR + 4, S_PTR, 256)
    a(f"v_mov_b32 v2, 0")
    a(f"v_mov_b32 v3, 1")
    a("s_mov_b64 exec, 1")
    a(f"buffer_atomic_add v3, v2, s[{S_PTR+4}:{S_PTR+7}], 0 offen sc1")
    a("s_mov_b64 exec, -1")
    a.label(lab)

def gen_signal(a, idx_sreg, base, lab):
    a("s_waitcnt vmcnt(0) lgkmcnt(0)")
    a("s_barrier")
    a(f"s_cmp_lg_u32 s{S_WAVE}, 0")
    a(f"s_cbranch_scc1 {lab}")
    fl1_addr(a)
    a(f"v_mov_b32 v2, s{S_T}")
    a(f"v_mov_b32 v3, 1")
    a("s_mov_b64 exec, 1")
    a(f"buffer_store_dword v3, v2, s[{S_WS}:{S_WS+3}], 0 offen sc1")
    a("s_mov_b64 exec, -1")
    a.label(lab)

def gen_k1(a, name="k1_kernel", tail=None):
    kernel_header(a, name)
    NST[0] = 0
    stamp(a)
    if START_RT:
        a("s_memrealtime s[100:101]")
    gen_prologue(a)
    if MEGA:
        a(f"s_cmp_lg_u32 s{S_WAVE}, 7")
        a("s_cbranch_scc1 K1_fc")
        a(f"s_lshl_b32 s{S_T}, s2, 2")
        a(f"s_add_u32 s{S_T}, s{S_T}, {WS_FL}")
        a(f"v_mov_b32 v2, s{S_T}")
        a(f"v_mov_b32 v3, 0")
        a("s_mov_b64 exec, 1")
        a(f"buffer_store_dword v3, v2, s[{S_WS}:{S_WS+3}], 0 offen sc1")
        fl1_addr(a)
        a(f"v_mov_b32 v2, s{S_T}")
        a(f"buffer_store_dword v3, v2, s[{S_WS}:{S_WS+3}], 0 offen sc1")
        a("s_mov_b64 exec, -1")
        a.label("K1_fc")
    a(f"s_cmp_eq_u32 s{S_BR}, 0")
    a("s_cbranch_scc0 K1_B")
    gen_wphi_issue(a)
    gen_mainloop(a, halo=False, pre_hook=lambda: gen_wphi_stage(a))
    stamp(a)
    gen_started(a, "K1_stA")
    gen_epilogue_A(a)
    if GATE_IN_A:
        gen_gate(a)
    stamp_flush(a)
    if MEGA:
        gen_signal(a, S_J, 0, "K1_sA")
        a("s_branch K1_tail")
    else:
        a("s_endpgm")
    a.label("K1_B")
    NST[0] = 1
    gen_mainloop(a, halo=True)
    stamp(a)
    gen_started(a, "K1_stB")
    gen_epilogue_B(a)
    stamp_flush(a)
    if MEGA:
        gen_signal(a, S_I, 32, "K1_sB")
        a.label("K1_tail")
        tail(a)
    a.label("K1_done")
    a("s_endpgm")
    return name
```

```python
from common import *
from k2 import VM, nop

WS_OA = 0x1800000

V_LANE = 1; V_T = 2; V_GRP = 10; V_WB = 11; V_OB0 = 12; V_OB1 = 13; V_G = 14
V_OA0 = 16; V_OA1 = 17
V_DMA = 18
V_RING = 24
V_OBF = 48
V_OAF = 88
V_ACCB = 128
V_ACCA = 168
V_P = 88
S_W = 4; S_WS = 12; S_OUT = 16; S_DBG = 20
S_I = 24; S_JC = 25; S_WAVE = 26; S_RH = 27; S_KQ = 28; S_ROT = 29; S_T = 30; S_SOFF = 38; S_PTR = 40
S_WA = 52; S_WB_ = 56; S_H = 60; S_RB = 61; S_E = 62
K4_LDS = 163840
LKV = 31 * 5120
RING = 6; D = 5
STAMPS = False
S_ST = 64
NST = [0]
RT = False
def stamp(a):
    if STAMPS:
        k = NST[0]; NST[0] += 1
        a(f"{'s_memrealtime' if RT else 's_memtime'} s[{S_ST+2*k}:{S_ST+2*k+1}]")
def stamp_flush(a):
    if STAMPS:
        n = NST[0]
        a("s_waitcnt lgkmcnt(0) vmcnt(0)")
        a(f"{'s_memrealtime' if RT else 's_memtime'} s[{S_ST+2*n}:{S_ST+2*n+1}]")
        a("s_waitcnt lgkmcnt(0)")
        a(f"s_mov_b32 s{S_ST+2*n+2}, s100")
        n += 1
        a(f"s_lshl_b32 s{S_T}, s2, 3")
        a(f"s_add_u32 s{S_T}, s{S_T}, s{S_WAVE}")
        a(f"s_lshl_b32 s{S_T}, s{S_T}, 6")
        a(f"s_add_u32 s{S_T}, s{S_T}, {WS_DBG + 0x100000}")
        a(f"v_mov_b32 v2, s{S_T}")
        a("s_mov_b64 exec, 1")
        for k in range(n + 1):
            a(f"v_mov_b32 v3, s{S_ST+2*k}")
            a(f"buffer_store_dword v3, v2, s[{S_WS}:{S_WS+3}], 0 offen offset:{4*k}")
            a("s_nop 1")
        a("s_mov_b64 exec, -1")

def slotA(ks):
    return 20 + ks if ks < 11 else ks - 11

def gen_k4(a, standalone=True):
    name = "k4_kernel"
    if standalone:
        kernel_header(a, name)
    vm = VM(a)
    t = V_T
    NST[0] = 0
    stamp(a)
    if standalone:
        a("s_cmp_ge_u32 s2, 256")
        a("s_cbranch_scc1 K4_done")
    a(f"s_load_dwordx2 s[{S_PTR}:{S_PTR+1}], s[0:1], 24")
    a(f"s_load_dwordx2 s[{S_PTR+2}:{S_PTR+3}], s[0:1], 48")
    a(f"s_load_dwordx4 s[{S_PTR+4}:{S_PTR+7}], s[0:1], 64")
    a(f"s_load_dwordx2 s[{S_PTR+8}:{S_PTR+9}], s[0:1], 80")
    a(f"s_and_b32 s{S_E}, s2, 7")
    a(f"s_lshr_b32 s{S_T+1}, s2, 3")
    a(f"s_lshl_b32 s{S_I}, s{S_E}, 2")
    a(f"s_and_b32 s{S_ROT}, s{S_T+1}, 3")
    a(f"s_add_u32 s{S_I}, s{S_I}, s{S_ROT}")
    a(f"s_lshr_b32 s{S_JC}, s{S_T+1}, 2")
    a(f"s_and_b32 s{S_H}, s2, 31")
    a(f"s_lshr_b32 s{S_RB}, s2, 5")
    a(f"v_lshrrev_b32 v{t}, 6, v0")
    a(f"v_and_b32 v{V_LANE}, 63, v0")
    a(f"v_readfirstlane_b32 s{S_WAVE}, v{t}")
    a(f"v_lshrrev_b32 v{V_GRP}, 4, v{V_LANE}")
    a(f"v_mul_u32_u24 v{t}, 6554, v0")
    a(f"v_lshrrev_b32 v{t}, 16, v{t}")
    a(f"v_mul_u32_u24 v{t+1}, 10, v{t}")
    a(f"v_sub_u32 v{t+1}, v0, v{t+1}")
    a(f"v_mul_u32_u24 v{t+2}, 192, v{t}")
    a(f"v_lshl_add_u32 v{t+2}, v{t+1}, 4, v{t+2}")
    a(f"v_mul_u32_u24 v{t+3}, 80, v{t}")
    a(f"v_lshl_add_u32 v{t+3}, v{t+1}, 3, v{t+3}")
    a(f"v_add_u32 v{t+3}, {LKV}, v{t+3}")
    a(f"s_mul_i32 s{S_T}, s{S_H}, 6144")
    a(f"s_add_u32 s{S_T}, s{S_T}, {WS_PART}")
    a(f"v_add_u32 v{t+2}, s{S_T}, v{t+2}")
    a(f"s_and_b32 s{S_RH}, s{S_WAVE}, 3")
    a(f"s_lshr_b32 s{S_KQ}, s{S_WAVE}, 2")
    a("s_waitcnt lgkmcnt(0)")
    srd(a, S_WS, S_PTR + 8, WS_SIZE)
    SC = " sc1" if not standalone else ""
    a(f"s_mul_i32 s{S_T+1}, s{S_JC}, 160")
    a(f"s_mov_b32 s{S_T+2}, 6554")
    R0 = V_RING
    for n in range(5):
        a(f"v_add_u32 v{R0}, {n*64}, v{V_LANE}")
        a(f"v_mul_u32_u24 v{R0+1}, s{S_T+2}, v{R0}")
        a(f"v_lshrrev_b32 v{R0+1}, 16, v{R0+1}")
        a(f"v_mul_u32_u24 v{R0+2}, 10, v{R0+1}")
        a(f"v_sub_u32 v{R0+2}, v{R0}, v{R0+2}")
        a(f"v_lshlrev_b32 v{R0+2}, 4, v{R0+2}")
        a(f"v_add_u32 v{R0+2}, s{S_T+1}, v{R0+2}")
        a(f"v_bfe_u32 v{R0+3}, v{R0+1}, 4, 1")
        a(f"v_bfe_u32 v{R0+4}, v{R0+1}, 2, 2")
        a(f"v_and_b32 v{R0+5}, 3, v{R0+1}")
        a(f"v_lshl_add_u32 v{R0+5}, v{R0+3}, 2, v{R0+5}")
        a(f"v_lshl_add_u32 v{R0+6}, v{R0+4}, 3, v{R0+5}")
        a(f"v_mul_u32_u24 v{R0+6}, 1280, v{R0+6}")
        a(f"v_add_u32 v{V_DMA+n}, v{R0+6}, v{R0+2}")
    srd(a, S_WA, S_PTR, 640 * 1280)
    srd(a, S_WB_, S_PTR + 2, 640 * 1280)
    srd(a, S_OUT, S_PTR + 4, 2048 * 1280)
    srd(a, S_DBG, S_PTR + 6, 256)
    lbl = [0]
    def wgroup(isA, gi, count=True):
        sr = S_WA if isA else S_WB_
        if isA:
            lo, hi = {0: (0, 7), 1: (7, 11), 2: (11, 18), 3: (18, 20)}[gi]
        else:
            lo, hi = {0: (0, 7), 1: (7, 14), 2: (14, 20)}[gi]
        nb = hi - lo
        lab = None
        if nb < 8:
            lbl[0] += 1; lab = f"K4_w{lbl[0]}"
            a(f"s_cmp_ge_u32 s{S_WAVE}, {nb}")
            a(f"s_cbranch_scc1 {lab}")
        if isA:
            plo, phi = (0, 11) if lo < 11 else (11, 20)
        else:
            plo, phi = 0, 20
        pn = phi - plo
        a(f"s_mul_i32 s{S_T+1}, s{S_ROT}, {pn // 4}")
        a(f"s_add_u32 s{S_T}, s{S_WAVE}, {lo - plo}")
        a(f"s_add_u32 s{S_T}, s{S_T}, s{S_T+1}")
        a(f"s_sub_u32 s{S_T+1}, s{S_T}, {pn}")
        a(f"s_cmp_ge_u32 s{S_T}, {pn}")
        a(f"s_cselect_b32 s{S_T}, s{S_T+1}, s{S_T}")
        a(f"s_add_u32 s{S_T}, s{S_T}, {plo}")
        a(f"s_mul_i32 s{S_SOFF}, s{S_T}, {32*1280}")
        base_slot = (slotA(lo) if isA else lo) - lo
        a(f"s_add_u32 s{S_T}, s{S_T}, {base_slot}" if base_slot >= 0 else f"s_sub_u32 s{S_T}, s{S_T}, {-base_slot}")
        a(f"s_mul_i32 s{S_T+1}, s{S_T}, 5120")
        for n in range(5):
            a(f"s_add_u32 m0, s{S_T+1}, {n*1024}")
            a("s_nop 0")
            a(f"buffer_load_dwordx4 v{V_DMA+n}, s[{sr}:{sr+3}], s{S_SOFF} offen lds")
            if nb == 8:
                vm.issue("WA" if isA else "WB")
        if lab:
            a.label(lab)
    wgroup(False, 0); wgroup(False, 1); wgroup(False, 2)
    wgroup(True, 0); wgroup(True, 1)
    if not standalone:
        a(f"s_cmp_lg_u32 s{S_WAVE}, 7")
        a("s_cbranch_scc1 K4_pp")
        a(f"v_mov_b32 v{V_RING}, 0")
        a(f"s_mov_b32 s{S_T+2}, 0")
        a.label("K4_p0")
        a(f"buffer_load_dword v{V_RING+1}, v{V_RING}, s[{S_DBG}:{S_DBG+3}], 0 offen sc1")
        a("s_waitcnt vmcnt(0)")
        a(f"v_readfirstlane_b32 s{S_T}, v{V_RING+1}")
        a("s_nop 3")
        a(f"s_cmp_ge_u32 s{S_T}, 256")
        a("s_cbranch_scc1 K4_p1")
        a(f"s_add_u32 s{S_T+2}, s{S_T+2}, 1")
        a(f"s_cmp_lt_u32 s{S_T+2}, 0x40000")
        a("s_cbranch_scc0 K4_p1")
        a("s_sleep 2")
        a("s_branch K4_p0")
        a.label("K4_p1")
        a(f"s_lshr_b32 s{S_T}, s{S_H}, 2")
        a(f"s_lshl_b32 s{S_T}, s{S_T}, 7")
        a(f"s_lshr_b32 s{S_T+1}, s{S_I}, 1")
        a(f"s_add_u32 s{S_T+1}, s{S_T+1}, 8")
        a(f"s_lshl_b32 s{S_T+1}, s{S_T+1}, 7")
        a(f"v_and_b32 v{V_RING}, 15, v{V_LANE}")
        a(f"v_lshlrev_b32 v{V_RING}, 2, v{V_RING}")
        a(f"v_add_u32 v{V_RING}, s{S_T}, v{V_RING}")
        a(f"v_and_b32 v{V_RING+2}, 7, v{V_LANE}")
        a(f"v_lshlrev_b32 v{V_RING+2}, 2, v{V_RING+2}")
        a(f"v_add_u32 v{V_RING+2}, s{S_T+1}, v{V_RING+2}")
        a(f"v_cmp_gt_u32 vcc, 32, v{V_LANE}")
        a("s_nop 1")
        a(f"v_cndmask_b32 v{V_RING}, v{V_RING+2}, v{V_RING}, vcc")
        a(f"v_add_u32 v{V_RING}, {0xE00000 + 0x1000}, v{V_RING}")
        a(f"s_mov_b32 s{S_T+2}, 0")
        a.label("K4_pl")
        a(f"buffer_load_dword v{V_RING+1}, v{V_RING}, s[{S_WS}:{S_WS+3}], 0 offen sc1")
        a("s_waitcnt vmcnt(0)")
        a(f"v_cmp_ne_u32 vcc, 1, v{V_RING+1}")
        a("s_nop 3")
        a("s_cmp_eq_u64 vcc, 0")
        a("s_cbranch_scc1 K4_pp")
        a(f"s_add_u32 s{S_T+2}, s{S_T+2}, 1")
        a(f"s_cmp_lt_u32 s{S_T+2}, 0x40000")
        a("s_cbranch_scc0 K4_pp")
        a("s_sleep 2")
        a("s_branch K4_pl")
        a.label("K4_pp")
        a("s_barrier")
        stamp(a)
    PB = V_P
    PQ = V_P + 64
    N = V_P + 80
    a("v_cmp_gt_u32 vcc, 210, v0")
    a(f"s_and_saveexec_b64 s[{S_T+2}:{S_T+3}], vcc")
    a("s_cbranch_execz K4_a")
    for rt in range(16):
        a(f"s_mov_b32 s{S_T+4}, {rt*32*6144}")
        a(f"buffer_load_dwordx4 {v(PB+4*rt,4)}, v{t+2}, s[{S_WS}:{S_WS+3}], s{S_T+4} offen{SC}")
    a.label("K4_a")
    a(f"s_mov_b64 exec, s[{S_T+2}:{S_T+3}]")
    for i in range(2):
        for k in range(4):
            a(f"v_mov_b32 v{PQ+(i*2+1)*4+k}, 0")
    a(f"s_lshl_b32 s{S_T}, s{S_RB}, 4")
    a(f"s_lshl_b32 s{S_T+1}, s{S_WAVE}, 1")
    a(f"s_add_u32 s{S_T}, s{S_T}, s{S_T+1}")
    a(f"s_lshl_b32 s{S_T+1}, s{S_T}, 5")
    a(f"s_add_u32 s{S_T+1}, s{S_T+1}, s{S_H}")
    a(f"s_mul_i32 s{S_T+1}, s{S_T+1}, 1280")
    a(f"s_add_u32 s{S_T+1}, s{S_T+1}, {WS_PHIQ}")
    a(f"v_lshlrev_b32 v{t+4}, 4, v{V_LANE}")
    a(f"v_add_u32 v{t+5}, s{S_T+1}, v{t+4}")
    for i in range(2):
        a(f"s_mov_b32 s{S_T+4}, {i*32*1280}")
        a(f"buffer_load_dwordx4 {v(PQ+(i*2)*4,4)}, v{t+5}, s[{S_WS}:{S_WS+3}], s{S_T+4} offen{SC}")
        vm.issue("PQ")
    a("s_mov_b64 exec, 0xffff")
    for i in range(2):
        a(f"s_mov_b32 s{S_T+4}, {i*32*1280}")
        a(f"buffer_load_dwordx4 {v(PQ+(i*2+1)*4,4)}, v{t+5}, s[{S_WS}:{S_WS+3}], s{S_T+4} offen offset:1024{SC}")
        vm.issue("PQ")
    a("s_mov_b64 exec, -1")
    a(f"s_mul_i32 s{S_T+1}, s{S_T}, 20480")
    a(f"s_add_u32 s{S_T+1}, s{S_T+1}, {WS_OA}")
    a(f"s_mul_i32 s{S_T+4}, s{S_H}, 20")
    a(f"v_and_b32 v{t+5}, 15, v{V_LANE}")
    a(f"v_lshlrev_b32 v{t+5}, 4, v{t+5}")
    a(f"v_add_u32 v{t+5}, s{S_T+1}, v{t+5}")
    a(f"v_lshlrev_b32 v{t+6}, 2, v{V_GRP}")
    a(f"v_add_u32 v{t+6}, s{S_T+4}, v{t+6}")
    for td in range(2):
        o = V_OA0 + td
        a(f"v_add_u32 v{t+7}, {16*td}, v{t+6}")
        a(f"v_lshrrev_b32 v{t}, 5, v{t+7}")
        a(f"v_lshl_add_u32 v{o}, v{t}, 10, v{t+5}")
        a(f"v_bfe_u32 v{t}, v{t+7}, 3, 2")
        a(f"v_lshl_add_u32 v{o}, v{t}, 8, v{o}")
        a(f"v_bfe_u32 v{t}, v{t+7}, 2, 1")
        a(f"v_lshl_add_u32 v{o}, v{t}, 3, v{o}")
    a(f"s_lshl_b32 s{S_T}, s{S_I}, 2")
    a(f"s_add_u32 s{S_T}, s{S_T}, s{S_RH}")
    a(f"s_mul_i32 s{S_T+1}, s{S_T}, 20")
    a(f"s_mul_i32 s{S_T+2}, s{S_KQ}, 10")
    a(f"s_add_u32 s{S_T+1}, s{S_T+1}, s{S_T+2}")
    a(f"s_lshl_b32 s{S_T+1}, s{S_T+1}, 10")
    a(f"v_add_u32 v{V_OB0}, s{S_T+1}, v{t+4}")
    def o_loads(dst, base, tag, sc):
        for ks in range(10):
            a(f"s_mov_b32 s{S_SOFF+1}, {base + ks*1024}")
            a(f"buffer_load_dwordx4 {v(dst+ks*4,4)}, v{V_OB0}, s[{S_WS}:{S_WS+3}], s{S_SOFF+1} offen{sc}")
            vm.issue(tag)
    o_loads(V_OBF, WS_OB, "OB", SC)
    def g_loads():
        a(f"s_lshl_b32 s{S_T}, s{S_I}, 6")
        a(f"s_lshl_b32 s{S_T+1}, s{S_RH}, 4")
        a(f"s_add_u32 s{S_T}, s{S_T}, s{S_T+1}")
        a(f"v_and_b32 v{t}, 15, v{V_LANE}")
        a(f"v_add_u32 v{t}, s{S_T}, v{t}")
        a(f"v_mov_b32 v{V_G+1}, v{t}")
        a(f"v_lshlrev_b32 v{t}, 2, v{t}")
        a(f"v_add_u32 v{t}, {WS_G}, v{t}")
        a(f"buffer_load_dword v{V_G}, v{t}, s[{S_WS}:{S_WS+3}], 0 offen{SC}")
    a(f"v_mov_b32 v{t}, 0")
    a(f"v_mov_b32 v{t+1}, 0")
    a(f"v_lshlrev_b32 v{t+7}, 3, v{V_LANE}")
    a(f"v_add_u32 v{t+7}, {LKV + 1680}, v{t+7}")
    a(f"ds_write_b64 v{t+7}, {v(t,2)}")
    a(f"v_and_b32 v{t+5}, 15, v{V_LANE}")
    a(f"v_mul_u32_u24 v{t+6}, 80, v{t+5}")
    a(f"v_lshl_add_u32 v{t}, v{V_GRP}, 4, v{t+6}")
    a(f"v_add_u32 v{t}, {LKV}, v{t}")
    a(f"v_add_u32 v{t+6}, 16, v{t+5}")
    a(f"v_min_u32 v{t+6}, 20, v{t+6}")
    a(f"v_mul_u32_u24 v{t+6}, 80, v{t+6}")
    a(f"v_lshl_add_u32 v{t+1}, v{V_GRP}, 4, v{t+6}")
    a(f"v_add_u32 v{t+1}, {LKV}, v{t+1}")
    stamp(a)
    a("v_cmp_gt_u32 vcc, 210, v0")
    a(f"s_and_saveexec_b64 s[{S_T+2}:{S_T+3}], vcc")
    a("s_cbranch_execz K4_b")
    a(f"s_waitcnt vmcnt({len([x for x in vm.q if x not in ('WB', 'WA')])})")
    for rt in range(1, 16):
        for k in range(4):
            a(f"v_add_f32 v{PB+k}, v{PB+k}, v{PB+4*rt+k}")
    a(f"v_cvt_pk_bf16_f32 v{PB}, v{PB}, v{PB+1}")
    a(f"v_cvt_pk_bf16_f32 v{PB+1}, v{PB+2}, v{PB+3}")
    a(f"ds_write_b64 v{t+3}, {v(PB,2)}")
    a.label("K4_b")
    a(f"s_mov_b64 exec, s[{S_T+2}:{S_T+3}]")
    a("s_waitcnt lgkmcnt(0)")
    a("s_barrier")
    KF = PB
    for tl in range(2):
        for ks in range(2):
            a(f"ds_read_b128 {v(KF+(tl*2+ks)*4,4)}, v{t+tl} offset:{ks*64}")
    a(f"s_mov_b32 s{S_T+7}, 0x358637bd")
    vm.wait("PQ")
    a("s_waitcnt lgkmcnt(0)")
    for i in range(2):
        for tl in range(2):
            a(f"v_mfma_f32_16x16x32_bf16 {v(N+i*8+tl*4,4)}, {v(KF+(tl*2)*4,4)}, {v(PQ+(i*2)*4,4)}, 0")
    for i in range(2):
        for tl in range(2):
            d = N + i * 8 + tl * 4
            a(f"v_mfma_f32_16x16x32_bf16 {v(d,4)}, {v(KF+(tl*2+1)*4,4)}, {v(PQ+(i*2+1)*4,4)}, {v(d,4)}")
    nop(a, 8)
    a(f"v_cmp_gt_u32 vcc, 16, v{V_LANE}")
    T2 = PB + 16
    for i in range(2):
        n0 = N + i * 8
        a(f"v_mov_b32 v{T2+2*i}, v{n0+4}")
        a(f"v_mov_b32 v{T2+2*i+1}, v{n0+4}")
    nop(a, 2)
    for i in range(2):
        a(f"v_permlane16_swap_b32 v{T2+2*i}, v{T2+2*i+1}")
    nop(a, 2)
    for i in range(2):
        n0 = N + i * 8
        dn = T2 + 2 * i
        a(f"v_cndmask_b32 v{dn}, v{n0+4}, v{dn+1}, vcc")
        a(f"v_cvt_pk_bf16_f32 v{dn}, v{dn}, v{dn}")
        a(f"v_lshlrev_b32 v{dn}, 16, v{dn}")
        a(f"v_add_f32 v{dn}, s{S_T+7}, v{dn}")
        a(f"v_cvt_pk_bf16_f32 v{dn}, v{dn}, v{dn}")
        a(f"v_lshlrev_b32 v{dn}, 16, v{dn}")
        a(f"v_rcp_f32 v{dn}, v{dn}")
        for k in range(4):
            a(f"v_cvt_pk_bf16_f32 v{PQ+k}, v{n0+2*k}, v{n0+2*k+1}")
        for k in range(4):
            a(f"v_lshlrev_b32 v{n0+2*k}, 16, v{PQ+k}")
            a(f"v_and_b32 v{n0+2*k+1}, 0xffff0000, v{PQ+k}")
        for k in range(8):
            a(f"v_mul_f32 v{n0+k}, v{n0+k}, v{dn}")
        for k in range(4):
            a(f"v_cvt_pk_bf16_f32 v{n0+k}, v{n0+2*k}, v{n0+2*k+1}")
        a(f"s_mov_b32 s{S_T+4}, {i*20480}")
        a(f"buffer_store_dwordx2 {v(n0,2)}, v{V_OA0}, s[{S_WS}:{S_WS+3}], s{S_T+4} offen sc1")
    a("s_mov_b64 exec, 0xffff")
    for i in range(2):
        n0 = N + i * 8
        a(f"s_mov_b32 s{S_T+4}, {i*20480}")
        a(f"buffer_store_dwordx2 {v(n0+2,2)}, v{V_OA1}, s[{S_WS}:{S_WS+3}], s{S_T+4} offen sc1")
    a("s_mov_b64 exec, -1")
    a("s_waitcnt vmcnt(0)")
    vm.q = []
    a("s_barrier")
    a(f"s_cmp_lg_u32 s{S_WAVE}, 0")
    a("s_cbranch_scc1 K4_sig")
    a(f"s_lshl_b32 s{S_T}, s2, 2")
    a(f"s_add_u32 s{S_T}, s{S_T}, 0xE00000")
    a(f"v_mov_b32 v{t}, s{S_T}")
    a(f"v_mov_b32 v{t+1}, 1")
    a("s_mov_b64 exec, 1")
    a(f"buffer_store_dword v{t+1}, v{t}, s[{S_WS}:{S_WS+3}], 0 offen sc1")
    a("s_mov_b64 exec, -1")
    a.label("K4_sig")
    stamp(a)
    a(f"v_and_b32 v{t}, 3, v{V_LANE}")
    a(f"v_lshrrev_b32 v{t+2}, 2, v{V_LANE}")
    a(f"v_mul_u32_u24 v{t+2}, 160, v{t+2}")
    a(f"v_lshl_add_u32 v{V_WB}, v{t}, 3, v{t+2}")
    def gemm(isA, hooks):
        items = [(b, T) for b in range(10) for T in range(5)]
        n_it = 50
        def reads(Nn):
            b, T = items[Nn]
            slot = V_RING + (Nn % RING) * 4
            if T == 0:
                a(f"s_mul_i32 s{S_T}, s{S_KQ}, 10")
                a(f"s_add_u32 s{S_T}, s{S_T}, {b}")
                if isA:
                    a(f"s_add_u32 s{S_T+1}, s{S_T}, 20")
                    a(f"s_sub_u32 s{S_T+2}, s{S_T}, 11")
                    a(f"s_cmp_lt_u32 s{S_T}, 11")
                    a(f"s_cselect_b32 s{S_T}, s{S_T+1}, s{S_T+2}")
                a(f"s_mul_i32 s{S_T}, s{S_T}, 5120")
                a(f"v_add_u32 v{t+(b%2)}, s{S_T}, v{V_WB}")
            for qq in range(2):
                a(f"ds_read_b64_tr_b16 {v(slot+2*qq,2)}, v{t+(b%2)} offset:{qq*2560 + T*32}")
        for Nn in range(D):
            reads(Nn)
        for Nn in range(n_it):
            if Nn + D < n_it:
                reads(Nn + D)
                a(f"s_waitcnt lgkmcnt({2*D})")
            else:
                a(f"s_waitcnt lgkmcnt({2*(n_it-1-Nn)})")
            b, T = items[Nn]
            slot = V_RING + (Nn % RING) * 4
            acc = (V_ACCA if isA else V_ACCB) + T * 4
            bb = v((V_OAF if isA else V_OBF) + b * 4, 4)
            src = "0" if b == 0 else v(acc, 4)
            a(f"v_mfma_f32_16x16x32_bf16 {v(acc,4)}, {v(slot,4)}, {bb}, {src}")
    gemm(False, {})
    stamp(a)
    a("s_waitcnt lgkmcnt(0)")
    a("s_barrier")
    wgroup(True, 2); wgroup(True, 3)
    a(f"s_cmp_lg_u32 s{S_WAVE}, 7")
    a("s_cbranch_scc1 K4_pd")
    a(f"s_lshl_b32 s{S_T}, s{S_E}, 7")
    a(f"s_add_u32 s{S_T}, s{S_T}, 0xE00000")
    a(f"v_and_b32 v{t+4}, 31, v{V_LANE}")
    a(f"v_lshlrev_b32 v{t+4}, 2, v{t+4}")
    a(f"v_add_u32 v{t+4}, s{S_T}, v{t+4}")
    a(f"s_mov_b32 s{S_T+1}, 0")
    a.label("K4_poll")
    a(f"buffer_load_dword v{t+5}, v{t+4}, s[{S_WS}:{S_WS+3}], 0 offen sc1")
    a("s_waitcnt vmcnt(0)")
    a(f"v_cmp_ne_u32 vcc, 1, v{t+5}")
    a("s_nop 3")
    a("s_cmp_eq_u64 vcc, 0")
    a("s_cbranch_scc1 K4_pd")
    a(f"s_add_u32 s{S_T+1}, s{S_T+1}, 1")
    a(f"s_cmp_lt_u32 s{S_T+1}, 0x40000")
    a("s_cbranch_scc0 K4_pd")
    a("s_sleep 2")
    a("s_branch K4_poll")
    a.label("K4_pd")
    a("s_barrier")
    stamp(a)
    o_loads(V_OAF, WS_OA, "OA", " sc1")
    g_loads()
    a("s_waitcnt vmcnt(0)")
    vm.q = []
    a("s_barrier")
    stamp(a)
    gemm(True, {})
    stamp(a)
    a("s_waitcnt lgkmcnt(0)")
    a("s_barrier")
    nop(a, 8)
    a(f"v_lshlrev_b32 v{t}, 4, v{V_LANE}")
    a(f"s_mul_i32 s{S_T}, s{S_WAVE}, 6144")
    a(f"v_add_u32 v{t+1}, s{S_T}, v{t}")
    a(f"s_xor_b32 s{S_T+1}, s{S_WAVE}, 4")
    a(f"s_mul_i32 s{S_T+1}, s{S_T+1}, 6144")
    a(f"v_add_u32 v{t+2}, s{S_T+1}, v{t}")
    a(f"v_mul_u32_u24 v{t+3}, 1280, v{V_G+1}")
    a(f"v_lshl_add_u32 v{t+3}, v{V_GRP}, 3, v{t+3}")
    a(f"s_mul_i32 s{S_T+3}, s{S_JC}, 160")
    a(f"v_add_u32 v{t+3}, s{S_T+3}, v{t+3}")
    a(f"v_sub_f32 v{t+5}, 1.0, v{V_G}")
    a(f"v_cvt_pk_bf16_f32 v{t+5}, v{t+5}, v{t+5}")
    a(f"v_lshlrev_b32 v{t+5}, 16, v{t+5}")
    X = 48
    a(f"s_cmp_eq_u32 s{S_KQ}, 0")
    a("s_cbranch_scc0 K4_x1")
    for kh in range(2):
        if kh == 1:
            a.label("K4_x1")
        keep = [0, 1, 2] if kh == 0 else [3, 4]
        send = [3, 4] if kh == 0 else [0, 1, 2]
        for y, T in enumerate(send):
            a(f"ds_write_b128 v{t+1}, {v(V_ACCA+T*4,4)} offset:{(2*y)*1024}")
            a(f"ds_write_b128 v{t+1}, {v(V_ACCB+T*4,4)} offset:{(2*y+1)*1024}")
        a("s_waitcnt lgkmcnt(0)")
        a("s_barrier")
        for y, T in enumerate(keep):
            a(f"ds_read_b128 {v(X+y*8,4)}, v{t+2} offset:{(2*y)*1024}")
            a(f"ds_read_b128 {v(X+y*8+4,4)}, v{t+2} offset:{(2*y+1)*1024}")
        a("s_waitcnt lgkmcnt(0)")
        for y, T in enumerate(keep):
            A_ = V_ACCA + T * 4; B_ = V_ACCB + T * 4; Z = X + y * 8
            for k in range(4):
                a(f"v_add_f32 v{A_+k}, v{A_+k}, v{Z+k}")
                a(f"v_add_f32 v{B_+k}, v{B_+k}, v{Z+4+k}")
            a(f"v_cvt_pk_bf16_f32 v{Z}, v{A_}, v{A_+1}")
            a(f"v_cvt_pk_bf16_f32 v{Z+1}, v{A_+2}, v{A_+3}")
            a(f"v_cvt_pk_bf16_f32 v{Z+2}, v{B_}, v{B_+1}")
            a(f"v_cvt_pk_bf16_f32 v{Z+3}, v{B_+2}, v{B_+3}")
            for k in range(2):
                a(f"v_lshlrev_b32 v{A_+2*k}, 16, v{Z+k}")
                a(f"v_and_b32 v{A_+2*k+1}, 0xffff0000, v{Z+k}")
                a(f"v_lshlrev_b32 v{B_+2*k}, 16, v{Z+2+k}")
                a(f"v_and_b32 v{B_+2*k+1}, 0xffff0000, v{Z+2+k}")
            for k in range(4):
                a(f"v_mul_f32 v{A_+k}, v{A_+k}, v{V_G}")
                a(f"v_mul_f32 v{B_+k}, v{B_+k}, v{t+5}")
            a(f"v_cvt_pk_bf16_f32 v{Z}, v{A_}, v{A_+1}")
            a(f"v_cvt_pk_bf16_f32 v{Z+1}, v{A_+2}, v{A_+3}")
            a(f"v_cvt_pk_bf16_f32 v{Z+2}, v{B_}, v{B_+1}")
            a(f"v_cvt_pk_bf16_f32 v{Z+3}, v{B_+2}, v{B_+3}")
            for k in range(2):
                a(f"v_lshlrev_b32 v{A_+2*k}, 16, v{Z+k}")
                a(f"v_and_b32 v{A_+2*k+1}, 0xffff0000, v{Z+k}")
                a(f"v_lshlrev_b32 v{B_+2*k}, 16, v{Z+2+k}")
                a(f"v_and_b32 v{B_+2*k+1}, 0xffff0000, v{Z+2+k}")
            for k in range(4):
                a(f"v_add_f32 v{A_+k}, v{A_+k}, v{B_+k}")
            a(f"v_cvt_pk_bf16_f32 v{Z+4}, v{A_}, v{A_+1}")
            a(f"v_cvt_pk_bf16_f32 v{Z+5}, v{A_+2}, v{A_+3}")
            a(f"buffer_store_dwordx2 {v(Z+4,2)}, v{t+3}, s[{S_OUT}:{S_OUT+3}], 0 offen offset:{32*T}")
        if kh == 0:
            a("s_branch K4_fin")
    a.label("K4_fin")
    stamp_flush(a)
    if standalone:
        a.label("K4_done")
        a("s_endpgm")
    return name
```

```python
import sys
from common import *
import k1v2 as k1, k6 as k4
def build(path, stamps=False):
    k1.STAMPS = False
    k4.STAMPS = stamps
    k1.PREFETCH = False
    k1.MEGA = True
    k1.GATE_IN_A = True
    k4.RT = "rt" in sys.argv
    a = Asm()
    hdr = open("cdna_kernels/" + KNAME + ".s.ref").read().split("; Override launch")[0]
    a.raw(hdr.rstrip("\n"))
    a.raw(f"; @launch grid=(256,1,1) block=(512,1,1) lds={k4.K4_LDS}")
    a.raw('.amdgcn_target "amdgcn-amd-amdhsa--gfx950"')
    a.raw(".text")
    k1.START_RT = stamps
    k1.gen_k1(a, name=KNAME + "_kernel", tail=lambda a: k4.gen_k4(a, standalone=False))
    a.raw('.section .rodata,"a"')
    a.raw(".p2align 6")
    kernel_desc(a, KNAME + "_kernel", 240, 102)
    open(path, "w").write(a.text())
if __name__ == "__main__":
    build(sys.argv[1], stamps=("stamps" in sys.argv))
```

```python
from common import *

V_LANE = 1; V_T0 = 2
V_GRP = 10
V_WA = 11; V_WB = 12
V_X0 = 13; V_X1 = 14
V_XH0 = 15; V_XH1 = 16
V_H0 = 17; V_H1 = 18
V_DMA = 20
V_WR = 28
V_X = 52
V_ACC = 76
V_HACC = 140
V_E = 148

S_X = 4; S_W = 8; S_WS = 12; S_AUX = 16
S_I = 20; S_J = 21; S_BR = 22; S_WAVE = 23; S_RG = 24; S_CG = 25
S_T = 26
S_SOFF = 34; S_STEP = 35
S_L = 36; S_NL = 37; S_ROT = 38
S_LD = 40
S_PTR = 44
S_MASK = 56
S_M2 = 72
S_ST = 80

STG = 49152
XOFF = 30720
LDS_WPHI = 3 * STG
LDS_ZERO = LDS_WPHI + 3200
K1_LDS = LDS_ZERO + 1024

D = 5
RING = 6
STAMPS = False
NST = [0]

def nop(a, n):
    while n > 0:
        k = min(n, 16)
        a(f"s_nop {k-1}")
        n -= k

def stamp(a):
    if STAMPS:
        k = NST[0]; NST[0] += 1
        if k == 0:
            a(f"s_memrealtime s[98:99]")
        a(f"s_memtime s[{S_ST+2*k}:{S_ST+2*k+1}]")
def stamp_flush(a):
    if STAMPS:
        n = NST[0]
        a("s_waitcnt lgkmcnt(0) vmcnt(0)")
        a(f"s_memtime s[{S_ST+2*n}:{S_ST+2*n+1}]")
        a(f"s_memrealtime s[100:101]")
        a("s_waitcnt lgkmcnt(0)")
        a(f"s_lshl_b32 s{S_T}, s2, 3")
        a(f"s_add_u32 s{S_T}, s{S_T}, s{S_WAVE}")
        a(f"s_lshl_b32 s{S_T}, s{S_T}, 6")
        a(f"s_add_u32 s{S_T}, s{S_T}, {WS_DBG}")
        a(f"v_mov_b32 v2, s{S_T}")
        a("s_mov_b64 exec, 1")
        for k in range(n + 1):
            a(f"v_mov_b32 v3, s{S_ST+2*k}")
            a(f"buffer_store_dword v3, v2, s[{S_WS}:{S_WS+3}], 0 offen offset:{4*k}")
            a("s_nop 1")
        for k, sr in enumerate((98, 100)):
            a(f"v_mov_b32 v3, s{sr}")
            a(f"buffer_store_dword v3, v2, s[{S_WS}:{S_WS+3}], 0 offen offset:{48+4*k}")
            a("s_nop 1")
        a("s_mov_b64 exec, -1")

class Cnt:
    def __init__(self, a, kind, mx):
        self.a = a; self.q = []; self.kind = kind; self.mx = mx
    def issue(self, tag):
        self.q.append(tag)
        assert len(self.q) <= self.mx, f"too many outstanding {self.kind}"
    def wait(self, *tags):
        idx = -1
        for i, t in enumerate(self.q):
            if t in tags: idx = i
        if idx < 0: return
        n = len(self.q) - 1 - idx
        self.a(f"s_waitcnt {self.kind}({n})")
        self.q = self.q[idx+1:]
    def clear(self):
        self.q = []

def xreg(buf, r):
    return V_X + (buf * 3 + r) * 4
def acc(rt, sl):
    return V_ACC + (rt * 8 + sl) * 4

def gen_prologue(a):
    t = V_T0
    a("s_cmp_ge_u32 s2, 256")
    a("s_cbranch_scc1 K1_done")
    a(f"s_load_dwordx4 s[{S_PTR}:{S_PTR+3}], s[0:1], 0")
    a(f"s_load_dwordx2 s[{S_PTR+4}:{S_PTR+5}], s[0:1], 16")
    a(f"s_load_dwordx2 s[{S_PTR+6}:{S_PTR+7}], s[0:1], 40")
    a(f"s_load_dwordx2 s[{S_PTR+8}:{S_PTR+9}], s[0:1], 56")
    a(f"s_load_dwordx2 s[{S_PTR+10}:{S_PTR+11}], s[0:1], 80")
    a(f"s_and_b32 s{S_T}, s2, 7")
    a(f"s_lshr_b32 s{S_T+1}, s2, 3")
    a(f"s_and_b32 s{S_I}, s{S_T}, 1")
    a(f"s_lshl_b32 s{S_I}, s{S_I}, 3")
    a(f"s_and_b32 s{S_T+2}, s{S_T+1}, 7")
    a(f"s_add_u32 s{S_I}, s{S_I}, s{S_T+2}")
    a(f"s_lshr_b32 s{S_J}, s{S_T}, 1")
    a(f"s_lshl_b32 s{S_J}, s{S_J}, 1")
    a(f"s_lshr_b32 s{S_T+2}, s{S_T+1}, 3")
    a(f"s_and_b32 s{S_T+2}, s{S_T+2}, 1")
    a(f"s_add_u32 s{S_J}, s{S_J}, s{S_T+2}")
    a(f"s_lshr_b32 s{S_BR}, s{S_T+1}, 4")
    a(f"s_mul_i32 s{S_ROT}, s{S_T+1}, 3")
    a(f"s_mul_i32 s{S_T+2}, s{S_ROT}, 6554")
    a(f"s_lshr_b32 s{S_T+2}, s{S_T+2}, 16")
    a(f"s_mul_i32 s{S_T+2}, s{S_T+2}, 10")
    a(f"s_sub_u32 s{S_ROT}, s{S_ROT}, s{S_T+2}")
    a(f"v_lshrrev_b32 v{t}, 6, v0")
    a(f"v_and_b32 v{V_LANE}, 63, v0")
    a(f"v_readfirstlane_b32 s{S_WAVE}, v{t}")
    a(f"v_lshrrev_b32 v{V_GRP}, 4, v{V_LANE}")
    a(f"s_mov_b32 s{S_L}, 0x3fb8aa3b")
    a(f"s_mov_b32 s{S_NL}, 0xbfb8aa3b")
    a(f"s_and_b32 s{S_RG}, s{S_WAVE}, 3")
    a(f"s_lshr_b32 s{S_CG}, s{S_WAVE}, 2")
    a(f"s_mul_i32 s{S_T}, s{S_WAVE}, 384")
    a(f"s_mul_i32 s{S_T+1}, s{S_J}, 160")
    a(f"s_mov_b32 s{S_T+2}, 2185")
    a(f"s_lshl_b32 s{S_T+3}, s{S_I}, 7")
    a(f"s_sub_u32 s{S_T+3}, s{S_T+3}, {16 + 5*48}")
    a(f"s_mov_b32 s{S_T+4}, 1280")
    a(f"s_cmp_ge_u32 s{S_WAVE}, 5")
    a(f"s_cbranch_scc1 K1_xoff")
    for n in range(6):
        d = V_DMA + n
        a(f"v_add_u32 v{t}, s{S_T}, v{V_LANE}")
        if n:
            a(f"v_add_u32 v{t}, {n*64}, v{t}")
        a(f"v_mul_u32_u24 v{t+1}, s{S_T+2}, v{t}")
        a(f"v_lshrrev_b32 v{t+1}, 16, v{t+1}")
        a(f"v_mul_u32_u24 v{t+2}, 30, v{t+1}")
        a(f"v_sub_u32 v{t+2}, v{t}, v{t+2}")
        a(f"v_and_b32 v{t+3}, 0x23, v{t+1}")
        a(f"v_bfe_u32 v{t+4}, v{t+1}, 2, 2")
        a(f"v_lshl_add_u32 v{t+3}, v{t+4}, 3, v{t+3}")
        a(f"v_bfe_u32 v{t+4}, v{t+1}, 4, 1")
        a(f"v_lshl_add_u32 v{t+3}, v{t+4}, 2, v{t+3}")
        a(f"v_mul_u32_u24 v{t+3}, 3840, v{t+3}")
        a(f"v_mul_u32_u24 v{t+4}, 26, v{t+2}")
        a(f"v_lshrrev_b32 v{t+4}, 8, v{t+4}")
        a(f"v_mul_u32_u24 v{t+5}, 1120, v{t+4}")
        a(f"v_add_u32 v{t+3}, v{t+3}, v{t+5}")
        a(f"v_lshl_add_u32 v{t+3}, v{t+2}, 4, v{t+3}")
        a(f"v_add_u32 v{d}, s{S_T+1}, v{t+3}")
    a("s_branch K1_offdone")
    a.label("K1_xoff")
    a(f"v_lshrrev_b32 v{t}, 3, v{V_LANE}")
    a(f"v_and_b32 v{t+1}, 7, v{V_LANE}")
    a(f"v_xor_b32 v{t+1}, v{t+1}, v{t}")
    a(f"v_lshlrev_b32 v{t+1}, 4, v{t+1}")
    a(f"s_mul_i32 s{S_T}, s{S_WAVE}, 48")
    a(f"s_add_u32 s{S_T}, s{S_T}, s{S_T+3}")
    for n in range(6):
        a(f"v_add_u32 v{t+2}, s{S_T}, v{t}")
        if n:
            a(f"v_add_u32 v{t+2}, {8*n}, v{t+2}")
        a(f"v_mul_lo_u32 v{t+2}, v{t+2}, s{S_T+4}")
        a(f"v_add_u32 v{V_DMA+n}, v{t+2}, v{t+1}")
    a.label("K1_offdone")
    a("s_waitcnt lgkmcnt(0)")
    srd(a, S_X, S_PTR, 2048 * 1280)
    srd(a, S_WS, S_PTR + 10, WS_SIZE)
    a(f"s_cmp_eq_u32 s{S_BR}, 0")
    a(f"s_cselect_b32 s{S_T}, s{S_PTR+2}, s{S_PTR+6}")
    a(f"s_cselect_b32 s{S_T+1}, s{S_PTR+3}, s{S_PTR+7}")
    a(f"s_cselect_b32 s{S_T+2}, s{S_PTR+4}, s{S_PTR+8}")
    a(f"s_cselect_b32 s{S_T+3}, s{S_PTR+5}, s{S_PTR+9}")
    a(f"s_mov_b32 s{S_T+5}, 1280")
    a(f"s_cselect_b32 s{S_T+4}, 25600, s{S_T+5}")
    srd(a, S_W, S_T, 640 * 3840)
    a(f"s_mov_b32 s{S_AUX}, s{S_T+2}")
    a(f"s_and_b32 s{S_AUX+1}, s{S_T+3}, 0xffff")
    a(f"s_mov_b32 s{S_AUX+2}, s{S_T+4}")
    a(f"s_mov_b32 s{S_AUX+3}, 0x00020000")
    a(f"s_cmp_ge_u32 s{S_WAVE}, 5")
    for k in range(4):
        a(f"s_cselect_b32 s{S_LD+k}, s{S_X+k}, s{S_W+k}")
    a(f"s_mov_b32 s{S_T}, {64*3840}")
    a(f"s_cselect_b32 s{S_STEP}, 128, s{S_T}")

NO_LOADS = False
TOVGPR = False
MEGA = False
PKMATH = False
LATE1 = False
WS_FL = 0xE00000
GATE_IN_A = False
START_RT = False
def SC():
    return ' sc1' if MEGA else ''
def dma(a, c, n):
    if NO_LOADS and c >= 3: return
    b = c % 3
    a(f"s_mul_i32 s{S_T}, s{S_WAVE}, 6144")
    a(f"s_add_u32 m0, s{S_T}, {b*STG + n*1024}")
    if n == 0 or True:
        a(f"s_add_u32 s{S_SOFF}, s{S_ROT}, {c}")
        a(f"s_sub_u32 s{S_T+1}, s{S_SOFF}, 10")
        a(f"s_cmp_ge_u32 s{S_SOFF}, 10")
        a(f"s_cselect_b32 s{S_SOFF}, s{S_T+1}, s{S_SOFF}")
        a(f"s_mul_i32 s{S_SOFF}, s{S_STEP}, s{S_SOFF}")
    if TOVGPR and c >= 3:
        a(f"buffer_load_dwordx4 v[{200+4*n}:{203+4*n}], v{V_DMA+n}, s[{S_LD}:{S_LD+3}], s{S_SOFF} offen")
    else:
        a(f"buffer_load_dwordx4 v{V_DMA+n}, s[{S_LD}:{S_LD+3}], s{S_SOFF} offen lds")

def gen_bases(a):
    t = V_T0
    a(f"v_lshrrev_b32 v{t}, 2, v{V_LANE}")
    a(f"v_mul_u32_u24 v{t}, 480, v{t}")
    a(f"v_and_b32 v{t+1}, 3, v{V_LANE}")
    a(f"v_mul_u32_u24 v{t+1}, 40, v{t+1}")
    a(f"v_add_u32 v{t}, v{t}, v{t+1}")
    a(f"s_mul_i32 s{S_T}, s{S_CG}, 160")
    a(f"v_add_u32 v{V_WA}, s{S_T}, v{t}")
    a(f"s_mul_i32 s{S_T}, s{S_CG}, 24")
    a(f"s_add_u32 s{S_T}, s{S_T}, 320")
    a(f"v_add_u32 v{V_WB}, s{S_T}, v{t}")
    for h in range(2):
        a(f"s_add_u32 s{S_T}, s{S_WAVE}, {8*h}")
        a(f"s_cmp_ge_u32 s{S_T}, 10")
        a(f"s_cselect_b32 s{S_T}, s{S_WAVE}, s{S_T}")
        a(f"s_add_u32 s{S_T}, s{S_T}, 5")
        a(f"s_cmp_ge_u32 s{S_T}, 10")
        a(f"s_mov_b32 s{S_T+2}, 120")
        a(f"s_cselect_b32 s{S_T+1}, 240, s{S_T+2}")
        a(f"s_lshl_b32 s{S_T}, s{S_T}, 3")
        a(f"s_add_u32 s{S_T}, s{S_T}, s{S_T+1}")
        a(f"v_add_u32 v{V_H0+h}, s{S_T}, v{t}")
    a(f"v_and_b32 v{t}, 15, v{V_LANE}")
    a(f"v_and_b32 v{t+1}, 7, v{V_LANE}")
    a(f"v_xor_b32 v{t+1}, v{t+1}, v{V_GRP}")
    a(f"v_lshlrev_b32 v{t+1}, 4, v{t+1}")
    a(f"v_lshl_add_u32 v{t+1}, v{t}, 7, v{t+1}")
    a(f"v_add_u32 v{V_XH0}, {XOFF}, v{t+1}")
    a(f"v_xor_b32 v{V_XH1}, 64, v{V_XH0}")
    a(f"s_lshl_b32 s{S_T}, s{S_RG}, 12")
    a(f"s_add_u32 s{S_T}, s{S_T}, 2048")
    a(f"v_add_u32 v{V_X0}, s{S_T}, v{V_XH0}")
    a(f"v_add_u32 v{V_X1}, s{S_T}, v{V_XH1}")

PREFETCH = True
def gen_prefetch(a):
    if not PREFETCH: return
    t = V_E + 16
    a(f"s_lshr_b32 s{S_T}, s2, 3")
    a(f"s_lshl_b32 s{S_T+1}, s{S_T}, 3")
    a(f"s_add_u32 s{S_T+1}, s{S_T+1}, s{S_WAVE}")
    a(f"s_lshl_b32 s{S_T+1}, s{S_T+1}, 6")
    a(f"v_add_u32 v{t}, s{S_T+1}, v{V_LANE}")
    a(f"s_and_b32 s{S_T+2}, s2, 1")
    a(f"s_mul_i32 s{S_T+2}, s{S_T+2}, {1024*1280}")
    a(f"v_lshlrev_b32 v{t+1}, 7, v{t}")
    a(f"v_add_u32 v{t+1}, s{S_T+2}, v{t+1}")
    a(f"v_mov_b32 v{t+2}, 0x7ff00000")
    a(f"v_cmp_le_u32 vcc, 10240, v{t}")
    a(f"v_and_b32 v{t+3}, 0x1fff, v{t}")
    a(f"v_cndmask_b32 v{t+1}, v{t+1}, v{t+2}, vcc")
    a(f"buffer_load_dword v{t+8}, v{t+1}, s[{S_X}:{S_X+3}], 0 offen")
    a(f"v_mul_u32_u24 v{t+4}, 5462, v{t+3}")
    a(f"v_lshrrev_b32 v{t+4}, 16, v{t+4}")
    a(f"v_mul_u32_u24 v{t+5}, 12, v{t+4}")
    a(f"v_sub_u32 v{t+5}, v{t+3}, v{t+5}")
    a(f"v_lshrrev_b32 v{t+6}, 2, v{t+5}")
    a(f"v_and_b32 v{t+5}, 3, v{t+5}")
    a(f"v_mul_u32_u24 v{t+4}, 3840, v{t+4}")
    a(f"v_mul_u32_u24 v{t+6}, 1280, v{t+6}")
    a(f"v_add_u32 v{t+4}, v{t+4}, v{t+6}")
    a(f"v_lshl_add_u32 v{t+4}, v{t+5}, 7, v{t+4}")
    a(f"s_and_b32 s{S_T+2}, s2, 7")
    a(f"s_lshr_b32 s{S_T+2}, s{S_T+2}, 1")
    a(f"s_mul_i32 s{S_T+2}, s{S_T+2}, 320")
    a(f"s_and_b32 s{S_T+2}, s{S_T+2}, 0xffffff80")
    a(f"v_add_u32 v{t+4}, s{S_T+2}, v{t+4}")
    a(f"v_cmp_le_u32 vcc, 7680, v{t+3}")
    a("s_nop 1")
    a(f"v_cndmask_b32 v{t+4}, v{t+4}, v{t+2}, vcc")
    a(f"buffer_load_dword v{t+9}, v{t+4}, s[{S_W}:{S_W+3}], 0 offen")

WOPF = False
def gen_wo_pf_setup(a):
    if not WOPF: return
    t = V_E + 24
    a(f"s_load_dwordx2 s[92:93], s[0:1], 24")
    a(f"s_load_dwordx2 s[94:95], s[0:1], 48")
    a(f"s_lshr_b32 s{S_T}, s2, 3")
    a(f"s_and_b32 s{S_T+1}, s{S_T}, 3")
    a(f"s_lshr_b32 s{S_T}, s{S_T}, 2")
    a(f"s_mul_i32 s{S_T}, s{S_T}, 160")
    a(f"s_and_b32 s{S_T}, s{S_T}, 0xffffff80")
    a(f"s_mul_i32 s{S_T+1}, s{S_T+1}, 160")
    a(f"s_lshl_b32 s{S_T+2}, s{S_WAVE}, 5")
    a(f"s_add_u32 s{S_T+1}, s{S_T+1}, s{S_T+2}")
    a(f"s_mul_i32 s{S_T+1}, s{S_T+1}, 1280")
    a(f"s_add_u32 s{S_T}, s{S_T}, s{S_T+1}")
    a(f"s_cmp_ge_u32 s{S_WAVE}, 5")
    a(f"s_cselect_b32 s{S_T}, 0x7ff00000, s{S_T}")
    a(f"v_lshrrev_b32 v{t}, 1, v{V_LANE}")
    a(f"v_mul_u32_u24 v{t}, 1280, v{t}")
    a(f"v_and_b32 v{t+1}, 1, v{V_LANE}")
    a(f"v_lshl_add_u32 v{t}, v{t+1}, 7, v{t}")
    a(f"v_add_u32 v{t}, s{S_T}, v{t}")
    a("s_waitcnt lgkmcnt(0)")
    srd(a, 84, 92, 640 * 1280)
    srd(a, 88, 94, 640 * 1280)
def gen_wo_pf(a):
    t = V_E + 24
    a(f"buffer_load_dword v{t+2}, v{t}, s[84:87], 0 offen")
    a(f"buffer_load_dword v{t+3}, v{t}, s[88:91], 0 offen")

WOT = False
WS_WOT = 0x1C00000
V_RL = V_E + 32
def gen_relayout_load(a, lab):
    if not WOT: return
    t = V_E + 24
    a(f"s_mul_i32 s{S_T}, s2, 7")
    a(f"s_add_u32 s{S_T}, s{S_T}, s{S_WAVE}")
    a(f"s_cmp_ge_u32 s{S_WAVE}, 7")
    a(f"s_cselect_b32 s{S_T}, 1600, s{S_T}")
    a(f"s_mov_b32 s96, s{S_T}")
    a(f"s_cmp_ge_u32 s{S_T}, 1600")
    a(f"s_cbranch_scc1 {lab}")
    a(f"s_load_dwordx2 s[92:93], s[0:1], 24")
    a(f"s_load_dwordx2 s[94:95], s[0:1], 48")
    a(f"s_mul_i32 s{S_T+1}, s{S_T}, 52429")
    a(f"s_lshr_b32 s{S_T+1}, s{S_T+1}, 18")
    a(f"s_mul_i32 s{S_T+2}, s{S_T+1}, 5")
    a(f"s_sub_u32 s{S_T+2}, s{S_T}, s{S_T+2}")
    a(f"s_mul_i32 s{S_T+3}, s{S_T+1}, 3277")
    a(f"s_lshr_b32 s{S_T+3}, s{S_T+3}, 16")
    a(f"s_mul_i32 s{S_T+4}, s{S_T+3}, 20")
    a(f"s_sub_u32 s{S_T+4}, s{S_T+1}, s{S_T+4}")
    a(f"s_and_b32 s{S_T+5}, s{S_T+3}, 7")
    a(f"s_mul_i32 s{S_T+5}, s{S_T+5}, 160")
    a(f"s_mul_i32 s{S_T+4}, s{S_T+4}, {32*1280}")
    a(f"s_add_u32 s{S_T+5}, s{S_T+5}, s{S_T+4}")
    a(f"s_lshl_b32 s{S_T+2}, s{S_T+2}, 6")
    a(f"v_add_u32 v{t}, s{S_T+2}, v{V_LANE}")
    a(f"v_mul_u32_u24 v{t+1}, 6554, v{t}")
    a(f"v_lshrrev_b32 v{t+1}, 16, v{t+1}")
    a(f"v_mul_u32_u24 v{t+2}, 10, v{t+1}")
    a(f"v_sub_u32 v{t+2}, v{t}, v{t+2}")
    a(f"v_bfe_u32 v{t+3}, v{t+1}, 4, 1")
    a(f"v_bfe_u32 v{t+4}, v{t+1}, 2, 2")
    a(f"v_and_b32 v{t+5}, 3, v{t+1}")
    a(f"v_lshl_add_u32 v{t+5}, v{t+3}, 2, v{t+5}")
    a(f"v_lshl_add_u32 v{t+5}, v{t+4}, 3, v{t+5}")
    a(f"v_mul_u32_u24 v{t+5}, 1280, v{t+5}")
    a(f"v_lshl_add_u32 v{t+5}, v{t+2}, 4, v{t+5}")
    a(f"v_add_u32 v{t+5}, s{S_T+5}, v{t+5}")
    a("s_waitcnt lgkmcnt(0)")
    a(f"s_cmp_lt_u32 s{S_T+3}, 8")
    a(f"s_cselect_b32 s92, s92, s94")
    a(f"s_cselect_b32 s93, s93, s95")
    srd(a, 84, 92, 640 * 1280)
    a(f"buffer_load_dwordx4 {v(V_RL,4)}, v{t+5}, s[84:87], 0 offen")
    a.label(lab)
def gen_relayout_store(a, lab):
    if not WOT: return
    a(f"s_cmp_ge_u32 s96, 1600")
    a(f"s_cbranch_scc1 {lab}")
    a(f"s_lshl_b32 s{S_T}, s96, 10")
    a(f"s_add_u32 s{S_T}, s{S_T}, {WS_WOT}")
    a(f"v_lshlrev_b32 v{V_RL+4}, 4, v{V_LANE}")
    a(f"buffer_store_dwordx4 {v(V_RL,4)}, v{V_RL+4}, s[{S_WS}:{S_WS+3}], s{S_T} offen sc1")
    a.label(lab)

def gen_mainloop(a, halo, pre_hook=None):
    lg = Cnt(a, "lgkmcnt", 15)
    nxr = 3 if halo else 2
    items = []
    for c in range(10):
        for m in range(2):
            for sl in range(8):
                items.append((c, m, "m", sl))
                if halo and sl in (3, 7):
                    items.append((c, m, "h", sl // 4))
    per_k = len(items) // 20
    per_chunk = 2 * per_k
    total = len(items)
    base_regs = [V_WA, V_WB, V_X0, V_X1, V_XH0, V_XH1, V_H0, V_H1]
    cur_stage = [0]
    def set_stage(c):
        b = c % 3
        if b != cur_stage[0]:
            delta = (b - cur_stage[0]) * STG
            for r in base_regs:
                if not halo and r in (V_XH0, V_XH1, V_H0, V_H1): continue
                if delta > 0:
                    a(f"v_add_u32 v{r}, {delta}, v{r}")
                else:
                    a(f"v_subrev_u32 v{r}, {-delta}, v{r}")
            cur_stage[0] = b
    def x_reads(c, m):
        set_stage(c)
        buf = (2 * c + m) % 2
        for r in range(nxr):
            if r < 2:
                a(f"ds_read_b128 {v(xreg(buf,r),4)}, v{V_X0+m} offset:{r*2048}")
            else:
                a(f"ds_read_b128 {v(xreg(buf,r),4)}, v{V_XH0+m}")
            lg.issue(f"x{c}_{m}")
    def w_reads(N):
        c, m, kind, idx = items[N]
        set_stage(c)
        slot = V_WR + (N % RING) * 4
        for qq in range(2):
            imm = (2 * m + qq) * 16 * 480
            if kind == "m":
                base = V_WA if idx < 5 else V_WB
                imm += 8 * (idx if idx < 5 else idx - 5)
            else:
                base = V_H0 + idx
            a(f"ds_read_b64_tr_b16 {v(slot+2*qq,2)}, v{base} offset:{imm}")
            lg.issue(f"w{N}")
    gen_relayout_load(a, "K1_rl" + ("B" if halo else "A"))
    for n in range(6):
        dma(a, 0, n)
    if not LATE1:
        for n in range(6):
            dma(a, 1, n)
    gen_bases(a)
    gen_wo_pf_setup(a)
    if pre_hook: pre_hook()
    stamp(a)
    a(f"s_waitcnt vmcnt({0 if LATE1 else 6})")
    a("s_barrier")
    stamp(a)
    x_reads(0, 0)
    for N in range(D):
        w_reads(N)
    nxt = D
    DL = 2
    for N in range(total):
        c, m, kind, idx = items[N]
        n = N - c * per_chunk
        if n == 0:
            a.comment(f"---- chunk {c}")
        bar_here = (n == per_chunk - D + DL and c + 1 <= 9)
        if bar_here:
            a(f"s_waitcnt vmcnt({(8 if (WOPF and c in (2, 3)) else 6) if c + 2 <= 9 else 0}) lgkmcnt(0)")
            lg.clear()
            a("s_barrier")
            if c == 1:
                gen_relayout_store(a, "K1_rs" + ("B" if halo else "A"))
            if c == 3:
                gen_started(a, "K1_st" + ("B" if halo else "A"))
        lim = N + D
        if c + 1 <= 9 and n < per_chunk - D + DL:
            lim = min(lim, (c + 1) * per_chunk - 1)
        lim = min(lim, total - 1)
        while nxt <= lim:
            cc, mm, _, _ = items[nxt]
            if nxt == (cc * 2 + mm) * per_k:
                x_reads(cc, mm)
            w_reads(nxt)
            nxt += 1
        lg.wait(f"w{N}", f"x{c}_{m}")
        slot = V_WR + (N % RING) * 4
        buf = (2 * c + m) % 2
        first = (c == 0 and m == 0)
        if kind == "m":
            for rt in range(2):
                src = "0" if first else v(acc(rt, idx), 4)
                a(f"v_mfma_f32_16x16x32_bf16 {v(acc(rt,idx),4)}, {v(slot,4)}, {v(xreg(buf,rt),4)}, {src}")
        else:
            src = "0" if first else v(V_HACC + idx * 4, 4)
            a(f"v_mfma_f32_16x16x32_bf16 {v(V_HACC+idx*4,4)}, {v(slot,4)}, {v(xreg(buf,2),4)}, {src}")
        if LATE1:
            if c == 0 and n < 6:
                dma(a, 1, n)
            if c == 0 and 6 <= n < 12:
                dma(a, 2, n - 6)
        elif c == 0 and n < 6:
            dma(a, 2, n)
        if c == 0 and n == 6:
            gen_prefetch(a)
        k = N - (c * per_chunk + per_chunk - D + DL)
        for cc in (c, c - 1):
            if cc < 0 or cc + 3 > 9: continue
            k = N - (cc * per_chunk + per_chunk - D + DL)
            if 0 <= k < 6:
                dma(a, cc + 3, k)
                if WOPF and cc == 1 and k == 5:
                    gen_wo_pf(a)

def softmax_dual(a, P, T, OUT, X4):
    for i in range(10):
        a(f"v_cvt_pk_bf16_f32 v{T+i}, v{P+2*i}, v{P+2*i+1}")
    for i in range(10):
        a(f"v_lshlrev_b32 v{P+2*i}, 16, v{T+i}")
        a(f"v_and_b32 v{P+2*i+1}, 0xffff0000, v{T+i}")
    mx, mn, nmx, pmn = X4, X4 + 1, X4 + 2, X4 + 3
    a(f"v_max3_f32 v{mx}, v{P}, v{P+1}, v{P+2}")
    a(f"v_min3_f32 v{mn}, v{P}, v{P+1}, v{P+2}")
    for i in range(3, 19, 2):
        a(f"v_max3_f32 v{mx}, v{mx}, v{P+i}, v{P+i+1}")
        a(f"v_min3_f32 v{mn}, v{mn}, v{P+i}, v{P+i+1}")
    a(f"v_max_f32 v{mx}, v{mx}, v{P+19}")
    a(f"v_min_f32 v{mn}, v{mn}, v{P+19}")
    a(f"v_mul_f32 v{nmx}, s{S_NL}, v{mx}")
    a(f"v_mul_f32 v{pmn}, s{S_L}, v{mn}")
    if PKMATH:
        for i in range(0, 20, 2):
            a(f"v_pk_fma_f32 v[{T+i}:{T+i+1}], v[{P+i}:{P+i+1}], s[{S_L}:{S_L+1}], v[{nmx}:{nmx+1}] op_sel_hi:[1,0,0]")
            a(f"v_pk_fma_f32 v[{P+i}:{P+i+1}], v[{P+i}:{P+i+1}], s[{S_L}:{S_L+1}], v[{nmx}:{nmx+1}] op_sel:[0,1,1] op_sel_hi:[1,1,1]")
        for i in range(20):
            a(f"v_exp_f32 v{T+i}, v{T+i}")
            a(f"v_exp_f32 v{P+i}, v{P+i}")
        a("s_nop 0")
        a(f"v_pk_add_f32 v[{X4}:{X4+1}], v[{T}:{T+1}], v[{T+2}:{T+3}]")
        a(f"v_pk_add_f32 v[{X4+2}:{X4+3}], v[{P}:{P+1}], v[{P+2}:{P+3}]")
        for i in range(4, 20, 2):
            a(f"v_pk_add_f32 v[{X4}:{X4+1}], v[{X4}:{X4+1}], v[{T+i}:{T+i+1}]")
            a(f"v_pk_add_f32 v[{X4+2}:{X4+3}], v[{X4+2}:{X4+3}], v[{P+i}:{P+i+1}]")
        a(f"v_add_f32 v{X4}, v{X4}, v{X4+1}")
        a(f"v_add_f32 v{X4+2}, v{X4+2}, v{X4+3}")
        a(f"v_rcp_f32 v{X4}, v{X4}")
        a(f"v_rcp_f32 v{X4+2}, v{X4+2}")
        a("s_nop 0")
        for i in range(0, 20, 2):
            a(f"v_pk_mul_f32 v[{T+i}:{T+i+1}], v[{T+i}:{T+i+1}], v[{X4}:{X4+1}] op_sel_hi:[1,0]")
            a(f"v_pk_mul_f32 v[{P+i}:{P+i+1}], v[{P+i}:{P+i+1}], v[{X4+2}:{X4+3}] op_sel_hi:[1,0]")
    else:
        for i in range(20):
            a(f"v_fma_f32 v{T+i}, v{P+i}, s{S_L}, v{nmx}")
            a(f"v_fma_f32 v{P+i}, v{P+i}, s{S_NL}, v{pmn}")
        for i in range(20):
            a(f"v_exp_f32 v{T+i}, v{T+i}")
            a(f"v_exp_f32 v{P+i}, v{P+i}")
        a("s_nop 0")
        s1, s2 = mx, mn
        a(f"v_add_f32 v{s1}, v{T}, v{T+1}")
        a(f"v_add_f32 v{s2}, v{P}, v{P+1}")
        a(f"v_add_f32 v{nmx}, v{T+2}, v{T+3}")
        a(f"v_add_f32 v{pmn}, v{P+2}, v{P+3}")
        for i in range(4, 20, 2):
            a(f"v_add_f32 v{s1}, v{s1}, v{T+i}")
            a(f"v_add_f32 v{s2}, v{s2}, v{P+i}")
            a(f"v_add_f32 v{nmx}, v{nmx}, v{T+i+1}")
            a(f"v_add_f32 v{pmn}, v{pmn}, v{P+i+1}")
        a(f"v_add_f32 v{s1}, v{s1}, v{nmx}")
        a(f"v_add_f32 v{s2}, v{s2}, v{pmn}")
        a(f"v_rcp_f32 v{s1}, v{s1}")
        a(f"v_rcp_f32 v{s2}, v{s2}")
        a("s_nop 0")
        for i in range(20):
            a(f"v_mul_f32 v{T+i}, v{T+i}, v{s1}")
            a(f"v_mul_f32 v{P+i}, v{P+i}, v{s2}")
    for i in range(10):
        a(f"v_cvt_pk_bf16_f32 v{OUT+i}, v{T+2*i}, v{T+2*i+1}")
    for i in range(10):
        a(f"v_cvt_pk_bf16_f32 v{OUT+10+i}, v{P+2*i}, v{P+2*i+1}")

def gen_wphi_issue(a):
    t = V_E
    a(f"v_lshlrev_b32 v{t}, 4, v0")
    a(f"s_mul_i32 s{S_T}, s{S_J}, 3200")
    a(f"v_cmp_gt_u32 vcc, 200, v0")
    a(f"s_and_saveexec_b64 s[{S_T+2}:{S_T+3}], vcc")
    a(f"s_cbranch_execz K1_wp0")
    a(f"buffer_load_dwordx4 {v(t+4,4)}, v{t}, s[{S_AUX}:{S_AUX+3}], s{S_T} offen")
    a.label("K1_wp0")
    a(f"s_mov_b64 exec, s[{S_T+2}:{S_T+3}]")

def gen_wphi_stage(a):
    t = V_E
    a(f"v_cmp_gt_u32 vcc, 200, v0")
    a(f"s_and_saveexec_b64 s[{S_T+2}:{S_T+3}], vcc")
    a(f"s_cbranch_execz K1_wp1")
    a(f"v_add_u32 v{t+1}, {LDS_WPHI}, v{t}")
    a(f"s_waitcnt vmcnt({6 if LATE1 else 12})")
    a(f"ds_write_b128 v{t+1}, {v(t+4,4)}")
    a.label("K1_wp1")
    a(f"s_mov_b64 exec, s[{S_T+2}:{S_T+3}]")
    a(f"v_cmp_gt_u32 vcc, 64, v0")
    a(f"s_and_saveexec_b64 s[{S_T+2}:{S_T+3}], vcc")
    a(f"s_cbranch_execz K1_wp2")
    for r in range(4):
        a(f"v_mov_b32 v{t+8+r}, 0")
    a(f"v_add_u32 v{t+1}, {LDS_ZERO}, v{t}")
    a(f"ds_write_b128 v{t+1}, {v(t+8,4)}")
    a.label("K1_wp2")
    a(f"s_mov_b64 exec, s[{S_T+2}:{S_T+3}]")
    a("s_waitcnt lgkmcnt(0)")

PKO = 0
VO = 40960

def gen_epilogue_A(a):
    t = V_T0
    a("s_barrier")
    WF = 148
    QB = 208
    P = 220
    OUT = 28
    a(f"v_and_b32 v{t}, 3, v{V_LANE}")
    a(f"v_bfe_u32 v{t+1}, v{V_LANE}, 2, 2")
    a(f"v_mul_u32_u24 v{t+1}, 40, v{t+1}")
    a(f"v_mul_u32_u24 v{t+2}, 800, v{V_GRP}")
    a(f"v_add_u32 v{t+1}, v{t+1}, v{t+2}")
    a(f"v_add_u32 v{t+1}, {LDS_WPHI}, v{t+1}")
    a(f"v_mov_b32 v{t+2}, {LDS_ZERO}")
    a(f"v_cmp_eq_u32 vcc, v{t}, v{V_GRP}")
    a("s_nop 1")
    a(f"v_cndmask_b32 v{t+1}, v{t+2}, v{t+1}, vcc")
    for tt in range(5):
        for c in range(3):
            r = WF + (tt * 3 + c) * 4
            for qq in range(2):
                if c == 2 and qq == 1:
                    a(f"v_mov_b32 v{r+2}, 0")
                    a(f"v_mov_b32 v{r+3}, 0")
                else:
                    a(f"ds_read_b64_tr_b16 {v(r+2*qq,2)}, v{t+1} offset:{(8*c+4*qq)*40 + 8*tt}")
    a(f"v_mov_b32 v{QB+10}, 0")
    a(f"v_mov_b32 v{QB+11}, 0")
    a(f"s_lshl_b32 s{S_T}, s{S_I}, 3")
    a(f"s_lshl_b32 s{S_T+1}, s{S_RG}, 1")
    a(f"s_add_u32 s{S_T}, s{S_T}, s{S_T+1}")
    a(f"s_lshl_b32 s{S_T}, s{S_T}, 5")
    a(f"s_lshl_b32 s{S_T+1}, s{S_J}, 2")
    a(f"s_add_u32 s{S_T}, s{S_T}, s{S_T+1}")
    a(f"s_mul_i32 s{S_T}, s{S_T}, 1280")
    a(f"s_add_u32 s{S_T}, s{S_T}, {WS_PHIQ}")
    a(f"v_and_b32 v{t}, 15, v{V_LANE}")
    a(f"v_mul_u32_u24 v{t+2}, 1280, v{V_GRP}")
    a(f"v_lshl_add_u32 v{t+2}, v{t}, 4, v{t+2}")
    a(f"v_add_u32 v{t+2}, s{S_T}, v{t+2}")
    a(f"v_add_u32 v{t+7}, {32*1280}, v{t+2}")
    a(f"s_mul_i32 s{S_T}, s{S_RG}, {32*80}")
    a(f"v_mul_u32_u24 v{t+3}, 80, v{t}")
    a(f"v_mul_u32_u24 v{t+4}, 10240, v{V_GRP}")
    a(f"v_add_u32 v{t+3}, v{t+3}, v{t+4}")
    a(f"v_add_u32 v{t+3}, s{S_T}, v{t+3}")
    a(f"s_mul_i32 s{S_T}, s{S_RG}, {32*48}")
    a(f"s_mul_i32 s{S_T+1}, s{S_CG}, 24")
    a(f"s_add_u32 s{S_T}, s{S_T}, s{S_T+1}")
    a(f"v_mul_u32_u24 v{t+4}, 48, v{t}")
    a(f"v_mul_u32_u24 v{t+5}, 6144, v{V_GRP}")
    a(f"v_add_u32 v{t+4}, v{t+4}, v{t+5}")
    a(f"v_add_u32 v{t+4}, s{S_T}, v{t+4}")
    a(f"s_cmp_eq_u32 s{S_CG}, 1")
    a(f"s_cselect_b64 s[{S_T+2}:{S_T+3}], -1, 0")
    a(f"v_mov_b32 v{P+6}, 0x3f80")
    a(f"v_mov_b32 v{P+7}, 0")
    for rt in range(2):
        base = acc(rt, 5)
        for i in range(6):
            a(f"v_cvt_pk_bf16_f32 v{P+i}, v{base+2*i}, v{base+2*i+1}")
        a(f"v_cndmask_b32 v{P+4}, v{P+4}, v{P+6}, s[{S_T+2}:{S_T+3}]")
        a(f"v_cndmask_b32 v{P+5}, v{P+5}, v{P+7}, s[{S_T+2}:{S_T+3}]")
        for k in range(3):
            a(f"ds_write_b64 v{t+4}, {v(P+2*k,2)} offset:{VO + rt*768 + 8*k}")
        nop(a, 1)
    a("s_waitcnt lgkmcnt(0)")
    stamp(a)
    for rt in range(2):
        base = acc(rt, 0)
        for i in range(10):
            a(f"v_cvt_pk_bf16_f32 v{QB+i}, v{base+2*i}, v{base+2*i+1}")
        nop(a, 2)
        for c in range(3):
            for tt in range(5):
                src = "0" if c == 0 else v(P + tt * 4, 4)
                a(f"v_mfma_f32_16x16x32_bf16 {v(P+tt*4,4)}, {v(WF+(tt*3+c)*4,4)}, {v(QB+c*4,4)}, {src}")
        nop(a, 8)
        softmax_dual(a, P, base, OUT, QB)
        l1 = a.newlabel("K1_ak"); l2 = a.newlabel("K1_ae")
        a(f"s_cmp_eq_u32 s{S_CG}, 0")
        a(f"s_cbranch_scc0 {l1}")
        for k in range(5):
            a(f"buffer_store_dwordx4 {v(OUT+4*k,4)}, v{t+2 if rt == 0 else t+7}, s[{S_WS}:{S_WS+3}], 0 offen offset:{256*k}{SC()}")
        a(f"s_branch {l2}")
        a.label(l1)
        for k in range(5):
            a(f"ds_write_b128 v{t+3}, {v(OUT+4*k,4)} offset:{PKO + rt*1280 + 16*k}")
        a.label(l2)
        nop(a, 2)
        stamp(a)
    a("s_waitcnt lgkmcnt(0)")
    a("s_barrier")
    a(f"v_and_b32 v{t}, 3, v{V_LANE}")
    a(f"v_bfe_u32 v{t+1}, v{V_LANE}, 2, 2")
    a(f"v_lshl_add_u32 v{t+1}, v{V_GRP}, 3, v{t+1}")
    a(f"v_mul_u32_u24 v{t+2}, 80, v{t+1}")
    a(f"v_lshl_add_u32 v{t+2}, v{t}, 3, v{t+2}")
    a(f"s_mul_i32 s{S_T}, s{S_RG}, 10240")
    a(f"v_add_u32 v{t+2}, s{S_T}, v{t+2}")
    a(f"v_mul_u32_u24 v{t+3}, 48, v{t+1}")
    a(f"v_lshl_add_u32 v{t+3}, v{t}, 3, v{t+3}")
    a(f"s_mul_i32 s{S_T}, s{S_RG}, 6144")
    a(f"s_add_u32 s{S_T}, s{S_T}, {VO}")
    a(f"v_add_u32 v{t+3}, s{S_T}, v{t+3}")
    a(f"s_lshl_b32 s{S_T}, s{S_I}, 5")
    a(f"s_lshl_b32 s{S_T+1}, s{S_J}, 2")
    a(f"s_add_u32 s{S_T}, s{S_T}, s{S_T+1}")
    a(f"s_add_u32 s{S_T}, s{S_T}, s{S_RG}")
    a(f"s_mul_i32 s{S_T}, s{S_T}, 6144")
    a(f"s_add_u32 s{S_T}, s{S_T}, {WS_PART}")
    a(f"v_and_b32 v{t}, 15, v{V_LANE}")
    a(f"v_mul_u32_u24 v{t}, 192, v{t}")
    a(f"v_lshl_add_u32 v{t}, v{V_GRP}, 4, v{t}")
    a(f"v_add_u32 v{t}, s{S_T}, v{t}")
    AF = 76; BF = 124; KV = 172; AD = 184
    for y in range(3):
        a(f"s_mul_i32 s{S_T}, s{S_CG}, 3")
        a(f"s_add_u32 s{S_T}, s{S_T}, {y}")
        a(f"s_lshr_b32 s{S_T+1}, s{S_T}, 1")
        a(f"s_and_b32 s{S_T+2}, s{S_T}, 1")
        a(f"s_lshl_b32 s{S_T+3}, s{S_T+1}, 5")
        a(f"v_add_u32 v{AD+y}, s{S_T+3}, v{t+2}")
        a(f"s_lshl_b32 s{S_T+3}, s{S_T+2}, 5")
        a(f"v_add_u32 v{AD+3+y}, s{S_T+3}, v{t+3}")
        a(f"s_lshl_b32 s{S_T+3}, s{S_T+1}, 6")
        a(f"s_mul_i32 s{S_T+4}, s{S_T+2}, {16*192}")
        a(f"s_add_u32 s{S_T+3}, s{S_T+3}, s{S_T+4}")
        a(f"v_add_u32 v{AD+6+y}, s{S_T+3}, v{t}")
    for ks in range(4):
        for y in range(3):
            for qq in range(2):
                a(f"ds_read_b64_tr_b16 {v(AF+(y*4+ks)*4+2*qq,2)}, v{AD+y} offset:{(32*ks+4*qq)*80}")
                a(f"ds_read_b64_tr_b16 {v(BF+(y*4+ks)*4+2*qq,2)}, v{AD+3+y} offset:{(32*ks+4*qq)*48}")
        a("s_waitcnt lgkmcnt(0)")
    for ks in range(4):
        for y in range(3):
            d = KV + y * 4
            src = "0" if ks == 0 else v(d, 4)
            a(f"v_mfma_f32_16x16x32_bf16 {v(d,4)}, {v(AF+(y*4+ks)*4,4)}, {v(BF+(y*4+ks)*4,4)}, {src}")
    nop(a, 8)
    for y in range(3):
        a(f"buffer_store_dwordx4 {v(KV+y*4,4)}, v{AD+6+y}, s[{S_WS}:{S_WS+3}], 0 offen{SC()}")

QROW = 272
LQ = 0
LK = 128 * QROW
LV = LK + 144 * QROW

def gen_gate(a):
    t = V_T0
    a(f"s_cmp_ge_u32 s{S_WAVE}, 4")
    a("s_cbranch_scc1 K1_gdone")
    if GATE_IN_A:
        a(f"s_load_dwordx2 s[{S_PTR}:{S_PTR+1}], s[0:1], 56")
        a("s_waitcnt lgkmcnt(0)")
        srd(a, S_AUX, S_PTR, 1280)
    a(f"s_lshl_b32 s{S_T}, s{S_I}, 7")
    a(f"s_lshl_b32 s{S_T+1}, s{S_J}, 4")
    a(f"s_add_u32 s{S_T}, s{S_T}, s{S_T+1}")
    a(f"s_lshl_b32 s{S_T+1}, s{S_WAVE}, 2")
    a(f"s_add_u32 s{S_T}, s{S_T}, s{S_T+1}")
    a(f"v_add_u32 v{t}, s{S_T}, v{V_GRP}")
    a(f"v_and_b32 v{t+1}, 15, v{V_LANE}")
    a(f"v_mul_u32_u24 v{t+1}, 80, v{t+1}")
    a(f"v_mul_u32_u24 v{t+2}, 1280, v{t}")
    a(f"v_add_u32 v{t+2}, v{t+2}, v{t+1}")
    GX, GW = 188, 208
    for k in range(5):
        a(f"buffer_load_dwordx4 {v(GX+4*k,4)}, v{t+2}, s[{S_X}:{S_X+3}], 0 offen offset:{16*k}")
        a(f"buffer_load_dwordx4 {v(GW+4*k,4)}, v{t+1}, s[{S_AUX}:{S_AUX+3}], 0 offen offset:{16*k}")
    a("s_waitcnt vmcnt(0)")
    G0 = 28
    a(f"v_mov_b32 v{G0}, 0")
    a(f"v_mov_b32 v{G0+1}, 0")
    for i in range(20):
        a(f"v_lshlrev_b32 v{G0+2}, 16, v{GX+i}")
        a(f"v_and_b32 v{G0+3}, 0xffff0000, v{GX+i}")
        a(f"v_lshlrev_b32 v{G0+4}, 16, v{GW+i}")
        a(f"v_and_b32 v{G0+5}, 0xffff0000, v{GW+i}")
        a(f"v_mul_f32 v{G0+2}, v{G0+2}, v{G0+4}")
        a(f"v_mul_f32 v{G0+3}, v{G0+3}, v{G0+5}")
        a(f"v_cvt_pk_bf16_f32 v{G0+2}, v{G0+2}, v{G0+3}")
        a(f"v_lshlrev_b32 v{G0+3}, 16, v{G0+2}")
        a(f"v_and_b32 v{G0+2}, 0xffff0000, v{G0+2}")
        a(f"v_add_f32 v{G0}, v{G0}, v{G0+3}")
        a(f"v_add_f32 v{G0+1}, v{G0+1}, v{G0+2}")
    a(f"v_add_f32 v{G0}, v{G0}, v{G0+1}")
    for x in (1, 2, 4, 8):
        a(f"ds_swizzle_b32 v{G0+1}, v{G0} offset:{(x << 10) | 0x1f}")
        a("s_waitcnt lgkmcnt(0)")
        a(f"v_add_f32 v{G0}, v{G0}, v{G0+1}")
    a(f"v_cvt_pk_bf16_f32 v{G0}, v{G0}, v{G0}")
    a(f"v_lshlrev_b32 v{G0}, 16, v{G0}")
    a(f"v_mul_f32 v{G0}, s{S_NL}, v{G0}")
    a(f"v_exp_f32 v{G0}, v{G0}")
    a("s_nop 0")
    a(f"v_add_f32 v{G0}, 1.0, v{G0}")
    a(f"v_rcp_f32 v{G0}, v{G0}")
    a("s_nop 0")
    a(f"v_cvt_pk_bf16_f32 v{G0}, v{G0}, v{G0}")
    a(f"v_lshlrev_b32 v{G0}, 16, v{G0}")
    a(f"v_lshlrev_b32 v{t}, 2, v{t}")
    a(f"v_add_u32 v{t}, {WS_G}, v{t}")
    a(f"v_and_b32 v{t+1}, 15, v{V_LANE}")
    a(f"v_cmp_eq_u32 vcc, 0, v{t+1}")
    a(f"s_and_saveexec_b64 s[{S_T+2}:{S_T+3}], vcc")
    a(f"buffer_store_dword v{G0}, v{t}, s[{S_WS}:{S_WS+3}], 0 offen{SC()}")
    a(f"s_mov_b64 exec, s[{S_T+2}:{S_T+3}]")
    a.label("K1_gdone")

def gen_epilogue_B(a):
    t = V_T0
    a("s_barrier")
    a(f"v_and_b32 v{t}, 15, v{V_LANE}")
    a(f"v_mul_u32_u24 v{t+1}, {QROW}, v{t}")
    a(f"v_lshl_add_u32 v{t+1}, v{V_GRP}, 6, v{t+1}")
    a(f"s_mul_i32 s{S_T}, s{S_RG}, {32*QROW}")
    a(f"s_mul_i32 s{S_T+1}, s{S_CG}, {LK + 16*QROW}")
    a(f"s_add_u32 s{S_T+1}, s{S_T+1}, s{S_T}")
    a(f"v_add_u32 v{t+2}, s{S_T+1}, v{t+1}")
    a(f"s_mul_i32 s{S_T+1}, s{S_CG}, 24")
    a(f"s_add_u32 s{S_T+1}, s{S_T+1}, s{S_T}")
    a(f"s_add_u32 s{S_T+1}, s{S_T+1}, {LV + 16*QROW}")
    a(f"v_add_u32 v{t+3}, s{S_T+1}, v{t+1}")
    PB = 28
    for i in range(10, 16):
        a(f"v_mov_b32 v{PB+i}, 0")
    for rt in range(2):
        base = acc(rt, 0)
        for i in range(10):
            a(f"v_cvt_pk_bf16_f32 v{PB+i}, v{base+2*i}, v{base+2*i+1}")
        for k in range(4):
            a(f"ds_write_b128 v{t+2}, {v(PB+4*k,4)} offset:{rt*16*QROW+16*k}")
        base = acc(rt, 5)
        for i in range(6):
            a(f"v_cvt_pk_bf16_f32 v{PB+16+i}, v{base+2*i}, v{base+2*i+1}")
        for k in range(3):
            a(f"ds_write_b64 v{t+3}, {v(PB+16+2*k,2)} offset:{rt*16*QROW+8*k}")
        nop(a, 2)
    for k in range(3):
        a(f"ds_write_b64 v{t+1}, {v(PB+10,2)} offset:{LK + 40 + 8*k}")
    for h in range(2):
        a(f"s_add_u32 s{S_T}, s{S_WAVE}, {8*h}")
        a(f"s_cmp_ge_u32 s{S_T}, 10")
        a(f"s_cselect_b32 s{S_T}, s{S_WAVE}, s{S_T}")
        a(f"s_cmp_ge_u32 s{S_T}, 5")
        a(f"s_mov_b32 s{S_T+2}, {LK}")
        a(f"s_cselect_b32 s{S_T+1}, {LV-40}, s{S_T+2}")
        a(f"s_lshl_b32 s{S_T}, s{S_T}, 3")
        a(f"s_add_u32 s{S_T}, s{S_T}, s{S_T+1}")
        a(f"v_add_u32 v{t+4}, s{S_T}, v{t+1}")
        a(f"v_cvt_pk_bf16_f32 v{PB}, v{V_HACC+4*h}, v{V_HACC+4*h+1}")
        a(f"v_cvt_pk_bf16_f32 v{PB+1}, v{V_HACC+4*h+2}, v{V_HACC+4*h+3}")
        a(f"ds_write_b64 v{t+4}, {v(PB,2)}")
        nop(a, 2)
    a(f"v_lshlrev_b32 v{t+3}, 2, v{V_GRP}")
    a(f"v_sub_u32 v{t+3}, v{t}, v{t+3}")
    for r in range(4):
        a(f"v_sub_u32 v{t+4}, {r-2}, v{t+3}")
        a(f"v_and_b32 v{t+4}, 0x80000001, v{t+4}")
        a(f"v_cmp_eq_u32 s[{S_MASK+2*r}:{S_MASK+2*r+1}], 0, v{t+4}")
        a(f"v_subrev_u32 v{t+4}, {r}, v{t+3}")
        a(f"v_and_b32 v{t+4}, 0x80000001, v{t+4}")
        a(f"v_cmp_eq_u32 s[{S_MASK+8+2*r}:{S_MASK+8+2*r+1}], 0, v{t+4}")
    a(f"s_or_b32 s{S_T}, s{S_I}, s{S_WAVE}")
    a(f"s_cmp_eq_u32 s{S_T}, 0")
    for r in range(4):
        a(f"s_cselect_b64 s[{S_MASK+2*r}:{S_MASK+2*r+1}], 0, s[{S_MASK+2*r}:{S_MASK+2*r+1}]")
    a(f"v_mul_u32_u24 v{t+1}, {QROW}, v{t}")
    a(f"v_lshl_add_u32 v{t+1}, v{V_GRP}, 4, v{t+1}")
    a(f"s_mul_i32 s{S_T}, s{S_WAVE}, {16*QROW}")
    a(f"v_add_u32 v{t+1}, s{S_T}, v{t+1}")
    a(f"v_add_u32 v{t+2}, {LK}, v{t+1}")
    a(f"v_lshrrev_b32 v{t+3}, 2, v{V_LANE}")
    a(f"v_mul_u32_u24 v{t+3}, {QROW}, v{t+3}")
    a(f"v_and_b32 v{t+4}, 3, v{V_LANE}")
    a(f"v_lshl_add_u32 v{t+3}, v{t+4}, 3, v{t+3}")
    a(f"v_add_u32 v{t+3}, s{S_T}, v{t+3}")
    a(f"v_add_u32 v{t+3}, {LV}, v{t+3}")
    a(f"s_mov_b32 s{S_T+4}, 0x3e64f92e")
    a(f"s_mov_b32 s{S_T+5}, 0xff000000")
    OA = 232
    a(f"s_lshl_b32 s{S_T}, s{S_I}, 3")
    a(f"s_add_u32 s{S_T}, s{S_T}, s{S_WAVE}")
    a(f"s_mul_i32 s{S_T}, s{S_T}, 20480")
    a(f"s_add_u32 s{S_T}, s{S_T}, {WS_OB}")
    a(f"s_mul_i32 s{S_T+1}, s{S_J}, 80")
    a(f"v_lshlrev_b32 v{t+4}, 2, v{V_GRP}")
    a(f"v_add_u32 v{t+4}, s{S_T+1}, v{t+4}")
    a(f"v_lshlrev_b32 v{t+5}, 4, v{t}")
    a(f"v_add_u32 v{t+5}, s{S_T}, v{t+5}")
    for h in range(4):
        for td in range(2):
            o = OA + h * 2 + td
            a(f"v_add_u32 v{t+6}, {20*h+16*td}, v{t+4}")
            a(f"v_lshrrev_b32 v{t+7}, 5, v{t+6}")
            a(f"v_lshl_add_u32 v{o}, v{t+7}, 10, v{t+5}")
            a(f"v_bfe_u32 v{t+7}, v{t+6}, 3, 2")
            a(f"v_lshl_add_u32 v{o}, v{t+7}, 8, v{o}")
            a(f"v_bfe_u32 v{t+7}, v{t+6}, 2, 1")
            a(f"v_lshl_add_u32 v{o}, v{t+7}, 3, v{o}")
    a("s_waitcnt lgkmcnt(0)")
    stamp(a)
    a("s_barrier")
    RB = 76
    for h in range(4):
        R = RB + h * 28
        QF, KA, KB_, VF = R, R + 4, R + 8, R + 12
        a(f"ds_read_b128 {v(QF,4)}, v{t+1} offset:{LQ + h*64}")
        a(f"ds_read_b128 {v(KA,4)}, v{t+2} offset:{h*64}")
        a(f"ds_read_b128 {v(KB_,4)}, v{t+2} offset:{16*QROW + h*64}")
        for td in range(2):
            a(f"ds_read_b64_tr_b16 {v(VF+4*td,2)}, v{t+3} offset:{h*64 + 32*td}")
            a(f"ds_read_b64_tr_b16 {v(VF+4*td+2,2)}, v{t+3} offset:{16*QROW + h*64 + 32*td}")
        if h == 1:
            a("s_waitcnt lgkmcnt(0)")
    a("s_waitcnt lgkmcnt(0)")
    for h in range(4):
        R = RB + h * 28
        QF, KA, KB_, VF = R, R + 4, R + 8, R + 12
        SA, SB = R + 20, R + 24
        a(f"v_mfma_f32_16x16x32_bf16 {v(SA,4)}, {v(KA,4)}, {v(QF,4)}, 0")
        a(f"v_mfma_f32_16x16x32_bf16 {v(SB,4)}, {v(KB_,4)}, {v(QF,4)}, 0")
    nop(a, 8)
    stamp(a)
    TT = 28
    for h in range(4):
        R = RB + h * 28
        QF, KA, KB_, VF = R, R + 4, R + 8, R + 12
        S = R + 20
        T8 = TT
        for i in range(4):
            a(f"v_cvt_pk_bf16_f32 v{T8+i}, v{S+2*i}, v{S+2*i+1}")
        for i in range(4):
            a(f"v_lshlrev_b32 v{S+2*i}, 16, v{T8+i}")
            a(f"v_and_b32 v{S+2*i+1}, 0xffff0000, v{T8+i}")
        for i in range(8):
            a(f"v_mul_f32 v{S+i}, s{S_T+4}, v{S+i}")
        for i in range(4):
            a(f"v_cvt_pk_bf16_f32 v{T8+i}, v{S+2*i}, v{S+2*i+1}")
        for i in range(4):
            a(f"v_lshlrev_b32 v{S+2*i}, 16, v{T8+i}")
            a(f"v_and_b32 v{S+2*i+1}, 0xffff0000, v{T8+i}")
        a(f"v_mov_b32 v{T8+4}, s{S_T+5}")
        for i in range(8):
            mk = S_MASK + 2 * i
            a(f"v_cndmask_b32 v{S+i}, v{T8+4}, v{S+i}, s[{mk}:{mk+1}]")
        m = T8 + 5
        a(f"v_max3_f32 v{m}, v{S}, v{S+1}, v{S+2}")
        a(f"v_max3_f32 v{m}, v{m}, v{S+3}, v{S+4}")
        a(f"v_max3_f32 v{m}, v{m}, v{S+5}, v{S+6}")
        a(f"v_max_f32 v{m}, v{m}, v{S+7}")
        a(f"v_mov_b32 v{m+1}, v{m}")
        nop(a, 2)
        a(f"v_permlane16_swap_b32 v{m}, v{m+1}")
        nop(a, 2)
        a(f"v_max_f32 v{m}, v{m}, v{m+1}")
        a(f"v_mov_b32 v{m+1}, v{m}")
        nop(a, 2)
        a(f"v_permlane32_swap_b32 v{m}, v{m+1}")
        nop(a, 2)
        a(f"v_max_f32 v{m}, v{m}, v{m+1}")
        a(f"v_mul_f32 v{m}, s{S_NL}, v{m}")
        for i in range(8):
            a(f"v_fma_f32 v{S+i}, v{S+i}, s{S_L}, v{m}")
        for i in range(8):
            a(f"v_exp_f32 v{S+i}, v{S+i}")
        a("s_nop 0")
        sm = T8 + 5
        a(f"v_add_f32 v{sm}, v{S}, v{S+1}")
        a(f"v_add_f32 v{sm+1}, v{S+2}, v{S+3}")
        a(f"v_add_f32 v{sm}, v{sm}, v{S+4}")
        a(f"v_add_f32 v{sm+1}, v{sm+1}, v{S+5}")
        a(f"v_add_f32 v{sm}, v{sm}, v{S+6}")
        a(f"v_add_f32 v{sm+1}, v{sm+1}, v{S+7}")
        a(f"v_add_f32 v{sm}, v{sm}, v{sm+1}")
        a(f"v_mov_b32 v{sm+1}, v{sm}")
        nop(a, 2)
        a(f"v_permlane16_swap_b32 v{sm}, v{sm+1}")
        nop(a, 2)
        a(f"v_add_f32 v{sm}, v{sm}, v{sm+1}")
        a(f"v_mov_b32 v{sm+1}, v{sm}")
        nop(a, 2)
        a(f"v_permlane32_swap_b32 v{sm}, v{sm+1}")
        nop(a, 2)
        a(f"v_add_f32 v{sm}, v{sm}, v{sm+1}")
        a(f"v_rcp_f32 v{sm}, v{sm}")
        a("s_nop 0")
        for i in range(8):
            a(f"v_mul_f32 v{S+i}, v{S+i}, v{sm}")
        for i in range(4):
            a(f"v_cvt_pk_bf16_f32 v{QF+i}, v{S+2*i}, v{S+2*i+1}")
        nop(a, 2)
        for td in range(2):
            a(f"v_mfma_f32_16x16x32_bf16 {v(S+4*td,4)}, {v(VF+4*td,4)}, {v(QF,4)}, 0")
    nop(a, 8)
    for h in range(4):
        R = RB + h * 28
        S = R + 20
        for i in range(4):
            a(f"v_cvt_pk_bf16_f32 v{R+i}, v{S+2*i}, v{S+2*i+1}")
        a(f"buffer_store_dwordx2 {v(R,2)}, v{OA+2*h}, s[{S_WS}:{S_WS+3}], 0 offen{SC()}")
    a("s_mov_b64 exec, 0xffff")
    for h in range(4):
        R = RB + h * 28
        a(f"buffer_store_dwordx2 {v(R+2,2)}, v{OA+2*h+1}, s[{S_WS}:{S_WS+3}], 0 offen{SC()}")
    a("s_mov_b64 exec, -1")
    if not GATE_IN_A:
        gen_gate(a)

def gen_wo_prefetch(a, lab):
    if not MEGA: return
    t = V_X + 8
    a(f"s_cmp_ge_u32 s{S_WAVE}, 5")
    a(f"s_cbranch_scc1 {lab}")
    a(f"s_load_dwordx2 s[{S_PTR}:{S_PTR+1}], s[0:1], 24")
    a(f"s_load_dwordx2 s[{S_PTR+2}:{S_PTR+3}], s[0:1], 48")
    a(f"s_lshr_b32 s{S_T}, s2, 3")
    a(f"s_and_b32 s{S_T+1}, s{S_T}, 3")
    a(f"s_lshr_b32 s{S_T}, s{S_T}, 2")
    a(f"s_mul_i32 s{S_T}, s{S_T}, 160")
    a(f"s_and_b32 s{S_T}, s{S_T}, 0xffffff80")
    a(f"s_mul_i32 s{S_T+1}, s{S_T+1}, 160")
    a(f"s_lshl_b32 s{S_T+2}, s{S_WAVE}, 5")
    a(f"s_add_u32 s{S_T+1}, s{S_T+1}, s{S_T+2}")
    a(f"s_mul_i32 s{S_T+1}, s{S_T+1}, 1280")
    a(f"s_add_u32 s{S_T}, s{S_T}, s{S_T+1}")
    a(f"v_lshrrev_b32 v{t}, 1, v{V_LANE}")
    a(f"v_mul_u32_u24 v{t}, 1280, v{t}")
    a(f"v_and_b32 v{t+1}, 1, v{V_LANE}")
    a(f"v_lshl_add_u32 v{t}, v{t+1}, 7, v{t}")
    a(f"v_add_u32 v{t}, s{S_T}, v{t}")
    a("s_waitcnt lgkmcnt(0)")
    srd(a, S_MASK, S_PTR, 640 * 1280)
    srd(a, S_MASK + 4, S_PTR + 2, 640 * 1280)
    a(f"buffer_load_dword v{V_X}, v{t}, s[{S_MASK}:{S_MASK+3}], 0 offen")
    a(f"buffer_load_dword v{V_X+1}, v{t}, s[{S_MASK+4}:{S_MASK+7}], 0 offen")
    a(f"buffer_load_dword v{V_X+2}, v{t}, s[{S_MASK}:{S_MASK+3}], 0 offen offset:640")
    a(f"buffer_load_dword v{V_X+3}, v{t}, s[{S_MASK+4}:{S_MASK+7}], 0 offen offset:640")
    a.label(lab)

def fl1_addr(a):
    a(f"s_add_u32 s{S_T+1}, s{S_I}, 8")
    a(f"s_cmp_eq_u32 s{S_BR}, 0")
    a(f"s_cselect_b32 s{S_T}, s{S_J}, s{S_T+1}")
    a(f"s_cselect_b32 s{S_T+1}, s{S_I}, s{S_J}")
    a(f"s_lshl_b32 s{S_T}, s{S_T}, 7")
    a(f"s_lshl_b32 s{S_T+1}, s{S_T+1}, 2")
    a(f"s_add_u32 s{S_T}, s{S_T}, s{S_T+1}")
    a(f"s_add_u32 s{S_T}, s{S_T}, {WS_FL + 0x1000}")

def gen_started(a, lab):
    if not MEGA: return
    a(f"s_cmp_lg_u32 s{S_WAVE}, 7")
    a(f"s_cbranch_scc1 {lab}")
    a(f"s_load_dwordx2 s[{S_PTR}:{S_PTR+1}], s[0:1], 72")
    a("s_waitcnt lgkmcnt(0)")
    srd(a, S_PTR + 4, S_PTR, 256)
    a(f"v_mov_b32 v2, 0")
    a(f"v_mov_b32 v3, 1")
    a("s_mov_b64 exec, 1")
    a(f"buffer_atomic_add v3, v2, s[{S_PTR+4}:{S_PTR+7}], 0 offen sc1")
    a("s_mov_b64 exec, -1")
    a.label(lab)

V_CHK = 19
def gen_check_issue(a, lab):
    if not (MEGA and WOT): return
    a(f"v_mov_b32 v{V_CHK}, 0")
    a(f"s_cmp_lg_u32 s{S_WAVE}, 7")
    a(f"s_cbranch_scc1 {lab}")
    a(f"s_load_dwordx2 s[{S_PTR}:{S_PTR+1}], s[0:1], 72")
    a("s_waitcnt lgkmcnt(0)")
    srd(a, S_PTR + 4, S_PTR, 256)
    a(f"buffer_load_dword v{V_CHK}, v{V_CHK}, s[{S_PTR+4}:{S_PTR+7}], 0 offen sc1")
    a.label(lab)

def gen_signal(a, idx_sreg, base, lab):
    if WOT:
        a(f"s_cmp_lg_u32 s{S_WAVE}, 7")
        a(f"s_cbranch_scc1 {lab}_c")
        a("s_waitcnt vmcnt(0)")
        a(f"v_readfirstlane_b32 s{S_T}, v{V_CHK}")
        a("s_nop 3")
        a(f"s_cmp_ge_u32 s{S_T}, 256")
        a(f"s_cbranch_scc1 {lab}_c")
        a(f"s_load_dwordx2 s[{S_PTR}:{S_PTR+1}], s[0:1], 72")
        a("s_waitcnt lgkmcnt(0)")
        srd(a, S_PTR + 4, S_PTR, 256)
        a(f"v_mov_b32 v2, 0")
        a(f"s_mov_b32 s{S_T+2}, 0")
        a.label(f"{lab}_l")
        a(f"buffer_load_dword v3, v2, s[{S_PTR+4}:{S_PTR+7}], 0 offen sc1")
        a("s_waitcnt vmcnt(0)")
        a(f"v_readfirstlane_b32 s{S_T}, v3")
        a("s_nop 3")
        a(f"s_cmp_ge_u32 s{S_T}, 256")
        a(f"s_cbranch_scc1 {lab}_c")
        a(f"s_add_u32 s{S_T+2}, s{S_T+2}, 1")
        a(f"s_cmp_lt_u32 s{S_T+2}, 0x40000")
        a(f"s_cbranch_scc0 {lab}_c")
        a("s_sleep 2")
        a(f"s_branch {lab}_l")
        a.label(f"{lab}_c")
    a("s_waitcnt vmcnt(0) lgkmcnt(0)")
    a("s_barrier")
    a(f"s_cmp_lg_u32 s{S_WAVE}, 0")
    a(f"s_cbranch_scc1 {lab}")
    fl1_addr(a)
    a(f"v_mov_b32 v2, s{S_T}")
    a(f"v_mov_b32 v3, 1")
    a("s_mov_b64 exec, 1")
    a(f"buffer_store_dword v3, v2, s[{S_WS}:{S_WS+3}], 0 offen sc1")
    a("s_mov_b64 exec, -1")
    a.label(lab)

def gen_k1(a, name="k1_kernel", tail=None):
    kernel_header(a, name)
    NST[0] = 0
    stamp(a)
    if START_RT:
        a("s_memrealtime s[100:101]")
    gen_prologue(a)
    if MEGA:
        a(f"s_cmp_lg_u32 s{S_WAVE}, 7")
        a("s_cbranch_scc1 K1_fc")
        a(f"s_lshl_b32 s{S_T}, s2, 2")
        a(f"s_add_u32 s{S_T}, s{S_T}, {WS_FL}")
        a(f"v_mov_b32 v2, s{S_T}")
        a(f"v_mov_b32 v3, 0")
        a("s_mov_b64 exec, 1")
        a(f"buffer_store_dword v3, v2, s[{S_WS}:{S_WS+3}], 0 offen sc1")
        fl1_addr(a)
        a(f"v_mov_b32 v2, s{S_T}")
        a(f"buffer_store_dword v3, v2, s[{S_WS}:{S_WS+3}], 0 offen sc1")
        a("s_mov_b64 exec, -1")
        a.label("K1_fc")
    a(f"s_cmp_eq_u32 s{S_BR}, 0")
    a("s_cbranch_scc0 K1_B")
    gen_wphi_issue(a)
    gen_mainloop(a, halo=False, pre_hook=lambda: gen_wphi_stage(a))
    stamp(a)
    gen_check_issue(a, "K1_ciA")
    gen_epilogue_A(a)
    if GATE_IN_A:
        gen_gate(a)
    stamp_flush(a)
    if MEGA:
        gen_signal(a, S_J, 0, "K1_sA")
        a("s_branch K1_tail")
    else:
        a("s_endpgm")
    a.label("K1_B")
    NST[0] = 1
    gen_mainloop(a, halo=True)
    stamp(a)
    gen_check_issue(a, "K1_ciB")
    gen_epilogue_B(a)
    stamp_flush(a)
    if MEGA:
        gen_signal(a, S_I, 32, "K1_sB")
        a.label("K1_tail")
        tail(a)
    a.label("K1_done")
    a("s_endpgm")
    return name
```

```python
from common import *
from k2 import VM, nop

WS_OA = 0x1800000

V_LANE = 1; V_T = 2; V_GRP = 10; V_WB = 11; V_OB0 = 12; V_OB1 = 13; V_G = 14
V_OA0 = 16; V_OA1 = 17
V_DMA = 18
V_RING = 24
V_OBF = 48
V_OAF = 88
V_ACCB = 128
V_ACCA = 168
V_P = 88
S_W = 4; S_WS = 12; S_OUT = 16; S_DBG = 20
S_I = 24; S_JC = 25; S_WAVE = 26; S_RH = 27; S_KQ = 28; S_ROT = 29; S_T = 30; S_SOFF = 38; S_PTR = 40
S_WA = 52; S_WB_ = 56; S_H = 60; S_RB = 61; S_E = 62
K4_LDS = 163840
LKV = 31 * 5120
RING = 6; D = 5
STAMPS = False
WOT = False
S_ST = 64
NST = [0]
RT = False
def stamp(a):
    if STAMPS:
        k = NST[0]; NST[0] += 1
        a(f"{'s_memrealtime' if RT else 's_memtime'} s[{S_ST+2*k}:{S_ST+2*k+1}]")
def stamp_flush(a):
    if STAMPS:
        n = NST[0]
        a("s_waitcnt lgkmcnt(0) vmcnt(0)")
        a(f"{'s_memrealtime' if RT else 's_memtime'} s[{S_ST+2*n}:{S_ST+2*n+1}]")
        a("s_waitcnt lgkmcnt(0)")
        a(f"s_mov_b32 s{S_ST+2*n+2}, s100")
        n += 1
        a(f"s_lshl_b32 s{S_T}, s2, 3")
        a(f"s_add_u32 s{S_T}, s{S_T}, s{S_WAVE}")
        a(f"s_lshl_b32 s{S_T}, s{S_T}, 6")
        a(f"s_add_u32 s{S_T}, s{S_T}, {WS_DBG + 0x100000}")
        a(f"v_mov_b32 v2, s{S_T}")
        a("s_mov_b64 exec, 1")
        for k in range(n + 1):
            a(f"v_mov_b32 v3, s{S_ST+2*k}")
            a(f"buffer_store_dword v3, v2, s[{S_WS}:{S_WS+3}], 0 offen offset:{4*k}")
            a("s_nop 1")
        a("s_mov_b64 exec, -1")

def slotA(ks):
    return 20 + ks if ks < 11 else ks - 11

def gen_k4(a, standalone=True):
    name = "k4_kernel"
    if standalone:
        kernel_header(a, name)
    vm = VM(a)
    t = V_T
    NST[0] = 0
    stamp(a)
    if standalone:
        a("s_cmp_ge_u32 s2, 256")
        a("s_cbranch_scc1 K4_done")
    a(f"s_load_dwordx2 s[{S_PTR}:{S_PTR+1}], s[0:1], 24")
    a(f"s_load_dwordx2 s[{S_PTR+2}:{S_PTR+3}], s[0:1], 48")
    a(f"s_load_dwordx4 s[{S_PTR+4}:{S_PTR+7}], s[0:1], 64")
    a(f"s_load_dwordx2 s[{S_PTR+8}:{S_PTR+9}], s[0:1], 80")
    a(f"s_and_b32 s{S_E}, s2, 7")
    a(f"s_lshr_b32 s{S_T+1}, s2, 3")
    a(f"s_lshl_b32 s{S_I}, s{S_E}, 2")
    a(f"s_and_b32 s{S_ROT}, s{S_T+1}, 3")
    a(f"s_add_u32 s{S_I}, s{S_I}, s{S_ROT}")
    a(f"s_lshr_b32 s{S_JC}, s{S_T+1}, 2")
    a(f"s_and_b32 s{S_H}, s2, 31")
    a(f"s_lshr_b32 s{S_RB}, s2, 5")
    a(f"v_lshrrev_b32 v{t}, 6, v0")
    a(f"v_and_b32 v{V_LANE}, 63, v0")
    a(f"v_readfirstlane_b32 s{S_WAVE}, v{t}")
    a(f"v_lshrrev_b32 v{V_GRP}, 4, v{V_LANE}")
    a(f"v_mul_u32_u24 v{t}, 6554, v0")
    a(f"v_lshrrev_b32 v{t}, 16, v{t}")
    a(f"v_mul_u32_u24 v{t+1}, 10, v{t}")
    a(f"v_sub_u32 v{t+1}, v0, v{t+1}")
    a(f"v_mul_u32_u24 v{t+2}, 192, v{t}")
    a(f"v_lshl_add_u32 v{t+2}, v{t+1}, 4, v{t+2}")
    a(f"v_mul_u32_u24 v{t+3}, 80, v{t}")
    a(f"v_lshl_add_u32 v{t+3}, v{t+1}, 3, v{t+3}")
    a(f"v_add_u32 v{t+3}, {LKV}, v{t+3}")
    a(f"s_mul_i32 s{S_T}, s{S_H}, 6144")
    a(f"s_add_u32 s{S_T}, s{S_T}, {WS_PART}")
    a(f"v_add_u32 v{t+2}, s{S_T}, v{t+2}")
    a(f"s_and_b32 s{S_RH}, s{S_WAVE}, 3")
    a(f"s_lshr_b32 s{S_KQ}, s{S_WAVE}, 2")
    a("s_waitcnt lgkmcnt(0)")
    srd(a, S_WS, S_PTR + 8, WS_SIZE)
    SC = " sc1" if not standalone else ""
    a(f"s_mul_i32 s{S_T+1}, s{S_JC}, 160")
    a(f"s_mov_b32 s{S_T+2}, 6554")
    R0 = V_RING
    for n in range(5):
        a(f"v_add_u32 v{R0}, {n*64}, v{V_LANE}")
        a(f"v_mul_u32_u24 v{R0+1}, s{S_T+2}, v{R0}")
        a(f"v_lshrrev_b32 v{R0+1}, 16, v{R0+1}")
        a(f"v_mul_u32_u24 v{R0+2}, 10, v{R0+1}")
        a(f"v_sub_u32 v{R0+2}, v{R0}, v{R0+2}")
        a(f"v_lshlrev_b32 v{R0+2}, 4, v{R0+2}")
        a(f"v_add_u32 v{R0+2}, s{S_T+1}, v{R0+2}")
        a(f"v_bfe_u32 v{R0+3}, v{R0+1}, 4, 1")
        a(f"v_bfe_u32 v{R0+4}, v{R0+1}, 2, 2")
        a(f"v_and_b32 v{R0+5}, 3, v{R0+1}")
        a(f"v_lshl_add_u32 v{R0+5}, v{R0+3}, 2, v{R0+5}")
        a(f"v_lshl_add_u32 v{R0+6}, v{R0+4}, 3, v{R0+5}")
        a(f"v_mul_u32_u24 v{R0+6}, 1280, v{R0+6}")
        a(f"v_add_u32 v{V_DMA+n}, v{R0+6}, v{R0+2}")
    if WOT:
        a(f"v_lshlrev_b32 v{V_DMA}, 4, v{V_LANE}")
        a(f"v_add_u32 v{V_DMA+1}, 2048, v{V_DMA}")
    srd(a, S_WA, S_PTR, 640 * 1280)
    srd(a, S_WB_, S_PTR + 2, 640 * 1280)
    srd(a, S_OUT, S_PTR + 4, 2048 * 1280)
    srd(a, S_DBG, S_PTR + 6, 256)
    lbl = [0]
    def wgroup(isA, gi, count=True):
        sr = S_WA if isA else S_WB_
        if isA:
            lo, hi = {0: (0, 7), 1: (7, 11), 2: (11, 18), 3: (18, 20)}[gi]
        else:
            lo, hi = {0: (0, 7), 1: (7, 14), 2: (14, 20)}[gi]
        nb = hi - lo
        lab = None
        if nb < 8:
            lbl[0] += 1; lab = f"K4_w{lbl[0]}"
            a(f"s_cmp_ge_u32 s{S_WAVE}, {nb}")
            a(f"s_cbranch_scc1 {lab}")
        if isA:
            plo, phi = (0, 11) if lo < 11 else (11, 20)
        else:
            plo, phi = 0, 20
        pn = phi - plo
        a(f"s_mul_i32 s{S_T+1}, s{S_ROT}, {pn // 4}")
        a(f"s_add_u32 s{S_T}, s{S_WAVE}, {lo - plo}")
        a(f"s_add_u32 s{S_T}, s{S_T}, s{S_T+1}")
        a(f"s_sub_u32 s{S_T+1}, s{S_T}, {pn}")
        a(f"s_cmp_ge_u32 s{S_T}, {pn}")
        a(f"s_cselect_b32 s{S_T}, s{S_T+1}, s{S_T}")
        a(f"s_add_u32 s{S_T}, s{S_T}, {plo}")
        if WOT:
            a(f"s_add_u32 s{S_SOFF}, s{S_JC}, {0 if isA else 8}")
            a(f"s_mul_i32 s{S_SOFF}, s{S_SOFF}, 20")
            a(f"s_add_u32 s{S_SOFF}, s{S_SOFF}, s{S_T}")
            a(f"s_mul_i32 s{S_SOFF}, s{S_SOFF}, 5120")
            a(f"s_add_u32 s{S_SOFF}, s{S_SOFF}, {0x1C00000}")
        else:
            a(f"s_mul_i32 s{S_SOFF}, s{S_T}, {32*1280}")
        base_slot = (slotA(lo) if isA else lo) - lo
        a(f"s_add_u32 s{S_T}, s{S_T}, {base_slot}" if base_slot >= 0 else f"s_sub_u32 s{S_T}, s{S_T}, {-base_slot}")
        a(f"s_mul_i32 s{S_T+1}, s{S_T}, 5120")
        for n in range(5):
            if WOT:
                if n == 0:
                    a(f"s_mov_b32 m0, s{S_T+1}")
                    a("s_nop 0")
                a(f"buffer_load_dwordx4 v{V_DMA}, s[{S_WS}:{S_WS+3}], s{S_SOFF} offen offset:{n*1024} sc1 lds" if n < 4 else
                  f"buffer_load_dwordx4 v{V_DMA+1}, s[{S_WS}:{S_WS+3}], s{S_SOFF} offen offset:2048 sc1 lds")
                if n == 3:
                    a(f"s_add_u32 m0, s{S_T+1}, 2048")
                    a("s_nop 0")
            else:
                a(f"s_add_u32 m0, s{S_T+1}, {n*1024}")
                a("s_nop 0")
                a(f"buffer_load_dwordx4 v{V_DMA+n}, s[{sr}:{sr+3}], s{S_SOFF} offen lds")
            if nb == 8:
                vm.issue("WA" if isA else "WB")
        if lab:
            a.label(lab)
    wgroup(False, 0); wgroup(False, 1); wgroup(False, 2)
    wgroup(True, 0); wgroup(True, 1)
    if not standalone:
        a(f"s_cmp_lg_u32 s{S_WAVE}, 7")
        a("s_cbranch_scc1 K4_pp")
        if not WOT:
            a(f"v_mov_b32 v{V_RING}, 0")
            a(f"s_mov_b32 s{S_T+2}, 0")
            a.label("K4_p0")
            a(f"buffer_load_dword v{V_RING+1}, v{V_RING}, s[{S_DBG}:{S_DBG+3}], 0 offen sc1")
            a("s_waitcnt vmcnt(0)")
            a(f"v_readfirstlane_b32 s{S_T}, v{V_RING+1}")
            a("s_nop 3")
            a(f"s_cmp_ge_u32 s{S_T}, 256")
            a("s_cbranch_scc1 K4_p1")
            a(f"s_add_u32 s{S_T+2}, s{S_T+2}, 1")
            a(f"s_cmp_lt_u32 s{S_T+2}, 0x40000")
            a("s_cbranch_scc0 K4_p1")
            a("s_sleep 2")
            a("s_branch K4_p0")
            a.label("K4_p1")
        a(f"s_lshr_b32 s{S_T}, s{S_H}, 2")
        a(f"s_lshl_b32 s{S_T}, s{S_T}, 7")
        a(f"s_lshr_b32 s{S_T+1}, s{S_I}, 1")
        a(f"s_add_u32 s{S_T+1}, s{S_T+1}, 8")
        a(f"s_lshl_b32 s{S_T+1}, s{S_T+1}, 7")
        a(f"v_and_b32 v{V_RING}, 15, v{V_LANE}")
        a(f"v_lshlrev_b32 v{V_RING}, 2, v{V_RING}")
        a(f"v_add_u32 v{V_RING}, s{S_T}, v{V_RING}")
        a(f"v_and_b32 v{V_RING+2}, 7, v{V_LANE}")
        a(f"v_lshlrev_b32 v{V_RING+2}, 2, v{V_RING+2}")
        a(f"v_add_u32 v{V_RING+2}, s{S_T+1}, v{V_RING+2}")
        a(f"v_cmp_gt_u32 vcc, 32, v{V_LANE}")
        a("s_nop 1")
        a(f"v_cndmask_b32 v{V_RING}, v{V_RING+2}, v{V_RING}, vcc")
        a(f"v_add_u32 v{V_RING}, {0xE00000 + 0x1000}, v{V_RING}")
        a(f"s_mov_b32 s{S_T+2}, 0")
        a.label("K4_pl")
        a(f"buffer_load_dword v{V_RING+1}, v{V_RING}, s[{S_WS}:{S_WS+3}], 0 offen sc1")
        a("s_waitcnt vmcnt(0)")
        a(f"v_cmp_ne_u32 vcc, 1, v{V_RING+1}")
        a("s_nop 3")
        a("s_cmp_eq_u64 vcc, 0")
        a("s_cbranch_scc1 K4_pp")
        a(f"s_add_u32 s{S_T+2}, s{S_T+2}, 1")
        a(f"s_cmp_lt_u32 s{S_T+2}, 0x40000")
        a("s_cbranch_scc0 K4_pp")
        a("s_sleep 2")
        a("s_branch K4_pl")
        a.label("K4_pp")
        a("s_barrier")
        stamp(a)
    PB = V_P
    PQ = V_P + 64
    N = V_P + 80
    a("v_cmp_gt_u32 vcc, 210, v0")
    a(f"s_and_saveexec_b64 s[{S_T+2}:{S_T+3}], vcc")
    a("s_cbranch_execz K4_a")
    for rt in range(16):
        a(f"s_mov_b32 s{S_T+4}, {rt*32*6144}")
        a(f"buffer_load_dwordx4 {v(PB+4*rt,4)}, v{t+2}, s[{S_WS}:{S_WS+3}], s{S_T+4} offen{SC}")
    a.label("K4_a")
    a(f"s_mov_b64 exec, s[{S_T+2}:{S_T+3}]")
    for i in range(2):
        for k in range(4):
            a(f"v_mov_b32 v{PQ+(i*2+1)*4+k}, 0")
    a(f"s_lshl_b32 s{S_T}, s{S_RB}, 4")
    a(f"s_lshl_b32 s{S_T+1}, s{S_WAVE}, 1")
    a(f"s_add_u32 s{S_T}, s{S_T}, s{S_T+1}")
    a(f"s_lshl_b32 s{S_T+1}, s{S_T}, 5")
    a(f"s_add_u32 s{S_T+1}, s{S_T+1}, s{S_H}")
    a(f"s_mul_i32 s{S_T+1}, s{S_T+1}, 1280")
    a(f"s_add_u32 s{S_T+1}, s{S_T+1}, {WS_PHIQ}")
    a(f"v_lshlrev_b32 v{t+4}, 4, v{V_LANE}")
    a(f"v_add_u32 v{t+5}, s{S_T+1}, v{t+4}")
    for i in range(2):
        a(f"s_mov_b32 s{S_T+4}, {i*32*1280}")
        a(f"buffer_load_dwordx4 {v(PQ+(i*2)*4,4)}, v{t+5}, s[{S_WS}:{S_WS+3}], s{S_T+4} offen{SC}")
        vm.issue("PQ")
    a("s_mov_b64 exec, 0xffff")
    for i in range(2):
        a(f"s_mov_b32 s{S_T+4}, {i*32*1280}")
        a(f"buffer_load_dwordx4 {v(PQ+(i*2+1)*4,4)}, v{t+5}, s[{S_WS}:{S_WS+3}], s{S_T+4} offen offset:1024{SC}")
        vm.issue("PQ")
    a("s_mov_b64 exec, -1")
    a(f"s_mul_i32 s{S_T+1}, s{S_T}, 20480")
    a(f"s_add_u32 s{S_T+1}, s{S_T+1}, {WS_OA}")
    a(f"s_mul_i32 s{S_T+4}, s{S_H}, 20")
    a(f"v_and_b32 v{t+5}, 15, v{V_LANE}")
    a(f"v_lshlrev_b32 v{t+5}, 4, v{t+5}")
    a(f"v_add_u32 v{t+5}, s{S_T+1}, v{t+5}")
    a(f"v_lshlrev_b32 v{t+6}, 2, v{V_GRP}")
    a(f"v_add_u32 v{t+6}, s{S_T+4}, v{t+6}")
    for td in range(2):
        o = V_OA0 + td
        a(f"v_add_u32 v{t+7}, {16*td}, v{t+6}")
        a(f"v_lshrrev_b32 v{t}, 5, v{t+7}")
        a(f"v_lshl_add_u32 v{o}, v{t}, 10, v{t+5}")
        a(f"v_bfe_u32 v{t}, v{t+7}, 3, 2")
        a(f"v_lshl_add_u32 v{o}, v{t}, 8, v{o}")
        a(f"v_bfe_u32 v{t}, v{t+7}, 2, 1")
        a(f"v_lshl_add_u32 v{o}, v{t}, 3, v{o}")
    a(f"s_lshl_b32 s{S_T}, s{S_I}, 2")
    a(f"s_add_u32 s{S_T}, s{S_T}, s{S_RH}")
    a(f"s_mul_i32 s{S_T+1}, s{S_T}, 20")
    a(f"s_mul_i32 s{S_T+2}, s{S_KQ}, 10")
    a(f"s_add_u32 s{S_T+1}, s{S_T+1}, s{S_T+2}")
    a(f"s_lshl_b32 s{S_T+1}, s{S_T+1}, 10")
    a(f"v_add_u32 v{V_OB0}, s{S_T+1}, v{t+4}")
    def o_loads(dst, base, tag, sc):
        for ks in range(10):
            a(f"s_mov_b32 s{S_SOFF+1}, {base + ks*1024}")
            a(f"buffer_load_dwordx4 {v(dst+ks*4,4)}, v{V_OB0}, s[{S_WS}:{S_WS+3}], s{S_SOFF+1} offen{sc}")
            vm.issue(tag)
    o_loads(V_OBF, WS_OB, "OB", SC)
    def g_loads():
        a(f"s_lshl_b32 s{S_T}, s{S_I}, 6")
        a(f"s_lshl_b32 s{S_T+1}, s{S_RH}, 4")
        a(f"s_add_u32 s{S_T}, s{S_T}, s{S_T+1}")
        a(f"v_and_b32 v{t}, 15, v{V_LANE}")
        a(f"v_add_u32 v{t}, s{S_T}, v{t}")
        a(f"v_mov_b32 v{V_G+1}, v{t}")
        a(f"v_lshlrev_b32 v{t}, 2, v{t}")
        a(f"v_add_u32 v{t}, {WS_G}, v{t}")
        a(f"buffer_load_dword v{V_G}, v{t}, s[{S_WS}:{S_WS+3}], 0 offen{SC}")
    a(f"v_mov_b32 v{t}, 0")
    a(f"v_mov_b32 v{t+1}, 0")
    a(f"v_lshlrev_b32 v{t+7}, 3, v{V_LANE}")
    a(f"v_add_u32 v{t+7}, {LKV + 1680}, v{t+7}")
    a(f"ds_write_b64 v{t+7}, {v(t,2)}")
    a(f"v_and_b32 v{t+5}, 15, v{V_LANE}")
    a(f"v_mul_u32_u24 v{t+6}, 80, v{t+5}")
    a(f"v_lshl_add_u32 v{t}, v{V_GRP}, 4, v{t+6}")
    a(f"v_add_u32 v{t}, {LKV}, v{t}")
    a(f"v_add_u32 v{t+6}, 16, v{t+5}")
    a(f"v_min_u32 v{t+6}, 20, v{t+6}")
    a(f"v_mul_u32_u24 v{t+6}, 80, v{t+6}")
    a(f"v_lshl_add_u32 v{t+1}, v{V_GRP}, 4, v{t+6}")
    a(f"v_add_u32 v{t+1}, {LKV}, v{t+1}")
    stamp(a)
    a("v_cmp_gt_u32 vcc, 210, v0")
    a(f"s_and_saveexec_b64 s[{S_T+2}:{S_T+3}], vcc")
    a("s_cbranch_execz K4_b")
    a(f"s_waitcnt vmcnt({len([x for x in vm.q if x not in ('WB', 'WA')])})")
    for rt in range(1, 16):
        for k in range(4):
            a(f"v_add_f32 v{PB+k}, v{PB+k}, v{PB+4*rt+k}")
    a(f"v_cvt_pk_bf16_f32 v{PB}, v{PB}, v{PB+1}")
    a(f"v_cvt_pk_bf16_f32 v{PB+1}, v{PB+2}, v{PB+3}")
    a(f"ds_write_b64 v{t+3}, {v(PB,2)}")
    a.label("K4_b")
    a(f"s_mov_b64 exec, s[{S_T+2}:{S_T+3}]")
    a("s_waitcnt lgkmcnt(0)")
    a("s_barrier")
    KF = PB
    for tl in range(2):
        for ks in range(2):
            a(f"ds_read_b128 {v(KF+(tl*2+ks)*4,4)}, v{t+tl} offset:{ks*64}")
    a(f"s_mov_b32 s{S_T+7}, 0x358637bd")
    vm.wait("PQ")
    a("s_waitcnt lgkmcnt(0)")
    for i in range(2):
        for tl in range(2):
            a(f"v_mfma_f32_16x16x32_bf16 {v(N+i*8+tl*4,4)}, {v(KF+(tl*2)*4,4)}, {v(PQ+(i*2)*4,4)}, 0")
    for i in range(2):
        for tl in range(2):
            d = N + i * 8 + tl * 4
            a(f"v_mfma_f32_16x16x32_bf16 {v(d,4)}, {v(KF+(tl*2+1)*4,4)}, {v(PQ+(i*2+1)*4,4)}, {v(d,4)}")
    nop(a, 8)
    a(f"v_cmp_gt_u32 vcc, 16, v{V_LANE}")
    T2 = PB + 16
    for i in range(2):
        n0 = N + i * 8
        a(f"v_mov_b32 v{T2+2*i}, v{n0+4}")
        a(f"v_mov_b32 v{T2+2*i+1}, v{n0+4}")
    nop(a, 2)
    for i in range(2):
        a(f"v_permlane16_swap_b32 v{T2+2*i}, v{T2+2*i+1}")
    nop(a, 2)
    for i in range(2):
        n0 = N + i * 8
        dn = T2 + 2 * i
        a(f"v_cndmask_b32 v{dn}, v{n0+4}, v{dn+1}, vcc")
        a(f"v_cvt_pk_bf16_f32 v{dn}, v{dn}, v{dn}")
        a(f"v_lshlrev_b32 v{dn}, 16, v{dn}")
        a(f"v_add_f32 v{dn}, s{S_T+7}, v{dn}")
        a(f"v_cvt_pk_bf16_f32 v{dn}, v{dn}, v{dn}")
        a(f"v_lshlrev_b32 v{dn}, 16, v{dn}")
        a(f"v_rcp_f32 v{dn}, v{dn}")
        for k in range(4):
            a(f"v_cvt_pk_bf16_f32 v{PQ+k}, v{n0+2*k}, v{n0+2*k+1}")
        for k in range(4):
            a(f"v_lshlrev_b32 v{n0+2*k}, 16, v{PQ+k}")
            a(f"v_and_b32 v{n0+2*k+1}, 0xffff0000, v{PQ+k}")
        for k in range(8):
            a(f"v_mul_f32 v{n0+k}, v{n0+k}, v{dn}")
        for k in range(4):
            a(f"v_cvt_pk_bf16_f32 v{n0+k}, v{n0+2*k}, v{n0+2*k+1}")
        a(f"s_mov_b32 s{S_T+4}, {i*20480}")
        a(f"buffer_store_dwordx2 {v(n0,2)}, v{V_OA0}, s[{S_WS}:{S_WS+3}], s{S_T+4} offen sc1")
    a("s_mov_b64 exec, 0xffff")
    for i in range(2):
        n0 = N + i * 8
        a(f"s_mov_b32 s{S_T+4}, {i*20480}")
        a(f"buffer_store_dwordx2 {v(n0+2,2)}, v{V_OA1}, s[{S_WS}:{S_WS+3}], s{S_T+4} offen sc1")
    a("s_mov_b64 exec, -1")
    a("s_waitcnt vmcnt(0)")
    vm.q = []
    a("s_barrier")
    a(f"s_cmp_lg_u32 s{S_WAVE}, 0")
    a("s_cbranch_scc1 K4_sig")
    a(f"s_lshl_b32 s{S_T}, s2, 2")
    a(f"s_add_u32 s{S_T}, s{S_T}, 0xE00000")
    a(f"v_mov_b32 v{t}, s{S_T}")
    a(f"v_mov_b32 v{t+1}, 1")
    a("s_mov_b64 exec, 1")
    a(f"buffer_store_dword v{t+1}, v{t}, s[{S_WS}:{S_WS+3}], 0 offen sc1")
    a("s_mov_b64 exec, -1")
    a.label("K4_sig")
    stamp(a)
    a(f"v_and_b32 v{t}, 3, v{V_LANE}")
    a(f"v_lshrrev_b32 v{t+2}, 2, v{V_LANE}")
    a(f"v_mul_u32_u24 v{t+2}, 160, v{t+2}")
    a(f"v_lshl_add_u32 v{V_WB}, v{t}, 3, v{t+2}")
    def gemm(isA, hooks):
        items = [(b, T) for b in range(10) for T in range(5)]
        n_it = 50
        def reads(Nn):
            b, T = items[Nn]
            slot = V_RING + (Nn % RING) * 4
            if T == 0:
                a(f"s_mul_i32 s{S_T}, s{S_KQ}, 10")
                a(f"s_add_u32 s{S_T}, s{S_T}, {b}")
                if isA:
                    a(f"s_add_u32 s{S_T+1}, s{S_T}, 20")
                    a(f"s_sub_u32 s{S_T+2}, s{S_T}, 11")
                    a(f"s_cmp_lt_u32 s{S_T}, 11")
                    a(f"s_cselect_b32 s{S_T}, s{S_T+1}, s{S_T+2}")
                a(f"s_mul_i32 s{S_T}, s{S_T}, 5120")
                a(f"v_add_u32 v{t+(b%2)}, s{S_T}, v{V_WB}")
            for qq in range(2):
                a(f"ds_read_b64_tr_b16 {v(slot+2*qq,2)}, v{t+(b%2)} offset:{qq*2560 + T*32}")
        for Nn in range(D):
            reads(Nn)
        for Nn in range(n_it):
            if Nn + D < n_it:
                reads(Nn + D)
                a(f"s_waitcnt lgkmcnt({2*D})")
            else:
                a(f"s_waitcnt lgkmcnt({2*(n_it-1-Nn)})")
            b, T = items[Nn]
            slot = V_RING + (Nn % RING) * 4
            acc = (V_ACCA if isA else V_ACCB) + T * 4
            bb = v((V_OAF if isA else V_OBF) + b * 4, 4)
            src = "0" if b == 0 else v(acc, 4)
            a(f"v_mfma_f32_16x16x32_bf16 {v(acc,4)}, {v(slot,4)}, {bb}, {src}")
    a("s_waitcnt vmcnt(0)")
    vm.q = []
    gemm(False, {})
    stamp(a)
    a("s_waitcnt lgkmcnt(0)")
    a("s_barrier")
    wgroup(True, 2); wgroup(True, 3)
    a(f"s_cmp_lg_u32 s{S_WAVE}, 7")
    a("s_cbranch_scc1 K4_pd")
    a(f"s_lshl_b32 s{S_T}, s{S_E}, 7")
    a(f"s_add_u32 s{S_T}, s{S_T}, 0xE00000")
    a(f"v_and_b32 v{t+4}, 31, v{V_LANE}")
    a(f"v_lshlrev_b32 v{t+4}, 2, v{t+4}")
    a(f"v_add_u32 v{t+4}, s{S_T}, v{t+4}")
    a(f"s_mov_b32 s{S_T+1}, 0")
    a.label("K4_poll")
    a(f"buffer_load_dword v{t+5}, v{t+4}, s[{S_WS}:{S_WS+3}], 0 offen sc1")
    a("s_waitcnt vmcnt(0)")
    a(f"v_cmp_ne_u32 vcc, 1, v{t+5}")
    a("s_nop 3")
    a("s_cmp_eq_u64 vcc, 0")
    a("s_cbranch_scc1 K4_pd")
    a(f"s_add_u32 s{S_T+1}, s{S_T+1}, 1")
    a(f"s_cmp_lt_u32 s{S_T+1}, 0x40000")
    a("s_cbranch_scc0 K4_pd")
    a("s_sleep 2")
    a("s_branch K4_poll")
    a.label("K4_pd")
    a("s_barrier")
    stamp(a)
    o_loads(V_OAF, WS_OA, "OA", " sc1")
    g_loads()
    a("s_waitcnt vmcnt(0)")
    vm.q = []
    a("s_barrier")
    stamp(a)
    gemm(True, {})
    stamp(a)
    a("s_waitcnt lgkmcnt(0)")
    a("s_barrier")
    nop(a, 8)
    a(f"v_lshlrev_b32 v{t}, 4, v{V_LANE}")
    a(f"s_mul_i32 s{S_T}, s{S_WAVE}, 6144")
    a(f"v_add_u32 v{t+1}, s{S_T}, v{t}")
    a(f"s_xor_b32 s{S_T+1}, s{S_WAVE}, 4")
    a(f"s_mul_i32 s{S_T+1}, s{S_T+1}, 6144")
    a(f"v_add_u32 v{t+2}, s{S_T+1}, v{t}")
    a(f"v_mul_u32_u24 v{t+3}, 1280, v{V_G+1}")
    a(f"v_lshl_add_u32 v{t+3}, v{V_GRP}, 3, v{t+3}")
    a(f"s_mul_i32 s{S_T+3}, s{S_JC}, 160")
    a(f"v_add_u32 v{t+3}, s{S_T+3}, v{t+3}")
    a(f"v_sub_f32 v{t+5}, 1.0, v{V_G}")
    a(f"v_cvt_pk_bf16_f32 v{t+5}, v{t+5}, v{t+5}")
    a(f"v_lshlrev_b32 v{t+5}, 16, v{t+5}")
    X = 48
    a(f"s_cmp_eq_u32 s{S_KQ}, 0")
    a("s_cbranch_scc0 K4_x1")
    for kh in range(2):
        if kh == 1:
            a.label("K4_x1")
        keep = [0, 1, 2] if kh == 0 else [3, 4]
        send = [3, 4] if kh == 0 else [0, 1, 2]
        for y, T in enumerate(send):
            a(f"ds_write_b128 v{t+1}, {v(V_ACCA+T*4,4)} offset:{(2*y)*1024}")
            a(f"ds_write_b128 v{t+1}, {v(V_ACCB+T*4,4)} offset:{(2*y+1)*1024}")
        a("s_waitcnt lgkmcnt(0)")
        a("s_barrier")
        for y, T in enumerate(keep):
            a(f"ds_read_b128 {v(X+y*8,4)}, v{t+2} offset:{(2*y)*1024}")
            a(f"ds_read_b128 {v(X+y*8+4,4)}, v{t+2} offset:{(2*y+1)*1024}")
        a("s_waitcnt lgkmcnt(0)")
        for y, T in enumerate(keep):
            A_ = V_ACCA + T * 4; B_ = V_ACCB + T * 4; Z = X + y * 8
            for k in range(4):
                a(f"v_add_f32 v{A_+k}, v{A_+k}, v{Z+k}")
                a(f"v_add_f32 v{B_+k}, v{B_+k}, v{Z+4+k}")
            a(f"v_cvt_pk_bf16_f32 v{Z}, v{A_}, v{A_+1}")
            a(f"v_cvt_pk_bf16_f32 v{Z+1}, v{A_+2}, v{A_+3}")
            a(f"v_cvt_pk_bf16_f32 v{Z+2}, v{B_}, v{B_+1}")
            a(f"v_cvt_pk_bf16_f32 v{Z+3}, v{B_+2}, v{B_+3}")
            for k in range(2):
                a(f"v_lshlrev_b32 v{A_+2*k}, 16, v{Z+k}")
                a(f"v_and_b32 v{A_+2*k+1}, 0xffff0000, v{Z+k}")
                a(f"v_lshlrev_b32 v{B_+2*k}, 16, v{Z+2+k}")
                a(f"v_and_b32 v{B_+2*k+1}, 0xffff0000, v{Z+2+k}")
            for k in range(4):
                a(f"v_mul_f32 v{A_+k}, v{A_+k}, v{V_G}")
                a(f"v_mul_f32 v{B_+k}, v{B_+k}, v{t+5}")
            a(f"v_cvt_pk_bf16_f32 v{Z}, v{A_}, v{A_+1}")
            a(f"v_cvt_pk_bf16_f32 v{Z+1}, v{A_+2}, v{A_+3}")
            a(f"v_cvt_pk_bf16_f32 v{Z+2}, v{B_}, v{B_+1}")
            a(f"v_cvt_pk_bf16_f32 v{Z+3}, v{B_+2}, v{B_+3}")
            for k in range(2):
                a(f"v_lshlrev_b32 v{A_+2*k}, 16, v{Z+k}")
                a(f"v_and_b32 v{A_+2*k+1}, 0xffff0000, v{Z+k}")
                a(f"v_lshlrev_b32 v{B_+2*k}, 16, v{Z+2+k}")
                a(f"v_and_b32 v{B_+2*k+1}, 0xffff0000, v{Z+2+k}")
            for k in range(4):
                a(f"v_add_f32 v{A_+k}, v{A_+k}, v{B_+k}")
            a(f"v_cvt_pk_bf16_f32 v{Z+4}, v{A_}, v{A_+1}")
            a(f"v_cvt_pk_bf16_f32 v{Z+5}, v{A_+2}, v{A_+3}")
            a(f"buffer_store_dwordx2 {v(Z+4,2)}, v{t+3}, s[{S_OUT}:{S_OUT+3}], 0 offen offset:{32*T}")
        if kh == 0:
            a("s_branch K4_fin")
    a.label("K4_fin")
    stamp_flush(a)
    if standalone:
        a.label("K4_done")
        a("s_endpgm")
    return name
```

```python
import sys
from common import *
import k1v2 as k1, k6 as k4
def build(path, stamps=False):
    k1.STAMPS = 'k1st' in sys.argv
    k4.STAMPS = stamps
    k1.PREFETCH = False
    k1.MEGA = True
    k1.WOT = 'wot' in sys.argv
    k4.WOT = 'wot' in sys.argv
    k1.WOPF = 'wopf' in sys.argv
    k1.PKMATH = 'nopk' not in sys.argv
    k1.LATE1 = 'late1' in sys.argv
    k1.GATE_IN_A = True
    k4.RT = "rt" in sys.argv
    a = Asm()
    hdr = open("cdna_kernels/" + KNAME + ".s.ref").read().split("; Override launch")[0]
    a.raw(hdr.rstrip("\n"))
    a.raw(f"; @launch grid=(256,1,1) block=(512,1,1) lds={k4.K4_LDS}")
    a.raw('.amdgcn_target "amdgcn-amd-amdhsa--gfx950"')
    a.raw(".text")
    k1.START_RT = stamps
    k1.gen_k1(a, name=KNAME + "_kernel", tail=lambda a: k4.gen_k4(a, standalone=False))
    a.raw('.section .rodata,"a"')
    a.raw(".p2align 6")
    kernel_desc(a, KNAME + "_kernel", 240, 102)
    open(path, "w").write(a.text())
if __name__ == "__main__":
    build(sys.argv[1], stamps=("stamps" in sys.argv))
```

```python
from common import *

V_LANE = 1; V_T0 = 2
V_GRP = 10
V_WA = 11; V_WB = 12
V_X0 = 13; V_X1 = 14
V_XH0 = 15; V_XH1 = 16
V_H0 = 17; V_H1 = 18
V_DMA = 20
V_WR = 28
V_X = 52
V_ACC = 76
V_HACC = 140
V_E = 148

S_X = 4; S_W = 8; S_WS = 12; S_AUX = 16
S_I = 20; S_J = 21; S_BR = 22; S_WAVE = 23; S_RG = 24; S_CG = 25
S_T = 26
S_SOFF = 34; S_STEP = 35
S_L = 36; S_NL = 37; S_ROT = 38
S_LD = 40
S_PTR = 44
S_MASK = 56
S_M2 = 72
S_ST = 80

STG = 49152
XOFF = 30720
LDS_WPHI = 3 * STG
LDS_ZERO = LDS_WPHI + 3200
K1_LDS = LDS_ZERO + 1024

D = 5
RING = 6
STAMPS = False
NST = [0]

def nop(a, n):
    while n > 0:
        k = min(n, 16)
        a(f"s_nop {k-1}")
        n -= k

def stamp(a):
    if STAMPS:
        k = NST[0]; NST[0] += 1
        if k == 0:
            a(f"s_memrealtime s[98:99]")
        a(f"s_memtime s[{S_ST+2*k}:{S_ST+2*k+1}]")
def stamp_flush(a):
    if STAMPS:
        n = NST[0]
        a("s_waitcnt lgkmcnt(0) vmcnt(0)")
        a(f"s_memtime s[{S_ST+2*n}:{S_ST+2*n+1}]")
        a(f"s_memrealtime s[100:101]")
        a("s_waitcnt lgkmcnt(0)")
        a(f"s_lshl_b32 s{S_T}, s2, 3")
        a(f"s_add_u32 s{S_T}, s{S_T}, s{S_WAVE}")
        a(f"s_lshl_b32 s{S_T}, s{S_T}, 6")
        a(f"s_add_u32 s{S_T}, s{S_T}, {WS_DBG}")
        a(f"v_mov_b32 v2, s{S_T}")
        a("s_mov_b64 exec, 1")
        for k in range(n + 1):
            a(f"v_mov_b32 v3, s{S_ST+2*k}")
            a(f"buffer_store_dword v3, v2, s[{S_WS}:{S_WS+3}], 0 offen offset:{4*k}")
            a("s_nop 1")
        for k, sr in enumerate((98, 100)):
            a(f"v_mov_b32 v3, s{sr}")
            a(f"buffer_store_dword v3, v2, s[{S_WS}:{S_WS+3}], 0 offen offset:{48+4*k}")
            a("s_nop 1")
        a("s_mov_b64 exec, -1")

class Cnt:
    def __init__(self, a, kind, mx):
        self.a = a; self.q = []; self.kind = kind; self.mx = mx
    def issue(self, tag):
        self.q.append(tag)
        assert len(self.q) <= self.mx, f"too many outstanding {self.kind}"
    def wait(self, *tags):
        idx = -1
        for i, t in enumerate(self.q):
            if t in tags: idx = i
        if idx < 0: return
        n = len(self.q) - 1 - idx
        self.a(f"s_waitcnt {self.kind}({n})")
        self.q = self.q[idx+1:]
    def clear(self):
        self.q = []

def xreg(buf, r):
    return V_X + (buf * 3 + r) * 4
def acc(rt, sl):
    return V_ACC + (rt * 8 + sl) * 4

def gen_prologue(a):
    t = V_T0
    a("s_cmp_ge_u32 s2, 256")
    a("s_cbranch_scc1 K1_done")
    a(f"s_load_dwordx4 s[{S_PTR}:{S_PTR+3}], s[0:1], 0")
    a(f"s_load_dwordx2 s[{S_PTR+6}:{S_PTR+7}], s[0:1], 40")
    a(f"s_load_dwordx2 s[{S_PTR+4}:{S_PTR+5}], s[0:1], 16")
    a(f"s_load_dwordx2 s[{S_PTR+8}:{S_PTR+9}], s[0:1], 56")
    a(f"s_load_dwordx2 s[{S_PTR+10}:{S_PTR+11}], s[0:1], 80")
    a(f"v_lshrrev_b32 v{t}, 6, v0")
    a(f"v_and_b32 v{V_LANE}, 63, v0")
    a(f"s_and_b32 s{S_T}, s2, 7")
    a(f"v_readfirstlane_b32 s{S_WAVE}, v{t}")
    a(f"s_lshr_b32 s{S_T+1}, s2, 3")
    a(f"s_and_b32 s{S_I}, s{S_T}, 1")
    a(f"s_lshl_b32 s{S_I}, s{S_I}, 3")
    a(f"s_and_b32 s{S_T+2}, s{S_T+1}, 7")
    a(f"s_add_u32 s{S_I}, s{S_I}, s{S_T+2}")
    a(f"s_lshr_b32 s{S_J}, s{S_T}, 1")
    a(f"s_lshl_b32 s{S_J}, s{S_J}, 1")
    a(f"s_lshr_b32 s{S_T+2}, s{S_T+1}, 3")
    a(f"s_and_b32 s{S_T+2}, s{S_T+2}, 1")
    a(f"s_add_u32 s{S_J}, s{S_J}, s{S_T+2}")
    a(f"s_lshr_b32 s{S_BR}, s{S_T+1}, 4")
    a(f"s_mul_i32 s{S_ROT}, s{S_T+1}, 3")
    a(f"s_mul_i32 s{S_T+2}, s{S_ROT}, 6554")
    a(f"s_lshr_b32 s{S_T+2}, s{S_T+2}, 16")
    a(f"s_mul_i32 s{S_T+2}, s{S_T+2}, 10")
    a(f"s_sub_u32 s{S_ROT}, s{S_ROT}, s{S_T+2}")
    a(f"s_mul_i32 s{S_T+2}, s{S_WAVE}, 384")
    a(f"s_mul_i32 s{S_T+3}, s{S_J}, 160")
    a(f"s_mov_b32 s{S_T+4}, 2185")
    a(f"s_lshl_b32 s{S_T+5}, s{S_I}, 7")
    a(f"s_sub_u32 s{S_T+5}, s{S_T+5}, {16 + 5*48}")
    a(f"s_mul_i32 s{S_T+6}, s{S_WAVE}, 48")
    a(f"s_add_u32 s{S_T+5}, s{S_T+5}, s{S_T+6}")
    a(f"s_mov_b32 s{S_T+6}, 1280")
    a("s_waitcnt lgkmcnt(0)")
    srd(a, S_X, S_PTR, 2048 * 1280)
    a(f"s_cmp_eq_u32 s{S_BR}, 0")
    a(f"s_cselect_b32 s{S_W}, s{S_PTR+2}, s{S_PTR+6}")
    a(f"s_cselect_b32 s{S_W+1}, s{S_PTR+3}, s{S_PTR+7}")
    a(f"s_and_b32 s{S_W+1}, s{S_W+1}, 0xffff")
    a(f"s_mov_b32 s{S_W+2}, {640*3840}")
    a(f"s_mov_b32 s{S_W+3}, 0x00020000")
    a(f"s_cmp_ge_u32 s{S_WAVE}, 5")
    for k in range(3):
        a(f"s_cselect_b32 s{S_LD+k}, s{S_X+k}, s{S_W+k}")
    a(f"s_mov_b32 s{S_LD+3}, 0x00020000")
    a(f"s_mov_b32 s{S_T+7}, {64*3840}")
    a(f"s_cselect_b32 s{S_STEP}, 128, s{S_T+7}")
    a(f"s_cbranch_scc1 K1_xoff")
    for n in range(6):
        d = V_DMA + n
        a(f"v_add_u32 v{t}, s{S_T+2}, v{V_LANE}")
        if n:
            a(f"v_add_u32 v{t}, {n*64}, v{t}")
        a(f"v_mul_u32_u24 v{t+1}, s{S_T+4}, v{t}")
        a(f"v_lshrrev_b32 v{t+1}, 16, v{t+1}")
        a(f"v_mul_u32_u24 v{t+2}, 30, v{t+1}")
        a(f"v_sub_u32 v{t+2}, v{t}, v{t+2}")
        a(f"v_and_b32 v{t+3}, 0x23, v{t+1}")
        a(f"v_bfe_u32 v{t+4}, v{t+1}, 2, 2")
        a(f"v_lshl_add_u32 v{t+3}, v{t+4}, 3, v{t+3}")
        a(f"v_bfe_u32 v{t+4}, v{t+1}, 4, 1")
        a(f"v_lshl_add_u32 v{t+3}, v{t+4}, 2, v{t+3}")
        a(f"v_mul_u32_u24 v{t+3}, 3840, v{t+3}")
        a(f"v_mul_u32_u24 v{t+4}, 26, v{t+2}")
        a(f"v_lshrrev_b32 v{t+4}, 8, v{t+4}")
        a(f"v_mul_u32_u24 v{t+5}, 1120, v{t+4}")
        a(f"v_add_u32 v{t+3}, v{t+3}, v{t+5}")
        a(f"v_lshl_add_u32 v{t+3}, v{t+2}, 4, v{t+3}")
        a(f"v_add_u32 v{d}, s{S_T+3}, v{t+3}")
        dma(a, 0, n)
    a("s_branch K1_offdone")
    a.label("K1_xoff")
    a(f"v_lshrrev_b32 v{t}, 3, v{V_LANE}")
    a(f"v_and_b32 v{t+1}, 7, v{V_LANE}")
    a(f"v_xor_b32 v{t+1}, v{t+1}, v{t}")
    a(f"v_lshlrev_b32 v{t+1}, 4, v{t+1}")
    for n in range(6):
        a(f"v_add_u32 v{t+2}, s{S_T+5}, v{t}")
        if n:
            a(f"v_add_u32 v{t+2}, {8*n}, v{t+2}")
        a(f"v_mul_lo_u32 v{t+2}, v{t+2}, s{S_T+6}")
        a(f"v_add_u32 v{V_DMA+n}, v{t+2}, v{t+1}")
        dma(a, 0, n)
    a.label("K1_offdone")
    for n in range(6):
        dma(a, 1, n)
    a(f"v_lshrrev_b32 v{V_GRP}, 4, v{V_LANE}")
    a(f"s_mov_b32 s{S_L}, 0x3fb8aa3b")
    a(f"s_mov_b32 s{S_NL}, 0xbfb8aa3b")
    a(f"s_and_b32 s{S_RG}, s{S_WAVE}, 3")
    a(f"s_lshr_b32 s{S_CG}, s{S_WAVE}, 2")
    srd(a, S_WS, S_PTR + 10, WS_SIZE)
    a(f"s_cmp_eq_u32 s{S_BR}, 0")
    a(f"s_cselect_b32 s{S_T+2}, s{S_PTR+4}, s{S_PTR+8}")
    a(f"s_cselect_b32 s{S_T+3}, s{S_PTR+5}, s{S_PTR+9}")
    a(f"s_mov_b32 s{S_T+5}, 1280")
    a(f"s_cselect_b32 s{S_T+4}, 25600, s{S_T+5}")
    a(f"s_mov_b32 s{S_AUX}, s{S_T+2}")
    a(f"s_and_b32 s{S_AUX+1}, s{S_T+3}, 0xffff")
    a(f"s_mov_b32 s{S_AUX+2}, s{S_T+4}")
    a(f"s_mov_b32 s{S_AUX+3}, 0x00020000")

NO_LOADS = False
TOVGPR = False
MEGA = False
PKMATH = False
LATE1 = False
WS_FL = 0xE00000
GATE_IN_A = False
START_RT = False
def SC():
    return ' sc1' if MEGA else ''
def dma(a, c, n):
    if NO_LOADS and c >= 3: return
    b = c % 3
    a(f"s_mul_i32 s{S_T}, s{S_WAVE}, 6144")
    a(f"s_add_u32 m0, s{S_T}, {b*STG + n*1024}")
    if n == 0 or True:
        a(f"s_add_u32 s{S_SOFF}, s{S_ROT}, {c}")
        a(f"s_sub_u32 s{S_T+1}, s{S_SOFF}, 10")
        a(f"s_cmp_ge_u32 s{S_SOFF}, 10")
        a(f"s_cselect_b32 s{S_SOFF}, s{S_T+1}, s{S_SOFF}")
        a(f"s_mul_i32 s{S_SOFF}, s{S_STEP}, s{S_SOFF}")
    if TOVGPR and c >= 3:
        a(f"buffer_load_dwordx4 v[{200+4*n}:{203+4*n}], v{V_DMA+n}, s[{S_LD}:{S_LD+3}], s{S_SOFF} offen")
    else:
        a(f"buffer_load_dwordx4 v{V_DMA+n}, s[{S_LD}:{S_LD+3}], s{S_SOFF} offen lds")

def gen_bases(a):
    t = V_T0
    a(f"v_lshrrev_b32 v{t}, 2, v{V_LANE}")
    a(f"v_mul_u32_u24 v{t}, 480, v{t}")
    a(f"v_and_b32 v{t+1}, 3, v{V_LANE}")
    a(f"v_mul_u32_u24 v{t+1}, 40, v{t+1}")
    a(f"v_add_u32 v{t}, v{t}, v{t+1}")
    a(f"s_mul_i32 s{S_T}, s{S_CG}, 160")
    a(f"v_add_u32 v{V_WA}, s{S_T}, v{t}")
    a(f"s_mul_i32 s{S_T}, s{S_CG}, 24")
    a(f"s_add_u32 s{S_T}, s{S_T}, 320")
    a(f"v_add_u32 v{V_WB}, s{S_T}, v{t}")
    for h in range(2):
        a(f"s_add_u32 s{S_T}, s{S_WAVE}, {8*h}")
        a(f"s_cmp_ge_u32 s{S_T}, 10")
        a(f"s_cselect_b32 s{S_T}, s{S_WAVE}, s{S_T}")
        a(f"s_add_u32 s{S_T}, s{S_T}, 5")
        a(f"s_cmp_ge_u32 s{S_T}, 10")
        a(f"s_mov_b32 s{S_T+2}, 120")
        a(f"s_cselect_b32 s{S_T+1}, 240, s{S_T+2}")
        a(f"s_lshl_b32 s{S_T}, s{S_T}, 3")
        a(f"s_add_u32 s{S_T}, s{S_T}, s{S_T+1}")
        a(f"v_add_u32 v{V_H0+h}, s{S_T}, v{t}")
    a(f"v_and_b32 v{t}, 15, v{V_LANE}")
    a(f"v_and_b32 v{t+1}, 7, v{V_LANE}")
    a(f"v_xor_b32 v{t+1}, v{t+1}, v{V_GRP}")
    a(f"v_lshlrev_b32 v{t+1}, 4, v{t+1}")
    a(f"v_lshl_add_u32 v{t+1}, v{t}, 7, v{t+1}")
    a(f"v_add_u32 v{V_XH0}, {XOFF}, v{t+1}")
    a(f"v_xor_b32 v{V_XH1}, 64, v{V_XH0}")
    a(f"s_lshl_b32 s{S_T}, s{S_RG}, 12")
    a(f"s_add_u32 s{S_T}, s{S_T}, 2048")
    a(f"v_add_u32 v{V_X0}, s{S_T}, v{V_XH0}")
    a(f"v_add_u32 v{V_X1}, s{S_T}, v{V_XH1}")

PREFETCH = True
def gen_prefetch(a):
    if not PREFETCH: return
    t = V_E + 16
    a(f"s_lshr_b32 s{S_T}, s2, 3")
    a(f"s_lshl_b32 s{S_T+1}, s{S_T}, 3")
    a(f"s_add_u32 s{S_T+1}, s{S_T+1}, s{S_WAVE}")
    a(f"s_lshl_b32 s{S_T+1}, s{S_T+1}, 6")
    a(f"v_add_u32 v{t}, s{S_T+1}, v{V_LANE}")
    a(f"s_and_b32 s{S_T+2}, s2, 1")
    a(f"s_mul_i32 s{S_T+2}, s{S_T+2}, {1024*1280}")
    a(f"v_lshlrev_b32 v{t+1}, 7, v{t}")
    a(f"v_add_u32 v{t+1}, s{S_T+2}, v{t+1}")
    a(f"v_mov_b32 v{t+2}, 0x7ff00000")
    a(f"v_cmp_le_u32 vcc, 10240, v{t}")
    a(f"v_and_b32 v{t+3}, 0x1fff, v{t}")
    a(f"v_cndmask_b32 v{t+1}, v{t+1}, v{t+2}, vcc")
    a(f"buffer_load_dword v{t+8}, v{t+1}, s[{S_X}:{S_X+3}], 0 offen")
    a(f"v_mul_u32_u24 v{t+4}, 5462, v{t+3}")
    a(f"v_lshrrev_b32 v{t+4}, 16, v{t+4}")
    a(f"v_mul_u32_u24 v{t+5}, 12, v{t+4}")
    a(f"v_sub_u32 v{t+5}, v{t+3}, v{t+5}")
    a(f"v_lshrrev_b32 v{t+6}, 2, v{t+5}")
    a(f"v_and_b32 v{t+5}, 3, v{t+5}")
    a(f"v_mul_u32_u24 v{t+4}, 3840, v{t+4}")
    a(f"v_mul_u32_u24 v{t+6}, 1280, v{t+6}")
    a(f"v_add_u32 v{t+4}, v{t+4}, v{t+6}")
    a(f"v_lshl_add_u32 v{t+4}, v{t+5}, 7, v{t+4}")
    a(f"s_and_b32 s{S_T+2}, s2, 7")
    a(f"s_lshr_b32 s{S_T+2}, s{S_T+2}, 1")
    a(f"s_mul_i32 s{S_T+2}, s{S_T+2}, 320")
    a(f"s_and_b32 s{S_T+2}, s{S_T+2}, 0xffffff80")
    a(f"v_add_u32 v{t+4}, s{S_T+2}, v{t+4}")
    a(f"v_cmp_le_u32 vcc, 7680, v{t+3}")
    a("s_nop 1")
    a(f"v_cndmask_b32 v{t+4}, v{t+4}, v{t+2}, vcc")
    a(f"buffer_load_dword v{t+9}, v{t+4}, s[{S_W}:{S_W+3}], 0 offen")

WOPF = False
def gen_wo_pf_setup(a):
    if not WOPF: return
    t = V_E + 24
    a(f"s_load_dwordx2 s[92:93], s[0:1], 24")
    a(f"s_load_dwordx2 s[94:95], s[0:1], 48")
    a(f"s_lshr_b32 s{S_T}, s2, 3")
    a(f"s_and_b32 s{S_T+1}, s{S_T}, 3")
    a(f"s_lshr_b32 s{S_T}, s{S_T}, 2")
    a(f"s_mul_i32 s{S_T}, s{S_T}, 160")
    a(f"s_and_b32 s{S_T}, s{S_T}, 0xffffff80")
    a(f"s_mul_i32 s{S_T+1}, s{S_T+1}, 160")
    a(f"s_lshl_b32 s{S_T+2}, s{S_WAVE}, 5")
    a(f"s_add_u32 s{S_T+1}, s{S_T+1}, s{S_T+2}")
    a(f"s_mul_i32 s{S_T+1}, s{S_T+1}, 1280")
    a(f"s_add_u32 s{S_T}, s{S_T}, s{S_T+1}")
    a(f"s_cmp_ge_u32 s{S_WAVE}, 5")
    a(f"s_cselect_b32 s{S_T}, 0x7ff00000, s{S_T}")
    a(f"v_lshrrev_b32 v{t}, 1, v{V_LANE}")
    a(f"v_mul_u32_u24 v{t}, 1280, v{t}")
    a(f"v_and_b32 v{t+1}, 1, v{V_LANE}")
    a(f"v_lshl_add_u32 v{t}, v{t+1}, 7, v{t}")
    a(f"v_add_u32 v{t}, s{S_T}, v{t}")
    a("s_waitcnt lgkmcnt(0)")
    srd(a, 84, 92, 640 * 1280)
    srd(a, 88, 94, 640 * 1280)
def gen_wo_pf(a):
    t = V_E + 24
    a(f"buffer_load_dword v{t+2}, v{t}, s[84:87], 0 offen")
    a(f"buffer_load_dword v{t+3}, v{t}, s[88:91], 0 offen")

WOT = False
WS_WOT = 0x1C00000
V_RL = V_E + 32
def gen_relayout_load(a, lab):
    if not WOT: return
    t = V_E + 24
    a(f"s_mul_i32 s{S_T}, s2, 7")
    a(f"s_add_u32 s{S_T}, s{S_T}, s{S_WAVE}")
    a(f"s_cmp_ge_u32 s{S_WAVE}, 7")
    a(f"s_cselect_b32 s{S_T}, 1600, s{S_T}")
    a(f"s_mov_b32 s96, s{S_T}")
    a(f"s_cmp_ge_u32 s{S_T}, 1600")
    a(f"s_cbranch_scc1 {lab}")
    a(f"s_load_dwordx2 s[92:93], s[0:1], 24")
    a(f"s_load_dwordx2 s[94:95], s[0:1], 48")
    a(f"s_mul_i32 s{S_T+1}, s{S_T}, 52429")
    a(f"s_lshr_b32 s{S_T+1}, s{S_T+1}, 18")
    a(f"s_mul_i32 s{S_T+2}, s{S_T+1}, 5")
    a(f"s_sub_u32 s{S_T+2}, s{S_T}, s{S_T+2}")
    a(f"s_mul_i32 s{S_T+3}, s{S_T+1}, 3277")
    a(f"s_lshr_b32 s{S_T+3}, s{S_T+3}, 16")
    a(f"s_mul_i32 s{S_T+4}, s{S_T+3}, 20")
    a(f"s_sub_u32 s{S_T+4}, s{S_T+1}, s{S_T+4}")
    a(f"s_and_b32 s{S_T+5}, s{S_T+3}, 7")
    a(f"s_mul_i32 s{S_T+5}, s{S_T+5}, 160")
    a(f"s_mul_i32 s{S_T+4}, s{S_T+4}, {32*1280}")
    a(f"s_add_u32 s{S_T+5}, s{S_T+5}, s{S_T+4}")
    a(f"s_lshl_b32 s{S_T+2}, s{S_T+2}, 6")
    a(f"v_add_u32 v{t}, s{S_T+2}, v{V_LANE}")
    a(f"v_mul_u32_u24 v{t+1}, 6554, v{t}")
    a(f"v_lshrrev_b32 v{t+1}, 16, v{t+1}")
    a(f"v_mul_u32_u24 v{t+2}, 10, v{t+1}")
    a(f"v_sub_u32 v{t+2}, v{t}, v{t+2}")
    a(f"v_bfe_u32 v{t+3}, v{t+1}, 4, 1")
    a(f"v_bfe_u32 v{t+4}, v{t+1}, 2, 2")
    a(f"v_and_b32 v{t+5}, 3, v{t+1}")
    a(f"v_lshl_add_u32 v{t+5}, v{t+3}, 2, v{t+5}")
    a(f"v_lshl_add_u32 v{t+5}, v{t+4}, 3, v{t+5}")
    a(f"v_mul_u32_u24 v{t+5}, 1280, v{t+5}")
    a(f"v_lshl_add_u32 v{t+5}, v{t+2}, 4, v{t+5}")
    a(f"v_add_u32 v{t+5}, s{S_T+5}, v{t+5}")
    a("s_waitcnt lgkmcnt(0)")
    a(f"s_cmp_lt_u32 s{S_T+3}, 8")
    a(f"s_cselect_b32 s92, s92, s94")
    a(f"s_cselect_b32 s93, s93, s95")
    srd(a, 84, 92, 640 * 1280)
    a(f"buffer_load_dwordx4 {v(V_RL,4)}, v{t+5}, s[84:87], 0 offen")
    a.label(lab)
def gen_relayout_store(a, lab):
    if not WOT: return
    a(f"s_cmp_ge_u32 s96, 1600")
    a(f"s_cbranch_scc1 {lab}")
    a(f"s_lshl_b32 s{S_T}, s96, 10")
    a(f"s_add_u32 s{S_T}, s{S_T}, {WS_WOT}")
    a(f"v_lshlrev_b32 v{V_RL+4}, 4, v{V_LANE}")
    a(f"buffer_store_dwordx4 {v(V_RL,4)}, v{V_RL+4}, s[{S_WS}:{S_WS+3}], s{S_T} offen sc1")
    a.label(lab)

def gen_mainloop(a, halo, pre_hook=None):
    lg = Cnt(a, "lgkmcnt", 15)
    nxr = 3 if halo else 2
    items = []
    for c in range(10):
        for m in range(2):
            for sl in range(8):
                items.append((c, m, "m", sl))
                if halo and sl in (3, 7):
                    items.append((c, m, "h", sl // 4))
    per_k = len(items) // 20
    per_chunk = 2 * per_k
    total = len(items)
    base_regs = [V_WA, V_WB, V_X0, V_X1, V_XH0, V_XH1, V_H0, V_H1]
    cur_stage = [0]
    def set_stage(c):
        b = c % 3
        if b != cur_stage[0]:
            delta = (b - cur_stage[0]) * STG
            for r in base_regs:
                if not halo and r in (V_XH0, V_XH1, V_H0, V_H1): continue
                if delta > 0:
                    a(f"v_add_u32 v{r}, {delta}, v{r}")
                else:
                    a(f"v_subrev_u32 v{r}, {-delta}, v{r}")
            cur_stage[0] = b
    def x_reads(c, m):
        set_stage(c)
        buf = (2 * c + m) % 2
        for r in range(nxr):
            if r < 2:
                a(f"ds_read_b128 {v(xreg(buf,r),4)}, v{V_X0+m} offset:{r*2048}")
            else:
                a(f"ds_read_b128 {v(xreg(buf,r),4)}, v{V_XH0+m}")
            lg.issue(f"x{c}_{m}")
    def w_reads(N):
        c, m, kind, idx = items[N]
        set_stage(c)
        slot = V_WR + (N % RING) * 4
        for qq in range(2):
            imm = (2 * m + qq) * 16 * 480
            if kind == "m":
                base = V_WA if idx < 5 else V_WB
                imm += 8 * (idx if idx < 5 else idx - 5)
            else:
                base = V_H0 + idx
            a(f"ds_read_b64_tr_b16 {v(slot+2*qq,2)}, v{base} offset:{imm}")
            lg.issue(f"w{N}")
    gen_relayout_load(a, "K1_rl" + ("B" if halo else "A"))
    gen_bases(a)
    gen_wo_pf_setup(a)
    stamp(a)
    a(f"s_waitcnt vmcnt({0 if LATE1 else 6})")
    a("s_barrier")
    stamp(a)
    x_reads(0, 0)
    for N in range(D):
        w_reads(N)
    nxt = D
    DL = 2
    for N in range(total):
        c, m, kind, idx = items[N]
        n = N - c * per_chunk
        if n == 0:
            a.comment(f"---- chunk {c}")
        bar_here = (n == per_chunk - D + DL and c + 1 <= 9)
        if bar_here:
            a(f"s_waitcnt vmcnt({(8 if (WOPF and c in (2, 3)) else 6) if c + 2 <= 9 else 0}) lgkmcnt(0)")
            lg.clear()
            a("s_barrier")
            if c == 1:
                gen_relayout_store(a, "K1_rs" + ("B" if halo else "A"))
                if pre_hook: pre_hook()
            if c == 3:
                gen_started(a, "K1_st" + ("B" if halo else "A"))
        lim = N + D
        if c + 1 <= 9 and n < per_chunk - D + DL:
            lim = min(lim, (c + 1) * per_chunk - 1)
        lim = min(lim, total - 1)
        while nxt <= lim:
            cc, mm, _, _ = items[nxt]
            if nxt == (cc * 2 + mm) * per_k:
                x_reads(cc, mm)
            w_reads(nxt)
            nxt += 1
        lg.wait(f"w{N}", f"x{c}_{m}")
        slot = V_WR + (N % RING) * 4
        buf = (2 * c + m) % 2
        first = (c == 0 and m == 0)
        if kind == "m":
            for rt in range(2):
                src = "0" if first else v(acc(rt, idx), 4)
                a(f"v_mfma_f32_16x16x32_bf16 {v(acc(rt,idx),4)}, {v(slot,4)}, {v(xreg(buf,rt),4)}, {src}")
        else:
            src = "0" if first else v(V_HACC + idx * 4, 4)
            a(f"v_mfma_f32_16x16x32_bf16 {v(V_HACC+idx*4,4)}, {v(slot,4)}, {v(xreg(buf,2),4)}, {src}")
        if LATE1:
            if c == 0 and n < 6:
                dma(a, 1, n)
            if c == 0 and 6 <= n < 12:
                dma(a, 2, n - 6)
        elif c == 0 and n < 6:
            dma(a, 2, n)
        if c == 0 and n == 6:
            gen_prefetch(a)
        k = N - (c * per_chunk + per_chunk - D + DL)
        for cc in (c, c - 1):
            if cc < 0 or cc + 3 > 9: continue
            k = N - (cc * per_chunk + per_chunk - D + DL)
            if 0 <= k < 6:
                dma(a, cc + 3, k)
                if WOPF and cc == 1 and k == 5:
                    gen_wo_pf(a)

def softmax_dual(a, P, T, OUT, X4):
    for i in range(10):
        a(f"v_cvt_pk_bf16_f32 v{T+i}, v{P+2*i}, v{P+2*i+1}")
    for i in range(10):
        a(f"v_lshlrev_b32 v{P+2*i}, 16, v{T+i}")
        a(f"v_and_b32 v{P+2*i+1}, 0xffff0000, v{T+i}")
    mx, mn, nmx, pmn = X4, X4 + 1, X4 + 2, X4 + 3
    a(f"v_max3_f32 v{mx}, v{P}, v{P+1}, v{P+2}")
    a(f"v_min3_f32 v{mn}, v{P}, v{P+1}, v{P+2}")
    for i in range(3, 19, 2):
        a(f"v_max3_f32 v{mx}, v{mx}, v{P+i}, v{P+i+1}")
        a(f"v_min3_f32 v{mn}, v{mn}, v{P+i}, v{P+i+1}")
    a(f"v_max_f32 v{mx}, v{mx}, v{P+19}")
    a(f"v_min_f32 v{mn}, v{mn}, v{P+19}")
    a(f"v_mul_f32 v{nmx}, s{S_NL}, v{mx}")
    a(f"v_mul_f32 v{pmn}, s{S_L}, v{mn}")
    if PKMATH:
        for i in range(0, 20, 2):
            a(f"v_pk_fma_f32 v[{T+i}:{T+i+1}], v[{P+i}:{P+i+1}], s[{S_L}:{S_L+1}], v[{nmx}:{nmx+1}] op_sel_hi:[1,0,0]")
            a(f"v_pk_fma_f32 v[{P+i}:{P+i+1}], v[{P+i}:{P+i+1}], s[{S_L}:{S_L+1}], v[{nmx}:{nmx+1}] op_sel:[0,1,1] op_sel_hi:[1,1,1]")
        for i in range(20):
            a(f"v_exp_f32 v{T+i}, v{T+i}")
            a(f"v_exp_f32 v{P+i}, v{P+i}")
        a("s_nop 0")
        a(f"v_pk_add_f32 v[{X4}:{X4+1}], v[{T}:{T+1}], v[{T+2}:{T+3}]")
        a(f"v_pk_add_f32 v[{X4+2}:{X4+3}], v[{P}:{P+1}], v[{P+2}:{P+3}]")
        for i in range(4, 20, 2):
            a(f"v_pk_add_f32 v[{X4}:{X4+1}], v[{X4}:{X4+1}], v[{T+i}:{T+i+1}]")
            a(f"v_pk_add_f32 v[{X4+2}:{X4+3}], v[{X4+2}:{X4+3}], v[{P+i}:{P+i+1}]")
        a(f"v_add_f32 v{X4}, v{X4}, v{X4+1}")
        a(f"v_add_f32 v{X4+2}, v{X4+2}, v{X4+3}")
        a(f"v_rcp_f32 v{X4}, v{X4}")
        a(f"v_rcp_f32 v{X4+2}, v{X4+2}")
        a("s_nop 0")
        for i in range(0, 20, 2):
            a(f"v_pk_mul_f32 v[{T+i}:{T+i+1}], v[{T+i}:{T+i+1}], v[{X4}:{X4+1}] op_sel_hi:[1,0]")
            a(f"v_pk_mul_f32 v[{P+i}:{P+i+1}], v[{P+i}:{P+i+1}], v[{X4+2}:{X4+3}] op_sel_hi:[1,0]")
    else:
        for i in range(20):
            a(f"v_fma_f32 v{T+i}, v{P+i}, s{S_L}, v{nmx}")
            a(f"v_fma_f32 v{P+i}, v{P+i}, s{S_NL}, v{pmn}")
        for i in range(20):
            a(f"v_exp_f32 v{T+i}, v{T+i}")
            a(f"v_exp_f32 v{P+i}, v{P+i}")
        a("s_nop 0")
        s1, s2 = mx, mn
        a(f"v_add_f32 v{s1}, v{T}, v{T+1}")
        a(f"v_add_f32 v{s2}, v{P}, v{P+1}")
        a(f"v_add_f32 v{nmx}, v{T+2}, v{T+3}")
        a(f"v_add_f32 v{pmn}, v{P+2}, v{P+3}")
        for i in range(4, 20, 2):
            a(f"v_add_f32 v{s1}, v{s1}, v{T+i}")
            a(f"v_add_f32 v{s2}, v{s2}, v{P+i}")
            a(f"v_add_f32 v{nmx}, v{nmx}, v{T+i+1}")
            a(f"v_add_f32 v{pmn}, v{pmn}, v{P+i+1}")
        a(f"v_add_f32 v{s1}, v{s1}, v{nmx}")
        a(f"v_add_f32 v{s2}, v{s2}, v{pmn}")
        a(f"v_rcp_f32 v{s1}, v{s1}")
        a(f"v_rcp_f32 v{s2}, v{s2}")
        a("s_nop 0")
        for i in range(20):
            a(f"v_mul_f32 v{T+i}, v{T+i}, v{s1}")
            a(f"v_mul_f32 v{P+i}, v{P+i}, v{s2}")
    for i in range(10):
        a(f"v_cvt_pk_bf16_f32 v{OUT+i}, v{T+2*i}, v{T+2*i+1}")
    for i in range(10):
        a(f"v_cvt_pk_bf16_f32 v{OUT+10+i}, v{P+2*i}, v{P+2*i+1}")

def gen_wphi_issue(a):
    t = V_E
    a(f"v_lshlrev_b32 v{t}, 4, v0")
    a(f"s_mul_i32 s{S_T}, s{S_J}, 3200")
    a(f"v_cmp_gt_u32 vcc, 200, v0")
    a(f"s_and_saveexec_b64 s[{S_T+2}:{S_T+3}], vcc")
    a(f"s_cbranch_execz K1_wp0")
    a(f"buffer_load_dwordx4 {v(t+4,4)}, v{t}, s[{S_AUX}:{S_AUX+3}], s{S_T} offen")
    a.label("K1_wp0")
    a(f"s_mov_b64 exec, s[{S_T+2}:{S_T+3}]")

def gen_wphi_stage(a):
    t = V_E
    a(f"v_cmp_gt_u32 vcc, 200, v0")
    a(f"s_and_saveexec_b64 s[{S_T+2}:{S_T+3}], vcc")
    a(f"s_cbranch_execz K1_wp1")
    a(f"v_add_u32 v{t+1}, {LDS_WPHI}, v{t}")
    a(f"ds_write_b128 v{t+1}, {v(t+4,4)}")
    a.label("K1_wp1")
    a(f"s_mov_b64 exec, s[{S_T+2}:{S_T+3}]")
    a(f"v_cmp_gt_u32 vcc, 64, v0")
    a(f"s_and_saveexec_b64 s[{S_T+2}:{S_T+3}], vcc")
    a(f"s_cbranch_execz K1_wp2")
    for r in range(4):
        a(f"v_mov_b32 v{t+8+r}, 0")
    a(f"v_add_u32 v{t+1}, {LDS_ZERO}, v{t}")
    a(f"ds_write_b128 v{t+1}, {v(t+8,4)}")
    a.label("K1_wp2")
    a(f"s_mov_b64 exec, s[{S_T+2}:{S_T+3}]")
    a("s_waitcnt lgkmcnt(0)")

PKO = 0
VO = 40960

def gen_epilogue_A(a):
    t = V_T0
    a("s_barrier")
    WF = 148
    QB = 208
    P = 220
    OUT = 28
    a(f"v_and_b32 v{t}, 3, v{V_LANE}")
    a(f"v_bfe_u32 v{t+1}, v{V_LANE}, 2, 2")
    a(f"v_mul_u32_u24 v{t+1}, 40, v{t+1}")
    a(f"v_mul_u32_u24 v{t+2}, 800, v{V_GRP}")
    a(f"v_add_u32 v{t+1}, v{t+1}, v{t+2}")
    a(f"v_add_u32 v{t+1}, {LDS_WPHI}, v{t+1}")
    a(f"v_mov_b32 v{t+2}, {LDS_ZERO}")
    a(f"v_cmp_eq_u32 vcc, v{t}, v{V_GRP}")
    a("s_nop 1")
    a(f"v_cndmask_b32 v{t+1}, v{t+2}, v{t+1}, vcc")
    for tt in range(5):
        for c in range(3):
            r = WF + (tt * 3 + c) * 4
            for qq in range(2):
                if c == 2 and qq == 1:
                    a(f"v_mov_b32 v{r+2}, 0")
                    a(f"v_mov_b32 v{r+3}, 0")
                else:
                    a(f"ds_read_b64_tr_b16 {v(r+2*qq,2)}, v{t+1} offset:{(8*c+4*qq)*40 + 8*tt}")
    a(f"v_mov_b32 v{QB+10}, 0")
    a(f"v_mov_b32 v{QB+11}, 0")
    a(f"s_lshl_b32 s{S_T}, s{S_I}, 3")
    a(f"s_lshl_b32 s{S_T+1}, s{S_RG}, 1")
    a(f"s_add_u32 s{S_T}, s{S_T}, s{S_T+1}")
    a(f"s_lshl_b32 s{S_T}, s{S_T}, 5")
    a(f"s_lshl_b32 s{S_T+1}, s{S_J}, 2")
    a(f"s_add_u32 s{S_T}, s{S_T}, s{S_T+1}")
    a(f"s_mul_i32 s{S_T}, s{S_T}, 1280")
    a(f"s_add_u32 s{S_T}, s{S_T}, {WS_PHIQ}")
    a(f"v_and_b32 v{t}, 15, v{V_LANE}")
    a(f"v_mul_u32_u24 v{t+2}, 1280, v{V_GRP}")
    a(f"v_lshl_add_u32 v{t+2}, v{t}, 4, v{t+2}")
    a(f"v_add_u32 v{t+2}, s{S_T}, v{t+2}")
    a(f"v_add_u32 v{t+7}, {32*1280}, v{t+2}")
    a(f"s_mul_i32 s{S_T}, s{S_RG}, {32*80}")
    a(f"v_mul_u32_u24 v{t+3}, 80, v{t}")
    a(f"v_mul_u32_u24 v{t+4}, 10240, v{V_GRP}")
    a(f"v_add_u32 v{t+3}, v{t+3}, v{t+4}")
    a(f"v_add_u32 v{t+3}, s{S_T}, v{t+3}")
    a(f"s_mul_i32 s{S_T}, s{S_RG}, {32*48}")
    a(f"s_mul_i32 s{S_T+1}, s{S_CG}, 24")
    a(f"s_add_u32 s{S_T}, s{S_T}, s{S_T+1}")
    a(f"v_mul_u32_u24 v{t+4}, 48, v{t}")
    a(f"v_mul_u32_u24 v{t+5}, 6144, v{V_GRP}")
    a(f"v_add_u32 v{t+4}, v{t+4}, v{t+5}")
    a(f"v_add_u32 v{t+4}, s{S_T}, v{t+4}")
    a(f"s_cmp_eq_u32 s{S_CG}, 1")
    a(f"s_cselect_b64 s[{S_T+2}:{S_T+3}], -1, 0")
    a(f"v_mov_b32 v{P+6}, 0x3f80")
    a(f"v_mov_b32 v{P+7}, 0")
    for rt in range(2):
        base = acc(rt, 5)
        for i in range(6):
            a(f"v_cvt_pk_bf16_f32 v{P+i}, v{base+2*i}, v{base+2*i+1}")
        a(f"v_cndmask_b32 v{P+4}, v{P+4}, v{P+6}, s[{S_T+2}:{S_T+3}]")
        a(f"v_cndmask_b32 v{P+5}, v{P+5}, v{P+7}, s[{S_T+2}:{S_T+3}]")
        for k in range(3):
            a(f"ds_write_b64 v{t+4}, {v(P+2*k,2)} offset:{VO + rt*768 + 8*k}")
        nop(a, 1)
    a("s_waitcnt lgkmcnt(0)")
    stamp(a)
    for rt in range(2):
        base = acc(rt, 0)
        for i in range(10):
            a(f"v_cvt_pk_bf16_f32 v{QB+i}, v{base+2*i}, v{base+2*i+1}")
        nop(a, 2)
        for c in range(3):
            for tt in range(5):
                src = "0" if c == 0 else v(P + tt * 4, 4)
                a(f"v_mfma_f32_16x16x32_bf16 {v(P+tt*4,4)}, {v(WF+(tt*3+c)*4,4)}, {v(QB+c*4,4)}, {src}")
        nop(a, 8)
        softmax_dual(a, P, base, OUT, QB)
        l1 = a.newlabel("K1_ak"); l2 = a.newlabel("K1_ae")
        a(f"s_cmp_eq_u32 s{S_CG}, 0")
        a(f"s_cbranch_scc0 {l1}")
        for k in range(5):
            a(f"buffer_store_dwordx4 {v(OUT+4*k,4)}, v{t+2 if rt == 0 else t+7}, s[{S_WS}:{S_WS+3}], 0 offen offset:{256*k}{SC()}")
        a(f"s_branch {l2}")
        a.label(l1)
        for k in range(5):
            a(f"ds_write_b128 v{t+3}, {v(OUT+4*k,4)} offset:{PKO + rt*1280 + 16*k}")
        a.label(l2)
        nop(a, 2)
        stamp(a)
    a("s_waitcnt lgkmcnt(0)")
    a("s_barrier")
    a(f"v_and_b32 v{t}, 3, v{V_LANE}")
    a(f"v_bfe_u32 v{t+1}, v{V_LANE}, 2, 2")
    a(f"v_lshl_add_u32 v{t+1}, v{V_GRP}, 3, v{t+1}")
    a(f"v_mul_u32_u24 v{t+2}, 80, v{t+1}")
    a(f"v_lshl_add_u32 v{t+2}, v{t}, 3, v{t+2}")
    a(f"s_mul_i32 s{S_T}, s{S_RG}, 10240")
    a(f"v_add_u32 v{t+2}, s{S_T}, v{t+2}")
    a(f"v_mul_u32_u24 v{t+3}, 48, v{t+1}")
    a(f"v_lshl_add_u32 v{t+3}, v{t}, 3, v{t+3}")
    a(f"s_mul_i32 s{S_T}, s{S_RG}, 6144")
    a(f"s_add_u32 s{S_T}, s{S_T}, {VO}")
    a(f"v_add_u32 v{t+3}, s{S_T}, v{t+3}")
    a(f"s_lshl_b32 s{S_T}, s{S_I}, 5")
    a(f"s_lshl_b32 s{S_T+1}, s{S_J}, 2")
    a(f"s_add_u32 s{S_T}, s{S_T}, s{S_T+1}")
    a(f"s_add_u32 s{S_T}, s{S_T}, s{S_RG}")
    a(f"s_mul_i32 s{S_T}, s{S_T}, 6144")
    a(f"s_add_u32 s{S_T}, s{S_T}, {WS_PART}")
    a(f"v_and_b32 v{t}, 15, v{V_LANE}")
    a(f"v_mul_u32_u24 v{t}, 192, v{t}")
    a(f"v_lshl_add_u32 v{t}, v{V_GRP}, 4, v{t}")
    a(f"v_add_u32 v{t}, s{S_T}, v{t}")
    AF = 76; BF = 124; KV = 172; AD = 184
    for y in range(3):
        a(f"s_mul_i32 s{S_T}, s{S_CG}, 3")
        a(f"s_add_u32 s{S_T}, s{S_T}, {y}")
        a(f"s_lshr_b32 s{S_T+1}, s{S_T}, 1")
        a(f"s_and_b32 s{S_T+2}, s{S_T}, 1")
        a(f"s_lshl_b32 s{S_T+3}, s{S_T+1}, 5")
        a(f"v_add_u32 v{AD+y}, s{S_T+3}, v{t+2}")
        a(f"s_lshl_b32 s{S_T+3}, s{S_T+2}, 5")
        a(f"v_add_u32 v{AD+3+y}, s{S_T+3}, v{t+3}")
        a(f"s_lshl_b32 s{S_T+3}, s{S_T+1}, 6")
        a(f"s_mul_i32 s{S_T+4}, s{S_T+2}, {16*192}")
        a(f"s_add_u32 s{S_T+3}, s{S_T+3}, s{S_T+4}")
        a(f"v_add_u32 v{AD+6+y}, s{S_T+3}, v{t}")
    for ks in range(4):
        for y in range(3):
            for qq in range(2):
                a(f"ds_read_b64_tr_b16 {v(AF+(y*4+ks)*4+2*qq,2)}, v{AD+y} offset:{(32*ks+4*qq)*80}")
                a(f"ds_read_b64_tr_b16 {v(BF+(y*4+ks)*4+2*qq,2)}, v{AD+3+y} offset:{(32*ks+4*qq)*48}")
        a("s_waitcnt lgkmcnt(0)")
    for ks in range(4):
        for y in range(3):
            d = KV + y * 4
            src = "0" if ks == 0 else v(d, 4)
            a(f"v_mfma_f32_16x16x32_bf16 {v(d,4)}, {v(AF+(y*4+ks)*4,4)}, {v(BF+(y*4+ks)*4,4)}, {src}")
    nop(a, 8)
    for y in range(3):
        a(f"buffer_store_dwordx4 {v(KV+y*4,4)}, v{AD+6+y}, s[{S_WS}:{S_WS+3}], 0 offen{SC()}")

QROW = 272
LQ = 0
LK = 128 * QROW
LV = LK + 144 * QROW

def gen_gate(a):
    t = V_T0
    a(f"s_cmp_ge_u32 s{S_WAVE}, 4")
    a("s_cbranch_scc1 K1_gdone")
    if GATE_IN_A:
        a(f"s_load_dwordx2 s[{S_PTR}:{S_PTR+1}], s[0:1], 56")
        a("s_waitcnt lgkmcnt(0)")
        srd(a, S_AUX, S_PTR, 1280)
    a(f"s_lshl_b32 s{S_T}, s{S_I}, 7")
    a(f"s_lshl_b32 s{S_T+1}, s{S_J}, 4")
    a(f"s_add_u32 s{S_T}, s{S_T}, s{S_T+1}")
    a(f"s_lshl_b32 s{S_T+1}, s{S_WAVE}, 2")
    a(f"s_add_u32 s{S_T}, s{S_T}, s{S_T+1}")
    a(f"v_add_u32 v{t}, s{S_T}, v{V_GRP}")
    a(f"v_and_b32 v{t+1}, 15, v{V_LANE}")
    a(f"v_mul_u32_u24 v{t+1}, 80, v{t+1}")
    a(f"v_mul_u32_u24 v{t+2}, 1280, v{t}")
    a(f"v_add_u32 v{t+2}, v{t+2}, v{t+1}")
    GX, GW = 188, 208
    for k in range(5):
        a(f"buffer_load_dwordx4 {v(GX+4*k,4)}, v{t+2}, s[{S_X}:{S_X+3}], 0 offen offset:{16*k}")
        a(f"buffer_load_dwordx4 {v(GW+4*k,4)}, v{t+1}, s[{S_AUX}:{S_AUX+3}], 0 offen offset:{16*k}")
    a("s_waitcnt vmcnt(0)")
    G0 = 28
    a(f"v_mov_b32 v{G0}, 0")
    a(f"v_mov_b32 v{G0+1}, 0")
    for i in range(20):
        a(f"v_lshlrev_b32 v{G0+2}, 16, v{GX+i}")
        a(f"v_and_b32 v{G0+3}, 0xffff0000, v{GX+i}")
        a(f"v_lshlrev_b32 v{G0+4}, 16, v{GW+i}")
        a(f"v_and_b32 v{G0+5}, 0xffff0000, v{GW+i}")
        a(f"v_mul_f32 v{G0+2}, v{G0+2}, v{G0+4}")
        a(f"v_mul_f32 v{G0+3}, v{G0+3}, v{G0+5}")
        a(f"v_cvt_pk_bf16_f32 v{G0+2}, v{G0+2}, v{G0+3}")
        a(f"v_lshlrev_b32 v{G0+3}, 16, v{G0+2}")
        a(f"v_and_b32 v{G0+2}, 0xffff0000, v{G0+2}")
        a(f"v_add_f32 v{G0}, v{G0}, v{G0+3}")
        a(f"v_add_f32 v{G0+1}, v{G0+1}, v{G0+2}")
    a(f"v_add_f32 v{G0}, v{G0}, v{G0+1}")
    for x in (1, 2, 4, 8):
        a(f"ds_swizzle_b32 v{G0+1}, v{G0} offset:{(x << 10) | 0x1f}")
        a("s_waitcnt lgkmcnt(0)")
        a(f"v_add_f32 v{G0}, v{G0}, v{G0+1}")
    a(f"v_cvt_pk_bf16_f32 v{G0}, v{G0}, v{G0}")
    a(f"v_lshlrev_b32 v{G0}, 16, v{G0}")
    a(f"v_mul_f32 v{G0}, s{S_NL}, v{G0}")
    a(f"v_exp_f32 v{G0}, v{G0}")
    a("s_nop 0")
    a(f"v_add_f32 v{G0}, 1.0, v{G0}")
    a(f"v_rcp_f32 v{G0}, v{G0}")
    a("s_nop 0")
    a(f"v_cvt_pk_bf16_f32 v{G0}, v{G0}, v{G0}")
    a(f"v_lshlrev_b32 v{G0}, 16, v{G0}")
    a(f"v_lshlrev_b32 v{t}, 2, v{t}")
    a(f"v_add_u32 v{t}, {WS_G}, v{t}")
    a(f"v_and_b32 v{t+1}, 15, v{V_LANE}")
    a(f"v_cmp_eq_u32 vcc, 0, v{t+1}")
    a(f"s_and_saveexec_b64 s[{S_T+2}:{S_T+3}], vcc")
    a(f"buffer_store_dword v{G0}, v{t}, s[{S_WS}:{S_WS+3}], 0 offen{SC()}")
    a(f"s_mov_b64 exec, s[{S_T+2}:{S_T+3}]")
    a.label("K1_gdone")

def gen_epilogue_B(a):
    t = V_T0
    a("s_barrier")
    a(f"v_and_b32 v{t}, 15, v{V_LANE}")
    a(f"v_mul_u32_u24 v{t+1}, {QROW}, v{t}")
    a(f"v_lshl_add_u32 v{t+1}, v{V_GRP}, 6, v{t+1}")
    a(f"s_mul_i32 s{S_T}, s{S_RG}, {32*QROW}")
    a(f"s_mul_i32 s{S_T+1}, s{S_CG}, {LK + 16*QROW}")
    a(f"s_add_u32 s{S_T+1}, s{S_T+1}, s{S_T}")
    a(f"v_add_u32 v{t+2}, s{S_T+1}, v{t+1}")
    a(f"s_mul_i32 s{S_T+1}, s{S_CG}, 24")
    a(f"s_add_u32 s{S_T+1}, s{S_T+1}, s{S_T}")
    a(f"s_add_u32 s{S_T+1}, s{S_T+1}, {LV + 16*QROW}")
    a(f"v_add_u32 v{t+3}, s{S_T+1}, v{t+1}")
    PB = 28
    for i in range(10, 16):
        a(f"v_mov_b32 v{PB+i}, 0")
    for rt in range(2):
        base = acc(rt, 0)
        for i in range(10):
            a(f"v_cvt_pk_bf16_f32 v{PB+i}, v{base+2*i}, v{base+2*i+1}")
        for k in range(4):
            a(f"ds_write_b128 v{t+2}, {v(PB+4*k,4)} offset:{rt*16*QROW+16*k}")
        base = acc(rt, 5)
        for i in range(6):
            a(f"v_cvt_pk_bf16_f32 v{PB+16+i}, v{base+2*i}, v{base+2*i+1}")
        for k in range(3):
            a(f"ds_write_b64 v{t+3}, {v(PB+16+2*k,2)} offset:{rt*16*QROW+8*k}")
        nop(a, 2)
    for k in range(3):
        a(f"ds_write_b64 v{t+1}, {v(PB+10,2)} offset:{LK + 40 + 8*k}")
    for h in range(2):
        a(f"s_add_u32 s{S_T}, s{S_WAVE}, {8*h}")
        a(f"s_cmp_ge_u32 s{S_T}, 10")
        a(f"s_cselect_b32 s{S_T}, s{S_WAVE}, s{S_T}")
        a(f"s_cmp_ge_u32 s{S_T}, 5")
        a(f"s_mov_b32 s{S_T+2}, {LK}")
        a(f"s_cselect_b32 s{S_T+1}, {LV-40}, s{S_T+2}")
        a(f"s_lshl_b32 s{S_T}, s{S_T}, 3")
        a(f"s_add_u32 s{S_T}, s{S_T}, s{S_T+1}")
        a(f"v_add_u32 v{t+4}, s{S_T}, v{t+1}")
        a(f"v_cvt_pk_bf16_f32 v{PB}, v{V_HACC+4*h}, v{V_HACC+4*h+1}")
        a(f"v_cvt_pk_bf16_f32 v{PB+1}, v{V_HACC+4*h+2}, v{V_HACC+4*h+3}")
        a(f"ds_write_b64 v{t+4}, {v(PB,2)}")
        nop(a, 2)
    a(f"v_lshlrev_b32 v{t+3}, 2, v{V_GRP}")
    a(f"v_sub_u32 v{t+3}, v{t}, v{t+3}")
    for r in range(4):
        a(f"v_sub_u32 v{t+4}, {r-2}, v{t+3}")
        a(f"v_and_b32 v{t+4}, 0x80000001, v{t+4}")
        a(f"v_cmp_eq_u32 s[{S_MASK+2*r}:{S_MASK+2*r+1}], 0, v{t+4}")
        a(f"v_subrev_u32 v{t+4}, {r}, v{t+3}")
        a(f"v_and_b32 v{t+4}, 0x80000001, v{t+4}")
        a(f"v_cmp_eq_u32 s[{S_MASK+8+2*r}:{S_MASK+8+2*r+1}], 0, v{t+4}")
    a(f"s_or_b32 s{S_T}, s{S_I}, s{S_WAVE}")
    a(f"s_cmp_eq_u32 s{S_T}, 0")
    for r in range(4):
        a(f"s_cselect_b64 s[{S_MASK+2*r}:{S_MASK+2*r+1}], 0, s[{S_MASK+2*r}:{S_MASK+2*r+1}]")
    a(f"v_mul_u32_u24 v{t+1}, {QROW}, v{t}")
    a(f"v_lshl_add_u32 v{t+1}, v{V_GRP}, 4, v{t+1}")
    a(f"s_mul_i32 s{S_T}, s{S_WAVE}, {16*QROW}")
    a(f"v_add_u32 v{t+1}, s{S_T}, v{t+1}")
    a(f"v_add_u32 v{t+2}, {LK}, v{t+1}")
    a(f"v_lshrrev_b32 v{t+3}, 2, v{V_LANE}")
    a(f"v_mul_u32_u24 v{t+3}, {QROW}, v{t+3}")
    a(f"v_and_b32 v{t+4}, 3, v{V_LANE}")
    a(f"v_lshl_add_u32 v{t+3}, v{t+4}, 3, v{t+3}")
    a(f"v_add_u32 v{t+3}, s{S_T}, v{t+3}")
    a(f"v_add_u32 v{t+3}, {LV}, v{t+3}")
    a(f"s_mov_b32 s{S_T+4}, 0x3e64f92e")
    a(f"s_mov_b32 s{S_T+5}, 0xff000000")
    OA = 232
    a(f"s_lshl_b32 s{S_T}, s{S_I}, 3")
    a(f"s_add_u32 s{S_T}, s{S_T}, s{S_WAVE}")
    a(f"s_mul_i32 s{S_T}, s{S_T}, 20480")
    a(f"s_add_u32 s{S_T}, s{S_T}, {WS_OB}")
    a(f"s_mul_i32 s{S_T+1}, s{S_J}, 80")
    a(f"v_lshlrev_b32 v{t+4}, 2, v{V_GRP}")
    a(f"v_add_u32 v{t+4}, s{S_T+1}, v{t+4}")
    a(f"v_lshlrev_b32 v{t+5}, 4, v{t}")
    a(f"v_add_u32 v{t+5}, s{S_T}, v{t+5}")
    for h in range(4):
        for td in range(2):
            o = OA + h * 2 + td
            a(f"v_add_u32 v{t+6}, {20*h+16*td}, v{t+4}")
            a(f"v_lshrrev_b32 v{t+7}, 5, v{t+6}")
            a(f"v_lshl_add_u32 v{o}, v{t+7}, 10, v{t+5}")
            a(f"v_bfe_u32 v{t+7}, v{t+6}, 3, 2")
            a(f"v_lshl_add_u32 v{o}, v{t+7}, 8, v{o}")
            a(f"v_bfe_u32 v{t+7}, v{t+6}, 2, 1")
            a(f"v_lshl_add_u32 v{o}, v{t+7}, 3, v{o}")
    a("s_waitcnt lgkmcnt(0)")
    stamp(a)
    a("s_barrier")
    RB = 76
    for h in range(4):
        R = RB + h * 28
        QF, KA, KB_, VF = R, R + 4, R + 8, R + 12
        a(f"ds_read_b128 {v(QF,4)}, v{t+1} offset:{LQ + h*64}")
        a(f"ds_read_b128 {v(KA,4)}, v{t+2} offset:{h*64}")
        a(f"ds_read_b128 {v(KB_,4)}, v{t+2} offset:{16*QROW + h*64}")
        for td in range(2):
            a(f"ds_read_b64_tr_b16 {v(VF+4*td,2)}, v{t+3} offset:{h*64 + 32*td}")
            a(f"ds_read_b64_tr_b16 {v(VF+4*td+2,2)}, v{t+3} offset:{16*QROW + h*64 + 32*td}")
        if h == 1:
            a("s_waitcnt lgkmcnt(0)")
    a("s_waitcnt lgkmcnt(0)")
    for h in range(4):
        R = RB + h * 28
        QF, KA, KB_, VF = R, R + 4, R + 8, R + 12
        SA, SB = R + 20, R + 24
        a(f"v_mfma_f32_16x16x32_bf16 {v(SA,4)}, {v(KA,4)}, {v(QF,4)}, 0")
        a(f"v_mfma_f32_16x16x32_bf16 {v(SB,4)}, {v(KB_,4)}, {v(QF,4)}, 0")
    nop(a, 8)
    stamp(a)
    TT = 28
    for h in range(4):
        R = RB + h * 28
        QF, KA, KB_, VF = R, R + 4, R + 8, R + 12
        S = R + 20
        T8 = TT
        for i in range(4):
            a(f"v_cvt_pk_bf16_f32 v{T8+i}, v{S+2*i}, v{S+2*i+1}")
        for i in range(4):
            a(f"v_lshlrev_b32 v{S+2*i}, 16, v{T8+i}")
            a(f"v_and_b32 v{S+2*i+1}, 0xffff0000, v{T8+i}")
        for i in range(8):
            a(f"v_mul_f32 v{S+i}, s{S_T+4}, v{S+i}")
        for i in range(4):
            a(f"v_cvt_pk_bf16_f32 v{T8+i}, v{S+2*i}, v{S+2*i+1}")
        for i in range(4):
            a(f"v_lshlrev_b32 v{S+2*i}, 16, v{T8+i}")
            a(f"v_and_b32 v{S+2*i+1}, 0xffff0000, v{T8+i}")
        a(f"v_mov_b32 v{T8+4}, s{S_T+5}")
        for i in range(8):
            mk = S_MASK + 2 * i
            a(f"v_cndmask_b32 v{S+i}, v{T8+4}, v{S+i}, s[{mk}:{mk+1}]")
        m = T8 + 5
        a(f"v_max3_f32 v{m}, v{S}, v{S+1}, v{S+2}")
        a(f"v_max3_f32 v{m}, v{m}, v{S+3}, v{S+4}")
        a(f"v_max3_f32 v{m}, v{m}, v{S+5}, v{S+6}")
        a(f"v_max_f32 v{m}, v{m}, v{S+7}")
        a(f"v_mov_b32 v{m+1}, v{m}")
        nop(a, 2)
        a(f"v_permlane16_swap_b32 v{m}, v{m+1}")
        nop(a, 2)
        a(f"v_max_f32 v{m}, v{m}, v{m+1}")
        a(f"v_mov_b32 v{m+1}, v{m}")
        nop(a, 2)
        a(f"v_permlane32_swap_b32 v{m}, v{m+1}")
        nop(a, 2)
        a(f"v_max_f32 v{m}, v{m}, v{m+1}")
        a(f"v_mul_f32 v{m}, s{S_NL}, v{m}")
        for i in range(8):
            a(f"v_fma_f32 v{S+i}, v{S+i}, s{S_L}, v{m}")
        for i in range(8):
            a(f"v_exp_f32 v{S+i}, v{S+i}")
        a("s_nop 0")
        sm = T8 + 5
        a(f"v_add_f32 v{sm}, v{S}, v{S+1}")
        a(f"v_add_f32 v{sm+1}, v{S+2}, v{S+3}")
        a(f"v_add_f32 v{sm}, v{sm}, v{S+4}")
        a(f"v_add_f32 v{sm+1}, v{sm+1}, v{S+5}")
        a(f"v_add_f32 v{sm}, v{sm}, v{S+6}")
        a(f"v_add_f32 v{sm+1}, v{sm+1}, v{S+7}")
        a(f"v_add_f32 v{sm}, v{sm}, v{sm+1}")
        a(f"v_mov_b32 v{sm+1}, v{sm}")
        nop(a, 2)
        a(f"v_permlane16_swap_b32 v{sm}, v{sm+1}")
        nop(a, 2)
        a(f"v_add_f32 v{sm}, v{sm}, v{sm+1}")
        a(f"v_mov_b32 v{sm+1}, v{sm}")
        nop(a, 2)
        a(f"v_permlane32_swap_b32 v{sm}, v{sm+1}")
        nop(a, 2)
        a(f"v_add_f32 v{sm}, v{sm}, v{sm+1}")
        a(f"v_rcp_f32 v{sm}, v{sm}")
        a("s_nop 0")
        for i in range(8):
            a(f"v_mul_f32 v{S+i}, v{S+i}, v{sm}")
        for i in range(4):
            a(f"v_cvt_pk_bf16_f32 v{QF+i}, v{S+2*i}, v{S+2*i+1}")
        nop(a, 2)
        for td in range(2):
            a(f"v_mfma_f32_16x16x32_bf16 {v(S+4*td,4)}, {v(VF+4*td,4)}, {v(QF,4)}, 0")
    nop(a, 8)
    for h in range(4):
        R = RB + h * 28
        S = R + 20
        for i in range(4):
            a(f"v_cvt_pk_bf16_f32 v{R+i}, v{S+2*i}, v{S+2*i+1}")
        a(f"buffer_store_dwordx2 {v(R,2)}, v{OA+2*h}, s[{S_WS}:{S_WS+3}], 0 offen{SC()}")
    a("s_mov_b64 exec, 0xffff")
    for h in range(4):
        R = RB + h * 28
        a(f"buffer_store_dwordx2 {v(R+2,2)}, v{OA+2*h+1}, s[{S_WS}:{S_WS+3}], 0 offen{SC()}")
    a("s_mov_b64 exec, -1")
    if not GATE_IN_A:
        gen_gate(a)

def gen_wo_prefetch(a, lab):
    if not MEGA: return
    t = V_X + 8
    a(f"s_cmp_ge_u32 s{S_WAVE}, 5")
    a(f"s_cbranch_scc1 {lab}")
    a(f"s_load_dwordx2 s[{S_PTR}:{S_PTR+1}], s[0:1], 24")
    a(f"s_load_dwordx2 s[{S_PTR+2}:{S_PTR+3}], s[0:1], 48")
    a(f"s_lshr_b32 s{S_T}, s2, 3")
    a(f"s_and_b32 s{S_T+1}, s{S_T}, 3")
    a(f"s_lshr_b32 s{S_T}, s{S_T}, 2")
    a(f"s_mul_i32 s{S_T}, s{S_T}, 160")
    a(f"s_and_b32 s{S_T}, s{S_T}, 0xffffff80")
    a(f"s_mul_i32 s{S_T+1}, s{S_T+1}, 160")
    a(f"s_lshl_b32 s{S_T+2}, s{S_WAVE}, 5")
    a(f"s_add_u32 s{S_T+1}, s{S_T+1}, s{S_T+2}")
    a(f"s_mul_i32 s{S_T+1}, s{S_T+1}, 1280")
    a(f"s_add_u32 s{S_T}, s{S_T}, s{S_T+1}")
    a(f"v_lshrrev_b32 v{t}, 1, v{V_LANE}")
    a(f"v_mul_u32_u24 v{t}, 1280, v{t}")
    a(f"v_and_b32 v{t+1}, 1, v{V_LANE}")
    a(f"v_lshl_add_u32 v{t}, v{t+1}, 7, v{t}")
    a(f"v_add_u32 v{t}, s{S_T}, v{t}")
    a("s_waitcnt lgkmcnt(0)")
    srd(a, S_MASK, S_PTR, 640 * 1280)
    srd(a, S_MASK + 4, S_PTR + 2, 640 * 1280)
    a(f"buffer_load_dword v{V_X}, v{t}, s[{S_MASK}:{S_MASK+3}], 0 offen")
    a(f"buffer_load_dword v{V_X+1}, v{t}, s[{S_MASK+4}:{S_MASK+7}], 0 offen")
    a(f"buffer_load_dword v{V_X+2}, v{t}, s[{S_MASK}:{S_MASK+3}], 0 offen offset:640")
    a(f"buffer_load_dword v{V_X+3}, v{t}, s[{S_MASK+4}:{S_MASK+7}], 0 offen offset:640")
    a.label(lab)

def fl1_addr(a):
    a(f"s_add_u32 s{S_T+1}, s{S_I}, 8")
    a(f"s_cmp_eq_u32 s{S_BR}, 0")
    a(f"s_cselect_b32 s{S_T}, s{S_J}, s{S_T+1}")
    a(f"s_cselect_b32 s{S_T+1}, s{S_I}, s{S_J}")
    a(f"s_lshl_b32 s{S_T}, s{S_T}, 7")
    a(f"s_lshl_b32 s{S_T+1}, s{S_T+1}, 2")
    a(f"s_add_u32 s{S_T}, s{S_T}, s{S_T+1}")
    a(f"s_add_u32 s{S_T}, s{S_T}, {WS_FL + 0x1000}")

def gen_started(a, lab):
    if not MEGA: return
    a(f"s_cmp_lg_u32 s{S_WAVE}, 7")
    a(f"s_cbranch_scc1 {lab}")
    a(f"s_load_dwordx2 s[{S_PTR}:{S_PTR+1}], s[0:1], 72")
    a("s_waitcnt lgkmcnt(0)")
    srd(a, S_PTR + 4, S_PTR, 256)
    a(f"v_mov_b32 v2, 0")
    a(f"v_mov_b32 v3, 1")
    a("s_mov_b64 exec, 1")
    a(f"buffer_atomic_add v3, v2, s[{S_PTR+4}:{S_PTR+7}], 0 offen sc1")
    a("s_mov_b64 exec, -1")
    a.label(lab)

V_CHK = 19
def gen_check_issue(a, lab):
    if not (MEGA and WOT): return
    a(f"v_mov_b32 v{V_CHK}, 0")
    a(f"s_cmp_lg_u32 s{S_WAVE}, 7")
    a(f"s_cbranch_scc1 {lab}")
    a(f"s_load_dwordx2 s[{S_PTR}:{S_PTR+1}], s[0:1], 72")
    a("s_waitcnt lgkmcnt(0)")
    srd(a, S_PTR + 4, S_PTR, 256)
    a(f"buffer_load_dword v{V_CHK}, v{V_CHK}, s[{S_PTR+4}:{S_PTR+7}], 0 offen sc1")
    a.label(lab)

def gen_signal(a, idx_sreg, base, lab):
    if WOT:
        a(f"s_cmp_lg_u32 s{S_WAVE}, 7")
        a(f"s_cbranch_scc1 {lab}_c")
        a("s_waitcnt vmcnt(0)")
        a(f"v_readfirstlane_b32 s{S_T}, v{V_CHK}")
        a("s_nop 3")
        a(f"s_cmp_ge_u32 s{S_T}, 256")
        a(f"s_cbranch_scc1 {lab}_c")
        a(f"s_load_dwordx2 s[{S_PTR}:{S_PTR+1}], s[0:1], 72")
        a("s_waitcnt lgkmcnt(0)")
        srd(a, S_PTR + 4, S_PTR, 256)
        a(f"v_mov_b32 v2, 0")
        a(f"s_mov_b32 s{S_T+2}, 0")
        a.label(f"{lab}_l")
        a(f"buffer_load_dword v3, v2, s[{S_PTR+4}:{S_PTR+7}], 0 offen sc1")
        a("s_waitcnt vmcnt(0)")
        a(f"v_readfirstlane_b32 s{S_T}, v3")
        a("s_nop 3")
        a(f"s_cmp_ge_u32 s{S_T}, 256")
        a(f"s_cbranch_scc1 {lab}_c")
        a(f"s_add_u32 s{S_T+2}, s{S_T+2}, 1")
        a(f"s_cmp_lt_u32 s{S_T+2}, 0x40000")
        a(f"s_cbranch_scc0 {lab}_c")
        a("s_sleep 2")
        a(f"s_branch {lab}_l")
        a.label(f"{lab}_c")
    a("s_waitcnt vmcnt(0) lgkmcnt(0)")
    a("s_barrier")
    a(f"s_cmp_lg_u32 s{S_WAVE}, 0")
    a(f"s_cbranch_scc1 {lab}")
    fl1_addr(a)
    a(f"v_mov_b32 v2, s{S_T}")
    a(f"v_mov_b32 v3, 1")
    a("s_mov_b64 exec, 1")
    a(f"buffer_store_dword v3, v2, s[{S_WS}:{S_WS+3}], 0 offen sc1")
    a("s_mov_b64 exec, -1")
    a.label(lab)

def gen_k1(a, name="k1_kernel", tail=None):
    kernel_header(a, name)
    NST[0] = 0
    stamp(a)
    if START_RT:
        a("s_memrealtime s[100:101]")
    gen_prologue(a)
    if MEGA:
        a(f"s_cmp_lg_u32 s{S_WAVE}, 7")
        a("s_cbranch_scc1 K1_fc")
        a(f"s_lshl_b32 s{S_T}, s2, 2")
        a(f"s_add_u32 s{S_T}, s{S_T}, {WS_FL}")
        a(f"v_mov_b32 v2, s{S_T}")
        a(f"v_mov_b32 v3, 0")
        a("s_mov_b64 exec, 1")
        a(f"buffer_store_dword v3, v2, s[{S_WS}:{S_WS+3}], 0 offen sc1")
        fl1_addr(a)
        a(f"v_mov_b32 v2, s{S_T}")
        a(f"buffer_store_dword v3, v2, s[{S_WS}:{S_WS+3}], 0 offen sc1")
        a("s_mov_b64 exec, -1")
        a.label("K1_fc")
    a(f"s_cmp_eq_u32 s{S_BR}, 0")
    a("s_cbranch_scc0 K1_B")
    gen_wphi_issue(a)
    gen_mainloop(a, halo=False, pre_hook=lambda: gen_wphi_stage(a))
    stamp(a)
    gen_check_issue(a, "K1_ciA")
    gen_epilogue_A(a)
    if GATE_IN_A:
        gen_gate(a)
    stamp_flush(a)
    if MEGA:
        gen_signal(a, S_J, 0, "K1_sA")
        a("s_branch K1_tail")
    else:
        a("s_endpgm")
    a.label("K1_B")
    NST[0] = 1
    gen_mainloop(a, halo=True)
    stamp(a)
    gen_check_issue(a, "K1_ciB")
    gen_epilogue_B(a)
    stamp_flush(a)
    if MEGA:
        gen_signal(a, S_I, 32, "K1_sB")
        a.label("K1_tail")
        tail(a)
    a.label("K1_done")
    a("s_endpgm")
    return name
```
